```python
import torch

def _softmax(x, axis=-1):
    return torch.softmax(x, dim=axis)
def _gelu(x):
    return torch.nn.functional.gelu(x, approximate="tanh")
def _silu(x):
    return torch.nn.functional.silu(x)
def _sigmoid(x):
    return torch.sigmoid(x)
def _layernorm(x, axis=-1, eps=1e-5):
    m = x.mean(dim=axis, keepdim=True)
    v = x.var(dim=axis, keepdim=True, unbiased=False)
    return (x - m) / torch.sqrt(v + eps)
def _scatter_add(tgt, idx, src, axis=0):
    return tgt.clone().index_add_(axis, idx, src)
def _segment_sum(src, seg, n):
    out = torch.zeros((n,) + src.shape[1:], dtype=src.dtype)
    return out.index_add_(0, seg, src)
def _pad(x, pw):
    flat = tuple(v for pair in reversed(pw) for v in pair)
    return torch.nn.functional.pad(x, flat)

kernel_name = 'standalone__hybrid_graph_tf_nagphormer__graph'

def setup_inputs():

    _w = (lambda a: (lambda t: t.to(torch.bfloat16) if t.is_floating_point() else t)(torch.as_tensor(a)))
    N, deg, D = 25000, 16, 128
    E = N * deg
    src = (lambda lo, hi, *s: torch.randint(lo, hi, s))(0, N, E).to(torch.int64)
    dst = (lambda lo, hi, *s: torch.randint(lo, hi, s))(0, N, E).to(torch.int64)
    deg_cnt = torch.bincount(dst, minlength=N).to(float) + 1.0
    sc = 1.0 / D ** 0.5
    return {
        "x": _w((lambda *s: torch.randn(*s, dtype=torch.bfloat16) * 0.1)(N, D)),
        "src": _w(src),
        "dst": _w(dst),
        "deg_inv_sqrt": _w(1.0 / (lambda _x: torch.sqrt(torch.as_tensor(_x)))(deg_cnt)),
        "wq": _w((lambda *s: torch.randn(*s, dtype=torch.bfloat16) * 1.6)(D, D) * sc),
        "wk": _w((lambda *s: torch.randn(*s, dtype=torch.bfloat16) * 1.6)(D, D) * sc),
        "wv": _w((lambda *s: torch.randn(*s, dtype=torch.bfloat16) * 0.1)(D, D) * sc),
        "wo": _w((lambda *s: torch.randn(*s, dtype=torch.bfloat16) * 0.1)(D, D) * sc),
        "w_r": _w((lambda *s: torch.randn(*s, dtype=torch.bfloat16) * 0.1)(D)),
    }

def reference(x, src, dst, deg_inv_sqrt, wq, wk, wv, wo, w_r):
    N, D = x.shape[0], x.shape[1]
    K = 7
    h = x
    toks = [x]
    for _ in range(K):
        msg = h[src] * deg_inv_sqrt[src, None] * deg_inv_sqrt[dst, None]
        h = _segment_sum(msg, dst, N)
        toks.append(h)
    tok = torch.stack(toks, axis=1)
    t = _layernorm(tok, axis=-1)
    q   = torch.einsum('nkd,de->nke', t, wq)
    key = torch.einsum('nkd,de->nke', t, wk)
    v   = torch.einsum('nkd,de->nke', t, wv)
    scale = 1.0 / (D ** 0.5)
    attn = _softmax(torch.einsum('nkd,nld->nkl', q, key) * scale, axis=-1)
    o = torch.einsum('nkl,nld->nkd', attn, v)
    o = tok + torch.einsum('nkd,de->nke', o, wo)
    r = _layernorm(o, axis=-1)
    alpha = _softmax(torch.einsum('nkd,d->nk', r, w_r), axis=-1)
    return torch.einsum('nk,nkd->nd', alpha, o)
```

```python
N=25000; NP=25088; E=400000
GSTR=NP*8
TSTR=32*GSTR
OFF_G=0
OFF_EDG=8*TSTR
OFF_OFFS=0x3290000
OFF_BLOB=0x32B0000
OFF_SCALE=0x34B0000
OFF_HDR=0x34D0000
OFF_FLAG=0x34E0000
OFF_WF=0x34F0000
OFF_OVF=0x3600000
OVF_SIZE=0x3400000
WS_SIZE=268435456
PW=100
PE=4000
NBIN=168
TH1=8448; TH2=16768
LDS_T1=TH1*8
LDS_OUT=2*LDS_T1
LDS_ZERO=LDS_OUT+25088
SLOT_OUT=LDS_OUT//8
SLOT_ZERO=LDS_ZERO//8

class Asm:
    def __init__(self): self.l=[]; self.uid=0
    def __call__(self,s=""):
        for ln in s.split("\n"):
            ln=ln.strip()
            if ln: self.l.append(ln if ln.endswith(":") else "    "+ln)
    def label(self,p="L"):
        self.uid+=1; return f"{p}_{self.uid}"
    def srd(self,d,lo,hi,size,off=0):
        if off:
            self(f"s_add_u32 s{d}, s{lo}, {off:#x}\ns_addc_u32 s{d+1}, s{hi}, 0")
        else:
            self(f"s_mov_b32 s{d}, s{lo}\ns_mov_b32 s{d+1}, s{hi}")
        self(f"s_mov_b32 s{d+2}, {size:#x}\ns_mov_b32 s{d+3}, 0x20000")
    def text(self): return "\n".join(self.l)+"\n"

def desc(name,vgpr,sgpr=102,accum=None):
    accum = accum or ((vgpr+3)//4*4)
    return f""".section .rodata,"a"
.p2align 6
.amdhsa_kernel {name}
  .amdhsa_next_free_vgpr {vgpr}
  .amdhsa_next_free_sgpr {sgpr}
  .amdhsa_accum_offset {accum}
  .amdhsa_group_segment_fixed_size 0
  .amdhsa_kernarg_size 96
  .amdhsa_user_sgpr_count 2
  .amdhsa_user_sgpr_kernarg_segment_ptr 1
  .amdhsa_system_sgpr_workgroup_id_x 1
  .amdhsa_float_denorm_mode_32 3
.end_amdhsa_kernel
"""
def head(name):
    return f""".text
.globl {name}
.p2align 8
.type {name},@function
{name}:
"""
def wave_scan_u32(a,v):
    for sh in (1,2,4,8):
        a(f"s_nop 1\nv_add_u32_dpp v{v}, v{v}, v{v} row_shr:{sh} row_mask:0xf bank_mask:0xf bound_ctrl:0")
    a(f"s_nop 1\nv_add_u32_dpp v{v}, v{v}, v{v} row_bcast:15 row_mask:0xa bank_mask:0xf")
    a(f"s_nop 1\nv_add_u32_dpp v{v}, v{v}, v{v} row_bcast:31 row_mask:0xc bank_mask:0xf")

import os
STAMP=os.environ.get("STAMP","")
class Stamper:
    def __init__(self,a,on): self.a=a; self.on=on; self.n=0
    def __call__(self):
        if not self.on: return
        if "fine" in os.environ.get("K3X",""):
            self.n=14; return
        self.a(f"s_memtime s[{72+2*self.n}:{73+2*self.n}]"); self.n+=1
    def dump(self,wg,wave,base=0,wavereg=3):
        if not self.on: return
        a=self.a; l=a.label("ST")
        a(f"""s_cmp_lg_u32 s2, {wg}
          s_cbranch_scc1 {l}
          s_cmp_lg_u32 s{wavereg}, {wave}
          s_cbranch_scc1 {l}
          s_load_dwordx2 s[70:71], s[0:1], 80
          s_waitcnt lgkmcnt(0)
          s_mov_b64 exec, 1""")
        for i in range(self.n):
            a(f"v_mov_b32 v0, s{72+2*i}\nv_mov_b32 v1, {4*(base+i)}\nglobal_store_dword v1, v0, s[70:71]")
        a(f"s_waitcnt vmcnt(0)\n{l}:")
```

```python
from common import *
import math
def wave_scan_f32(a,v):
    for sh in (1,2,4,8):
        a(f"s_nop 1\nv_add_f32_dpp v{v}, v{v}, v{v} row_shr:{sh} row_mask:0xf bank_mask:0xf bound_ctrl:0")
    a(f"s_nop 1\nv_add_f32_dpp v{v}, v{v}, v{v} row_bcast:15 row_mask:0xa bank_mask:0xf")
    a(f"s_nop 1\nv_add_f32_dpp v{v}, v{v}, v{v} row_bcast:31 row_mask:0xc bank_mask:0xf")
def f2u(x):
    import struct; return struct.unpack("<I",struct.pack("<f",x))[0]

def row16_reduce(a,src,dst,n):
    for i in range(n): a(f"v_add_f32_dpp v{dst+i}, v{src+i}, v{src+i} row_ror:8 row_mask:0xf bank_mask:0xf")
    for sh in (4,2,1):
        for i in range(n): a(f"v_add_f32_dpp v{dst+i}, v{dst+i}, v{dst+i} row_ror:{sh} row_mask:0xf bank_mask:0xf")

def gen_k1(name):
    a=Asm(); a.l.append(head(name))
    st=Stamper(a,"k1" in STAMP)
    st()
    a(f"""s_cmp_ge_u32 s2, 200
      s_cbranch_scc1 K1_END
      s_load_dwordx2 s[8:9], s[0:1], 88
      v_lshrrev_b32 v1, 6, v0
      v_and_b32 v2, 63, v0
      s_cmp_ge_u32 s2, {PW}
      v_readfirstlane_b32 s3, v1
      s_cbranch_scc1 K1_NOTPART""")
    a(f"""s_load_dwordx4 s[4:7], s[0:1], 8
      v_lshlrev_b32 v3, 2, v0
      v_mov_b32 v4, 0
      ds_write_b32 v3, v4
      v_lshlrev_b32 v3, 4, v0
      s_mul_i32 s10, s2, {PE*4}
      s_waitcnt lgkmcnt(0)""")
    a.srd(12,4,5,E*4); a.srd(16,6,7,E*4)
    a(f"""v_cmp_gt_u32 vcc, {PE//4}, v0
      s_and_saveexec_b64 s[20:21], vcc
      buffer_load_dwordx4 v[8:11], v3, s[16:19], s10 offen
      buffer_load_dwordx4 v[4:7], v3, s[12:15], s10 offen
      s_mov_b32 s22, {TH1}
      s_mov_b32 s23, {TH2}
      s_movk_i32 s24, -448
      v_mov_b32 v28, 1
      v_mov_b32 v29, s23
      s_barrier
      s_waitcnt vmcnt(1)""")
    for i in range(4): a(f"v_lshrrev_b32 v{12+i}, 6, v{8+i}")
    for i in range(4): a(f"v_mul_u32_u24 v{12+i}, 9363, v{12+i}")
    for i in range(4): a(f"v_lshrrev_b32 v{12+i}, 16, v{12+i}")
    for i in range(4): a(f"v_mad_i32_i24 v{8+i}, v{12+i}, s24, v{8+i}")
    for i in range(4): a(f"v_lshl_add_u32 v{12+i}, v{12+i}, 1, v{12+i}")
    a("s_waitcnt vmcnt(0)")
    for i in range(4): a(f"v_cmp_le_u32 s[{26+2*i}:{27+2*i}], s22, v{4+i}")
    for i in range(4): a(f"v_cmp_le_u32 s[{34+2*i}:{35+2*i}], s23, v{4+i}")
    for i in range(4): a(f"v_addc_co_u32 v{12+i}, vcc, 0, v{12+i}, s[{26+2*i}:{27+2*i}]")
    for i in range(4): a(f"v_cndmask_b32 v{16+i}, 0, v29, s[{34+2*i}:{35+2*i}]")
    for i in range(4): a(f"v_addc_co_u32 v{12+i}, vcc, 0, v{12+i}, s[{34+2*i}:{35+2*i}]")
    for i in range(4): a(f"v_sub_u32 v{4+i}, v{4+i}, v{16+i}")
    for i in range(4): a(f"v_lshlrev_b32 v{12+i}, 2, v{12+i}")
    for i in range(4): a(f"ds_add_rtn_u32 v{16+i}, v{12+i}, v28")
    for i in range(4): a(f"v_lshl_or_b32 v{4+i}, v{8+i}, 16, v{4+i}")
    a(f"""s_waitcnt lgkmcnt(0)
      s_barrier
      s_cmp_lg_u32 s3, 0
      s_cbranch_scc1 K1_P_SKIPSCAN
      v_lshlrev_b32 v20, 4, v2
      ds_read_b128 v[24:27], v20
      s_mul_i32 s11, s2, {NBIN*4}
      s_add_u32 s44, s8, {OFF_OFFS:#x}
      s_addc_u32 s45, s9, 0
      s_add_u32 s44, s44, s11
      s_addc_u32 s45, s45, 0
      s_mov_b32 s46, {NBIN*4}
      s_mov_b32 s47, 0x20000
      s_waitcnt lgkmcnt(0)
      v_add_u32 v21, v24, v25
      v_add3_u32 v21, v21, v26, v27
      v_mov_b32 v22, v21""")
    wave_scan_u32(a,22)
    a(f"""v_sub_u32 v32, v22, v21
      v_add_u32 v33, v32, v24
      v_add_u32 v34, v33, v25
      v_add_u32 v35, v34, v26
      ds_write_b128 v20, v[32:35] offset:1024
      v_lshl_or_b32 v36, v24, 16, v32
      v_lshl_or_b32 v37, v25, 16, v33
      v_lshl_or_b32 v38, v26, 16, v34
      v_lshl_or_b32 v39, v27, 16, v35
      buffer_store_dwordx4 v[36:39], v20, s[44:47], 0 offen
      s_waitcnt lgkmcnt(0)
      K1_P_SKIPSCAN:
      s_barrier""")
    for i in range(4): a(f"ds_read_b32 v{20+i}, v{12+i} offset:1024")
    a.srd(12,8,9,E*4,OFF_EDG)
    for i in range(4):
        a(f"s_waitcnt lgkmcnt({3-i})\nv_add_lshl_u32 v{20+i}, v{20+i}, v{16+i}, 2")
    for i in range(4): a(f"ds_write_b32 v{20+i}, v{4+i} offset:2048")
    a(f"""s_waitcnt lgkmcnt(0)
      s_barrier
      ds_read_b128 v[4:7], v3 offset:2048
      s_waitcnt lgkmcnt(0)
      buffer_store_dwordx4 v[4:7], v3, s[12:15], s10 offen
      s_endpgm""")
    a(f"""K1_NOTPART:
      s_cmp_ge_u32 s2, 198
      s_cbranch_scc1 K1_WEIGHTS
      s_load_dwordx2 s[4:5], s[0:1], 0
      s_load_dwordx2 s[6:7], s[0:1], 24
      s_sub_u32 s10, s2, {PW}
      s_lshl_b32 s10, s10, 4
      s_add_u32 s10, s10, s3
      s_lshr_b32 s11, s10, 2
      s_and_b32 s10, s10, 3
      s_lshl_b32 s11, s11, 6
      v_add_u32 v2, s11, v2
      s_lshl_b32 s24, s10, 6
      v_lshlrev_b32 v3, 8, v2
      v_lshlrev_b32 v4, 1, v2
      v_lshlrev_b32 v5, 3, v2
      s_waitcnt lgkmcnt(0)""")
    a.srd(12,4,5,N*256); a.srd(16,6,7,N*2); a.srd(20,8,9,TSTR)
    a("buffer_load_ushort v6, v4, s[16:19], 0 offen")
    for i in range(4): a(f"buffer_load_dwordx4 v[{8+4*i}:{11+4*i}], v3, s[12:15], s24 offen offset:{16*i}")
    a(f"""s_mul_i32 s25, s10, {8*GSTR}
      s_mov_b32 s26, 0xffff0000
      s_waitcnt vmcnt(4)
      v_lshlrev_b32 v6, 16, v6""")
    for i in range(4):
        a(f"s_waitcnt vmcnt({3-i + 2*i})")
        for j in range(4):
            r=8+4*i+j
            a(f"v_lshlrev_b32 v{24+2*j}, 16, v{r}\nv_and_b32 v{25+2*j}, s26, v{r}")
        for j in range(8): a(f"v_mul_f32 v{24+j}, v6, v{24+j}")
        for j in range(4): a(f"v_cvt_pk_bf16_f32 v{8+4*i+j}, v{24+2*j}, v{25+2*j}")
        for h in range(2):
            a(f"buffer_store_dwordx2 v[{8+4*i+2*h}:{9+4*i+2*h}], v5, s[20:23], s25 offen")
            if not (i==3 and h==1): a(f"s_add_u32 s25, s25, {GSTR}")
    a("s_endpgm")
    a(f"""K1_WEIGHTS:
      s_load_dwordx8 s[36:43], s[0:1], 32
      s_load_dwordx2 s[6:7], s[0:1], 64
      s_lshr_b32 s10, s3, 1
      s_and_b32 s11, s3, 1
      v_and_b32 v4, 15, v2
      v_lshrrev_b32 v5, 4, v2
      v_lshrrev_b32 v6, 2, v4
      v_and_b32 v7, 3, v4
      v_lshl_add_u32 v6, v6, 3, v7
      v_lshlrev_b32 v3, 8, v6
      v_lshl_add_u32 v3, v5, 4, v3
      s_lshr_b32 s12, s10, 1
      s_and_b32 s13, s10, 1
      s_lshl_b32 s12, s12, 5
      s_lshl_b32 s13, s13, 2
      s_add_u32 s12, s12, s13
      v_add_lshl_u32 v8, v6, s12, 2
      v_lshlrev_b32 v9, 5, v5
      s_lshl_b32 s14, s11, 8
      v_add_u32 v9, s14, v9
      v_lshlrev_b32 v10, 2, v0
      v_lshlrev_b32 v11, 4, v2
      s_lshl_b32 s15, s11, 14
      s_add_u32 s16, s15, 8192
      s_lshl_b32 s17, s12, 8
      s_waitcnt lgkmcnt(0)""")
    a.srd(20,8,9,69*1024,OFF_WF)
    A0=32; B0=16; ACC=96; T=32
    def loadA(srd):
        for i in range(4):
            so="s15" if i<2 else "s16"
            for s in range(4):
                a(f"buffer_load_dwordx4 v[{A0+16*i+4*s}:{A0+16*i+4*s+3}], v3, s[{srd}:{srd+3}], {so} offen offset:{(i&1)*1024+64*s}")
    def mfmas():
        for s in range(4):
            for i in range(4):
                c = "0" if s==0 else f"v[{ACC+4*i}:{ACC+4*i+3}]"
                a(f"v_mfma_f32_16x16x32_bf16 v[{ACC+4*i}:{ACC+4*i+3}], v[{A0+16*i+4*s}:{A0+16*i+4*s+3}], v[{B0+4*s}:{B0+4*s+3}], {c}")
        a("s_nop 7")
    def colsum():
        a(f"v_add_f32 v12, v{ACC}, v{ACC+1}")
        for i in range(2,16): a(f"v_add_f32 v12, v12, v{ACC+i}")
        a("ds_add_f32 v8, v12")
    def rowadd(src,off):
        a("s_mov_b32 exec_lo, 0x00010001\ns_mov_b32 exec_hi, 0x00010001")
        for i in range(4):
            for r in range(4):
                a(f"ds_add_f32 v9, v{src+4*i+r} offset:{off+((i>>1)*32+(i&1)*4+r)*4}")
        a("s_mov_b64 exec, -1")
    def packstore(fragbase):
        a(f"s_lshl_b32 s18, s10, 12\ns_lshl_b32 s19, s11, 11\ns_add_u32 s18, s18, s19\ns_add_u32 s18, s18, {fragbase*1024}")
        for c in range(2):
            for h in range(2):
                for p in range(2):
                    a(f"v_cvt_pk_bf16_f32 v{24+4*c+2*h+p}, v{ACC+8*c+4*h+2*p}, v{ACC+8*c+4*h+2*p+1}")
            a(f"buffer_store_dwordx4 v[{24+4*c}:{27+4*c}], v11, s[20:23], s18 offen offset:{1024*c}")
    a("s_cmp_eq_u32 s2, 199\ns_cbranch_scc1 K1_WV")
    a.srd(24,36,37,32768); a.srd(28,38,39,32768)
    for s in range(4): a(f"buffer_load_dwordx4 v[{B0+4*s}:{B0+4*s+3}], v3, s[28:31], s17 offen offset:{64*s}")
    loadA(24)
    a(f"""v_mov_b32 v12, 0
      v_mov_b32 v13, 0
      ds_write_b32 v10, v12
      v_lshlrev_b32 v14, 3, v0""")
    a.srd(28,8,9,8192,OFF_FLAG)
    a(f"""buffer_store_dwordx2 v[12:13], v14, s[28:31], 0 offen
      s_waitcnt lgkmcnt(0)
      s_barrier
      s_waitcnt vmcnt(1)""")
    mfmas(); colsum(); row16_reduce(a,ACC,T,16); rowadd(T,1536)
    a(f"""s_waitcnt lgkmcnt(0)
      s_barrier
      v_lshlrev_b32 v13, 2, v2
      ds_read_b32 v14, v13
      ds_read_b32 v15, v13 offset:256
      ds_read_b32 v12, v8""")
    for i in range(4): a(f"ds_read_b128 v[{T+4*i}:{T+4*i+3}], v9 offset:{1536+((i>>1)*32+(i&1)*4)*4}")
    a("s_waitcnt lgkmcnt(5)\nv_add_f32 v14, v14, v15")
    wave_scan_f32(a,14)
    kappa=128**-0.5*math.log2(math.e)
    a(f"""s_nop 1
      v_readlane_b32 s24, v14, 63
      s_mov_b32 s25, {f2u(1/128):#x}
      s_mov_b32 s26, {f2u(-1/128):#x}
      s_mov_b32 s27, {f2u(kappa):#x}
      s_waitcnt lgkmcnt(0)
      v_mov_b32 v13, s24
      v_fma_f32 v12, v13, s25, -v12
      v_mul_f32 v12, {f2u(kappa/128):#x}, v12""")
    for i in range(16): a(f"v_fma_f32 v{ACC+i}, v{T+i}, s26, v{ACC+i}")
    for i in range(16): a(f"v_fma_f32 v{ACC+i}, v{ACC+i}, s27, v12")
    packstore(0)
    a("s_endpgm")
    a("K1_WV:")
    st()
    a.srd(24,40,41,32768); a.srd(28,42,43,32768); a.srd(32,6,7,256)
    a(f"""v_lshlrev_b32 v14, 4, v0
      s_mov_b32 s18, 16384
      buffer_load_dwordx4 v[24:27], v14, s[28:31], 0 offen
      buffer_load_dwordx4 v[28:31], v14, s[28:31], s18 offen
      v_subrev_u32 v15, 256, v0
      v_lshlrev_b32 v15, 1, v15
      buffer_load_ushort v12, v15, s[32:35], 0 offen
      v_lshrrev_b32 v15, 1, v8
      buffer_load_ushort v112, v15, s[32:35], 0 offen""")
    loadA(24)
    a(f"""v_lshrrev_b32 v15, 7, v0
      v_cmp_eq_u32 vcc, 1, v15
      s_waitcnt vmcnt(17)
      v_lshlrev_b32 v12, 16, v12
      v_cndmask_b32 v12, v12, 1.0, vcc
      ds_write_b32 v10, v12
      ds_write_b128 v14, v[24:27] offset:4096
      ds_write_b128 v14, v[28:31] offset:20480
      v_lshrrev_b32 v15, 2, v4
      v_lshlrev_b32 v15, 8, v15
      v_lshl_add_u32 v15, v5, 11, v15
      v_lshl_add_u32 v15, v7, 4, v15
      s_lshl_b32 s19, s12, 1
      v_add_u32 v15, s19, v15
      s_waitcnt lgkmcnt(0)
      s_barrier""")
    st()
    for s in range(4):
        for h in range(2):
            a(f"ds_read_b64_tr_b16 v[{B0+4*s+2*h}:{B0+4*s+2*h+1}], v15 offset:{4096+8192*s+1024*h}")
    a("s_waitcnt vmcnt(0) lgkmcnt(0)\nv_lshlrev_b32 v112, 16, v112")
    st(); mfmas(); st(); colsum()
    a(f"""s_waitcnt lgkmcnt(0)
      s_barrier""")
    st()
    a(f"""ds_read_b32 v12, v8
      s_mov_b32 s26, {f2u(-1/128):#x}
      s_waitcnt lgkmcnt(0)""")
    for i in range(16): a(f"v_fma_f32 v{ACC+i}, v12, s26, v{ACC+i}")
    packstore(32)
    for i in range(16): a(f"v_mul_f32 v{64+i}, v112, v{ACC+i}")
    row16_reduce(a,ACC,T,16); row16_reduce(a,64,48,16)
    st(); rowadd(T,1536); rowadd(48,2048)
    a(f"""s_waitcnt lgkmcnt(0)
      s_barrier""")
    st(); st.dump(199,7)
    a(f"""
      s_cmp_ge_u32 s3, 5
      s_cbranch_scc1 K1_END
      s_cmp_eq_u32 s3, 4
      s_cbranch_scc1 K1_WSUM
      v_lshlrev_b32 v13, 9, v7
      v_lshl_add_u32 v13, v5, 5, v13
      s_lshl_b32 s18, s3, 7
      v_add_u32 v13, s18, v13
      ds_read_b128 v[16:19], v13 offset:512
      ds_read_b128 v[20:23], v13 offset:528
      s_lshl_b32 s18, s3, 10
      s_add_u32 s18, s18, 65536
      s_waitcnt lgkmcnt(0)
      v_cvt_pk_bf16_f32 v24, v16, v17
      v_cvt_pk_bf16_f32 v25, v18, v19
      v_cvt_pk_bf16_f32 v26, v20, v21
      v_cvt_pk_bf16_f32 v27, v22, v23
      buffer_store_dwordx4 v[24:27], v11, s[20:23], s18 offen
      s_endpgm
      K1_WSUM:
      v_lshlrev_b32 v13, 2, v2
      ds_read_b32 v14, v13 offset:1024
      ds_read_b32 v15, v13 offset:1280
      s_waitcnt lgkmcnt(0)
      v_add_f32 v14, v14, v15""")
    wave_scan_f32(a,14)
    a(f"""s_mov_b32 s18, {68*1024}
      buffer_store_dword v14, v13, s[20:23], s18 offen
      K1_END:
      s_endpgm""")
    return a.text(), desc(name,128,102 if STAMP else 64)
```

```python
from common import *
L_CNT=0
L_CNT2=2048
L_CUR2=4096
L_HIST=6144
L_RMAX=6400
L_OVF=6432
L_INFO=8192
L_STG=10240
K2_LDS=L_STG+12288
SENT=SLOT_ZERO|(SLOT_ZERO<<16)

def gen_k2(name):
    a=Asm(); a.l.append(head(name))
    a(f"""s_cmp_ge_u32 s2, {NBIN}
      s_cbranch_scc1 K2_END
      s_load_dwordx2 s[8:9], s[0:1], 88
      s_load_dwordx2 s[4:5], s[0:1], 24
      s_load_dwordx2 s[6:7], s[0:1], 80
      v_lshrrev_b32 v1, 6, v0
      v_and_b32 v2, 63, v0
      v_lshrrev_b32 v3, 5, v0
      v_readfirstlane_b32 s3, v1
      v_and_b32 v4, 31, v0
      s_mul_i32 s10, s2, 21846
      s_lshr_b32 s10, s10, 16
      s_mul_i32 s11, s10, 3
      s_sub_u32 s11, s2, s11
      v_mul_u32_u24 v5, {NBIN*4}, v3
      s_lshl_b32 s12, s2, 2
      v_lshlrev_b32 v6, 3, v0
      v_mov_b32 v8, 0
      v_mov_b32 v9, 0
      ds_write_b64 v6, v[8:9]
      v_mov_b32 v8, {SENT:#x}
      v_mov_b32 v9, v8
      v_mov_b32 v10, v8
      v_mov_b32 v11, v8
      v_lshlrev_b32 v7, 4, v0
      s_waitcnt lgkmcnt(0)""")
    a.srd(16,8,9,PW*NBIN*4,OFF_OFFS); a.srd(20,8,9,E*4,OFF_EDG); a.srd(24,4,5,N*2)
    for k in range(4):
        a(f"s_add_u32 s13, s12, {32*k*NBIN*4}\nbuffer_load_dword v{12+k}, v5, s[16:19], s13 offen")
    a(f"""s_mul_i32 s13, s10, 896
      v_lshl_add_u32 v16, v0, 1, s13
      buffer_load_ushort v16, v16, s[24:27], 0 offen
      v_cmp_gt_u32 vcc, 768, v0
      s_and_saveexec_b64 s[28:29], vcc
      s_cbranch_execz K2_NOSTG
      ds_write_b128 v7, v[8:11] offset:{L_STG}
      K2_NOSTG:
      s_mov_b64 exec, s[28:29]
      v_mul_u32_u24 v17, {PE*4}, v3
      v_lshl_add_u32 v17, v4, 2, v17
      v_mov_b32 v18, 1
      v_add_u32 v19, 32, v4
      s_mov_b32 s14, 0xffff""")
    for k in range(4):
        a(f"""s_waitcnt vmcnt({4-k+2*k})
          v_and_b32 v{20+k}, s14, v{12+k}
          v_lshrrev_b32 v{24+k}, 16, v{12+k}
          v_lshl_add_u32 v{20+k}, v{20+k}, 2, v17
          v_cmp_lt_u32 s[{30+2*k}:{31+2*k}], v4, v{24+k}
          v_cmp_lt_u32 s[{38+2*k}:{39+2*k}], v19, v{24+k}
          s_mov_b32 s13, {32*k*PE*4}
          buffer_load_dword v{28+k}, v{20+k}, s[20:23], s13 offen
          buffer_load_dword v{32+k}, v{20+k}, s[20:23], s13 offen offset:128""")
    a(f"""v_max_u32 v36, v24, v25
      v_max3_u32 v36, v36, v26, v27
      v_cmp_lt_u32 vcc, 64, v36
      s_waitcnt lgkmcnt(0)
      s_barrier
      s_mov_b64 s[46:47], vcc""")
    order=[0,4,1,5,2,6,3,7]
    for n,j in enumerate(order):
        a(f"""s_waitcnt vmcnt({7-n})
          s_mov_b64 exec, s[{30+2*j}:{31+2*j}]
          v_lshrrev_b32 v{36+j}, 14, v{28+j}
          v_and_b32 v{36+j}, 0x7fc, v{36+j}
          ds_add_rtn_u32 v{44+j}, v{36+j}, v18""")
    a("s_mov_b64 exec, -1")
    a(f"""s_cmp_eq_u64 s[46:47], 0
      s_cbranch_scc1 K2_NOSLOWA""")
    for k in range(4):
        a(f"""v_add_u32 v52, 64, v4
          v_add_u32 v53, 256, v{20+k}
          s_mov_b32 s13, {32*k*PE*4}
          K2_SA{k}:
          v_cmp_lt_u32 vcc, v52, v{24+k}
          s_and_saveexec_b64 s[48:49], vcc
          s_cbranch_execz K2_SA{k}_E
          buffer_load_dword v54, v53, s[20:23], s13 offen
          s_waitcnt vmcnt(0)
          v_lshrrev_b32 v54, 14, v54
          v_and_b32 v54, 0x7fc, v54
          ds_add_u32 v54, v18 offset:{L_CNT2}
          s_mov_b64 exec, s[48:49]
          v_add_u32 v52, 32, v52
          v_add_u32 v53, 128, v53
          s_branch K2_SA{k}
          K2_SA{k}_E:
          s_mov_b64 exec, s[48:49]""")
    a(f"""K2_NOSLOWA:
      s_waitcnt lgkmcnt(0)
      s_barrier
      s_cmp_ge_u32 s3, 7
      s_cbranch_scc1 K2_SKIP1
      v_lshlrev_b32 v52, 2, v0
      ds_read_b32 v53, v52
      ds_read_b32 v54, v52 offset:{L_CNT2}
      s_waitcnt lgkmcnt(0)
      v_add_u32 v53, v53, v54
      v_min_u32 v54, 63, v53
      v_lshlrev_b32 v54, 2, v54
      ds_add_rtn_u32 v55, v54, v18 offset:{L_HIST}
      s_waitcnt lgkmcnt(0)
      K2_SKIP1:
      s_barrier
      s_cmp_ge_u32 s3, 7
      s_cbranch_scc1 K2_SKIP2
      v_lshlrev_b32 v56, 2, v2
      ds_read_b32 v56, v56 offset:{L_HIST}
      s_waitcnt lgkmcnt(0)
      v_mov_b32 v57, v56""")
    wave_scan_u32(a,57)
    a(f"""v_sub_u32 v57, v57, v56
      ds_bpermute_b32 v57, v54, v57
      s_mov_b32 s15, 0x00451627
      s_mul_i32 s50, s10, 9363
      s_lshr_b32 s50, s50, 16
      s_mul_i32 s50, s50, 7
      s_sub_u32 s50, s10, s50
      s_mul_i32 s50, s50, 448
      s_add_u32 s50, s50, {SLOT_OUT}
      v_add_u32 v60, s50, v0
      s_waitcnt lgkmcnt(0)
      v_add_u32 v57, v57, v55
      v_lshrrev_b32 v58, 6, v57
      v_and_b32 v57, 63, v57
      v_lshlrev_b32 v59, 2, v58
      ds_max_u32 v59, v53 offset:{L_RMAX}
      v_lshlrev_b32 v61, 4, v57
      v_lshl_or_b32 v61, v59, 16, v61
      ds_write_b32 v52, v61 offset:{L_INFO}
      s_cmp_lg_u32 s11, 2
      s_cbranch_scc1 K2_NOSCALE""")
    a.srd(52,8,9,56*2048,OFF_SCALE)
    a(f"""v_lshrrev_b32 v62, v59, s15
      v_and_b32 v62, 15, v62
      v_lshlrev_b32 v62, 8, v62
      v_lshl_add_u32 v62, v57, 2, v62
      s_lshl_b32 s51, s10, 11
      v_lshlrev_b32 v16, 16, v16
      v_mul_f32 v16, v16, v16
      buffer_store_dword v16, v62, s[52:55], s51 offen
      K2_NOSCALE:
      s_waitcnt lgkmcnt(0)
      K2_SKIP2:
      s_barrier""")
    a(f"""v_and_b32 v52, 7, v2
      v_lshlrev_b32 v52, 2, v52
      ds_read_b32 v53, v52 offset:{L_RMAX}""")
    for j in range(8):
        a(f"s_mov_b64 exec, s[{30+2*j}:{31+2*j}]\nds_read_b32 v{36+j}, v{36+j} offset:{L_INFO}")
    a(f"""s_mov_b64 exec, -1
      s_waitcnt lgkmcnt(0)
      v_add_u32 v53, 2, v53
      v_lshrrev_b32 v53, 1, v53
      s_nop 0""")
    for r in range(7): a(f"v_readlane_b32 s{64+r}, v53, {r}")
    a(f"""s_nop 1
      s_mov_b32 s74, s70
      s_add_u32 s75, s74, s67
      s_add_u32 s76, s75, s65
      s_mov_b32 s77, s76
      s_mov_b32 s72, s76
      s_mov_b32 s82, s69
      s_add_u32 s83, s82, s68
      s_add_u32 s84, s83, s66
      s_add_u32 s85, s84, s64
      s_mov_b32 s80, s85
      s_mov_b32 s73, 0
      s_mov_b32 s81, 0
      s_mov_b32 s78, 0
      s_mov_b32 s86, 0
      s_mov_b32 s79, 0
      s_mov_b32 s87, 0""")
    for h,regs in ((72,(74,75,76)),(80,(82,83,84,85))):
        for e in regs:
            a(f"s_sub_u32 s13, s{e}, 1\ns_min_u32 s13, s13, 31\ns_bitset1_b32 s{h+1}, s13")
    a(f"""v_mov_b32 v54, 0
      s_lshl_b32 s13, s74, 1
      v_writelane_b32 v54, s13, 3
      s_lshl_b32 s13, s75, 1
      v_writelane_b32 v54, s13, 1
      s_mov_b32 s13, 0x80000000
      v_writelane_b32 v54, s13, 5
      s_lshl_b32 s13, s82, 1
      s_bitset1_b32 s13, 31
      v_writelane_b32 v54, s13, 4
      s_lshl_b32 s13, s83, 1
      s_bitset1_b32 s13, 31
      v_writelane_b32 v54, s13, 2
      s_lshl_b32 s13, s84, 1
      s_bitset1_b32 s13, 31
      v_writelane_b32 v54, s13, 0
      s_mov_b64 exec, 0xff
      ds_write_b32 v52, v54 offset:{L_OVF}
      s_mov_b64 exec, -1""")
    a.srd(56,8,9,OVF_SIZE,OFF_OVF)
    a(f"""s_max_u32 s13, s72, s80
      s_cmp_le_u32 s13, 24
      s_cbranch_scc1 K2_NOOVF""")
    a(f"""s_max_u32 s60, s72, 24
      s_sub_u32 s60, s60, 24
      s_lshl_b32 s60, s60, 8
      s_max_u32 s61, s80, 24
      s_sub_u32 s61, s61, 24
      s_lshl_b32 s61, s61, 8
      s_add_u32 s61, s61, s60
      s_cmp_lg_u32 s3, 0
      s_cbranch_scc1 K2_OV1
      s_mov_b64 exec, 1
      v_mov_b32 v58, s61
      v_mov_b32 v59, 0
      global_atomic_add v58, v59, v58, s[6:7] sc0 sc1
      s_waitcnt vmcnt(0)
      ds_write_b32 v59, v58 offset:{L_OVF+32}
      s_waitcnt lgkmcnt(0)
      s_mov_b64 exec, -1
      K2_OV1:
      s_barrier
      v_mov_b32 v59, 0
      ds_read_b32 v58, v59 offset:{L_OVF+32}
      s_waitcnt lgkmcnt(0)
      s_nop 0
      v_readfirstlane_b32 s78, v58
      v_lshlrev_b32 v59, 2, v0
      s_nop 3
      s_add_u32 s86, s78, s60
      K2_OVF_FILL:
      v_cmp_gt_u32 vcc, s61, v59
      s_and_saveexec_b64 s[48:49], vcc
      s_cbranch_execz K2_OVF_FILL_E
      buffer_store_dword v8, v59, s[56:59], s78 offen
      s_mov_b64 exec, s[48:49]
      v_add_u32 v59, 4096, v59
      s_branch K2_OVF_FILL
      K2_OVF_FILL_E:
      s_mov_b64 exec, s[48:49]
      s_waitcnt vmcnt(0) lgkmcnt(0)
      s_barrier
      K2_NOOVF:""")
    a(f"""s_cmp_lg_u32 s3, 8
      s_cbranch_scc1 K2_NOHDR""")
    a.srd(52,8,9,56*2*3*32,OFF_HDR)
    for i in range(16): a(f"v_writelane_b32 v55, s{72+i}, {i}")
    a(f"""v_and_b32 v57, 7, v2
      v_bfe_u32 v58, v2, 3, 1
      v_mul_u32_u24 v58, 96, v58
      v_lshl_add_u32 v57, v57, 2, v58
      s_mul_i32 s51, s10, 192
      s_lshl_b32 s62, s11, 5
      s_add_u32 s51, s51, s62
      s_mov_b64 exec, 0xffff
      buffer_store_dword v55, v57, s[52:55], s51 offen
      s_mov_b64 exec, -1
      K2_NOHDR:
      v_mov_b32 v62, s78
      v_mov_b32 v63, s86""")
    def place(ent,info,tb,rank,t0,t1,tag):
        a(f"""v_cmp_gt_i32 vcc, 0, v{tb}
          v_and_b32 v{tb}, 0x7fffffff, v{tb}
          v_and_b32 v{info}, 0xffff, v{info}
          v_add_u32 v{rank}, v{tb}, v{rank}
          v_cndmask_b32 v{t0}, 0, v56, vcc
          v_cndmask_b32 v{tb}, v62, v63, vcc
          v_lshrrev_b32 v{t1}, 3, v{rank}
          v_add_u32 v{t0}, v{t0}, v{info}
          v_lshl_add_u32 v{t0}, v{t1}, 10, v{t0}
          v_and_b32 v{t1}, 7, v{rank}
          v_cmp_gt_u32 vcc, 48, v{rank}
          v_lshl_add_u32 v{t0}, v{t1}, 1, v{t0}
          s_and_saveexec_b64 s[48:49], vcc
          ds_write_b16 v{t0}, v{ent} offset:{L_STG}
          s_andn2_b64 exec, s[48:49], exec
          s_cbranch_execz K2_PL_{tag}
          v_subrev_u32 v{rank}, 48, v{rank}
          v_lshrrev_b32 v{t1}, 1, v{rank}
          v_and_b32 v{rank}, 1, v{rank}
          v_lshrrev_b32 v{info}, 2, v{info}
          v_lshl_add_u32 v{t0}, v{t1}, 8, v{tb}
          v_add_u32 v{t0}, v{t0}, v{info}
          v_lshl_add_u32 v{t0}, v{rank}, 1, v{t0}
          buffer_store_short v{ent}, v{t0}, s[56:59], 0 offen
          K2_PL_{tag}:""")
    a("v_mov_b32 v56, 6144\ns_waitcnt lgkmcnt(0)")
    TBR=[12,13,14,15,5,6,17,19]
    for j in range(8):
        a(f"s_mov_b64 exec, s[{30+2*j}:{31+2*j}]\nv_lshrrev_b32 v{TBR[j]}, 16, v{36+j}\nv_add_u32 v{44+j}, 1, v{44+j}\nds_read_b32 v{TBR[j]}, v{TBR[j]} offset:{L_OVF}")
    a(f"""s_mov_b64 exec, -1
      s_cmp_ge_u32 s3, 7
      s_cbranch_scc1 K2_PL_N
      v_lshrrev_b32 v59, 16, v61
      ds_read_b32 v59, v59 offset:{L_OVF}
      v_mov_b32 v55, 0
      s_waitcnt lgkmcnt(0)""")
    place(60,61,59,55,57,58,"N")
    a("s_waitcnt lgkmcnt(0)")
    for j in range(8):
        a(f"s_mov_b64 exec, s[{30+2*j}:{31+2*j}]")
        if j>=4: a(f"s_cbranch_execz K2_PL_{j}")
        place(28+j,36+j,TBR[j],44+j,57,58,str(j))
    a(f"""s_mov_b64 exec, -1
      s_cmp_eq_u64 s[46:47], 0
      s_cbranch_scc1 K2_NOSLOWB""")
    for k in range(4):
        a(f"""v_add_u32 v52, 64, v4
          v_add_u32 v53, 256, v{20+k}
          s_mov_b32 s13, {32*k*PE*4}
          K2_SB{k}:
          v_cmp_lt_u32 vcc, v52, v{24+k}
          s_and_saveexec_b64 s[62:63], vcc
          s_cbranch_execz K2_SB{k}_E
          buffer_load_dword v28, v53, s[20:23], s13 offen
          s_waitcnt vmcnt(0)
          v_lshrrev_b32 v54, 14, v28
          v_and_b32 v54, 0x7fc, v54
          ds_add_rtn_u32 v44, v54, v18 offset:{L_CUR2}
          ds_read_b32 v45, v54
          ds_read_b32 v36, v54 offset:{L_INFO}
          s_waitcnt lgkmcnt(0)
          v_add3_u32 v44, v44, v45, 1
          v_lshrrev_b32 v59, 16, v36
          ds_read_b32 v59, v59 offset:{L_OVF}
          s_waitcnt lgkmcnt(0)""")
        place(28,36,59,44,57,58,f"S{k}")
        a(f"""s_mov_b64 exec, s[62:63]
          v_add_u32 v52, 32, v52
          v_add_u32 v53, 128, v53
          s_branch K2_SB{k}
          K2_SB{k}_E:
          s_mov_b64 exec, s[62:63]""")
    a(f"""K2_NOSLOWB:
      s_waitcnt lgkmcnt(0)
      s_barrier
      s_cmp_ge_u32 s3, 12
      s_cbranch_scc1 K2_END
      ds_read_b128 v[8:11], v7 offset:{L_STG}""")
    a.srd(52,8,9,56*2*3*6144,OFF_BLOB)
    a(f"""s_mul_i32 s51, s10, {2*3*6144}
      s_mul_i32 s62, s11, 6144
      s_add_u32 s51, s51, s62
      s_cmp_ge_u32 s3, 6
      s_cselect_b32 s62, {2*6144}, 0
      s_add_u32 s51, s51, s62
      s_waitcnt lgkmcnt(0)
      buffer_store_dwordx4 v[8:11], v7, s[52:55], s51 offen
      K2_END:
      s_endpgm""")
    return a.text(), desc(name,64,96)
```

```python
from common import *
K3_LDS=163840
NHOP=7
V_IDX=8
V_SC=80
DPT=int(os.environ.get("DPT",4))
V_B=84
V_ACC=108
V_A=112
V_PK=116
V_D=118
V_L16=119
V_T=120
V_W=124
S_WAVE=3
S_TAB=12
S_OUT=16
S_BLOB=20
S_OVF=24
S_FLAG=28
S_HDR=32
S_HOP=56
S_T=57
SPIN=200000

def gen_k3(name,nhop=NHOP):
    a=Asm(); a.l.append(head(name))
    a(f"""s_cmp_ge_u32 s2, 256
      s_cbranch_scc1 K3_END
      s_load_dwordx2 s[8:9], s[0:1], 88
      v_lshrrev_b32 v1, 6, v0
      v_and_b32 v2, 63, v0
      s_and_b32 s4, s2, 7
      v_readfirstlane_b32 s3, v1
      s_lshr_b32 s5, s2, 6
      s_lshl_b32 s5, s5, 3
      s_add_u32 s4, s4, s5
      s_bfe_u32 s5, s2, 0x30003
      v_lshlrev_b32 v{V_L16}, 4, v2
      s_mul_i32 s6, s4, {GSTR}
      s_mul_i32 s7, s5, 25088
      s_waitcnt lgkmcnt(0)
      s_add_u32 s{S_TAB}, s8, s6
      s_addc_u32 s{S_TAB+1}, s9, 0
      s_mov_b32 s{S_TAB+2}, {GSTR}
      s_mov_b32 s{S_TAB+3}, 0x20000""")
    def first_fill():
        a(f"""s_lshl_b32 s{S_T}, s3, 12
          s_mov_b32 m0, s{S_T}
          s_nop 0""")
        for i in range(4): a(f"buffer_load_dwordx4 v{V_L16}, s[{S_TAB}:{S_TAB+3}], s{S_T} offen offset:{1024*i} sc1 lds")
        l=a.label("FF")
        a(f"""s_cmp_lt_u32 s3, 14
          s_cbranch_scc1 {l}
          s_lshl_b32 s{S_T}, s3, 10
          s_add_u32 s{S_T}, s{S_T}, {50*1024}
          s_mov_b32 m0, s{S_T}
          s_nop 0
          buffer_load_dwordx4 v{V_L16}, s[{S_TAB}:{S_TAB+3}], s{S_T} offen sc1 lds
          {l}:""")
    first_fill()
    a(f"""s_add_u32 s{S_OUT}, s{S_TAB}, s7
      s_addc_u32 s{S_OUT+1}, s{S_TAB+1}, 0
      s_add_u32 s{S_OUT}, s{S_OUT}, {TSTR}
      s_addc_u32 s{S_OUT+1}, s{S_OUT+1}, 0
      s_mov_b32 s{S_OUT+2}, 25088
      s_mov_b32 s{S_OUT+3}, 0x20000
      s_lshl_b32 s6, s4, 8
      s_add_u32 s{S_FLAG}, s8, s6
      s_addc_u32 s{S_FLAG+1}, s9, 0
      s_add_u32 s{S_FLAG}, s{S_FLAG}, {OFF_FLAG:#x}
      s_addc_u32 s{S_FLAG+1}, s{S_FLAG+1}, 0
      s_mov_b32 s{S_FLAG+2}, 32
      s_mov_b32 s{S_FLAG+3}, 0x20000
      s_mov_b32 s{S_HOP}, 0
      v_mov_b32 v4, 0
      v_mov_b32 v5, 0
      v_mov_b32 v6, 0
      v_mov_b32 v7, 0
      s_lshl_b32 s{S_T}, s3, 10
      s_add_u32 s{S_T}, s{S_T}, {LDS_OUT}
      v_add_u32 v3, s{S_T}, v{V_L16}
      ds_write_b128 v3, v[4:7]
      s_cmp_ge_u32 s3, 9
      s_cbranch_scc1 K3_Z1
      ds_write_b128 v3, v[4:7] offset:16384
      K3_Z1:
      s_cmp_ge_u32 s3, 14
      s_cbranch_scc1 K3_HELPER""")
    a(f"""s_mul_i32 s6, s5, 14
      s_add_u32 s6, s6, s3
      s_mul_i32 s7, s6, 96
      s_add_u32 s10, s8, s7
      s_addc_u32 s11, s9, 0
      s_add_u32 s10, s10, {OFF_HDR:#x}
      s_addc_u32 s11, s11, 0
      s_load_dwordx8 s[{S_HDR}:{S_HDR+7}], s[10:11], 0
      s_load_dwordx16 s[{S_HDR+8}:{S_HDR+23}], s[10:11], 32
      s_mul_i32 s7, s6, {3*6144}
      s_add_u32 s{S_BLOB}, s8, s7
      s_addc_u32 s{S_BLOB+1}, s9, 0
      s_add_u32 s{S_BLOB}, s{S_BLOB}, {OFF_BLOB:#x}
      s_addc_u32 s{S_BLOB+1}, s{S_BLOB+1}, 0
      s_mov_b32 s{S_BLOB+2}, {3*6144}
      s_mov_b32 s{S_BLOB+3}, 0x20000""")
    a.srd(S_OVF,8,9,OVF_SIZE,OFF_OVF)
    a(f"""v_and_b32 v3, 15, v2
      v_lshrrev_b32 v1, 4, v2
      v_lshlrev_b32 v1, 2, v1
      v_sub_u32 v3, v3, v1
      v_mov_b32 v0, 0x3f80
      v_mov_b32 v1, 0x3f800000
      v_cmp_eq_u32 s[58:59], 0, v3
      v_cmp_eq_u32 s[60:61], 1, v3
      v_cmp_eq_u32 s[62:63], 2, v3
      v_cmp_eq_u32 vcc, 3, v3
      v_cndmask_b32 v{V_A}, 0, v0, s[58:59]
      v_cndmask_b32 v{V_A+1}, 0, v0, s[62:63]
      v_cndmask_b32 v{V_A}, v{V_A}, v1, s[60:61]
      v_cndmask_b32 v{V_A+1}, v{V_A+1}, v1, vcc
      v_mov_b32 v{V_A+2}, v{V_A}
      v_mov_b32 v{V_A+3}, v{V_A+1}
      v_lshlrev_b32 v{V_T}, 2, v2
      s_waitcnt lgkmcnt(0)""")
    def load_blob(p):
        H=S_HDR+8*p
        for u in range(6):
            off=p*6144+u*1024
            if u>0: a(f"s_cmp_gt_u32 s{H}, {4*u}\ns_cselect_b32 s{S_T}, {off}, 0x40000000")
            else: a(f"s_mov_b32 s{S_T}, {off}")
            r=V_IDX+24*p+4*u
            a(f"buffer_load_dwordx4 v[{r}:{r+3}], v{V_L16}, s[{S_BLOB}:{S_BLOB+3}], s{S_T} offen")
    load_blob(0)
    a("s_waitcnt vmcnt(0) lgkmcnt(0)\ns_barrier")
    load_blob(1); load_blob(2)
    a(f"""s_lshl_b32 s7, s6, 10
      s_add_u32 s60, s8, s7
      s_addc_u32 s61, s9, 0
      s_add_u32 s60, s60, {OFF_SCALE:#x}
      s_addc_u32 s61, s61, 0
      s_mov_b32 s62, 1024
      s_mov_b32 s63, 0x20000""")
    for s in range(4): a(f"buffer_load_dword v{V_SC+s}, v{V_T}, s[60:63], 0 offen offset:{256*s}")
    a("K3_GLOOP:")
    st=Stamper(a,"k3" in STAMP); st()
    NB=DPT+1
    def mf(b):
        if "nomfma" in os.environ.get("K3X",""): return
        a(f"v_mfma_f32_16x16x32_bf16 v[{V_ACC}:{V_ACC+3}], v[{V_A}:{V_A+3}], v[{V_B+4*b}:{V_B+4*b+3}], v[{V_ACC}:{V_ACC+3}]")
    def sd(d,ireg,w): a(f"v_lshlrev_b32_sdwa v{d}, 3, v{ireg} dst_sel:DWORD dst_unused:UNUSED_PAD src0_sel:DWORD src1_sel:WORD_{w}")
    def issue(ireg,bi):
        b=V_B+4*bi
        X=os.environ.get("K3X","")
        sd(b,ireg,0); sd(b+2,ireg,1)
        if "noread" in X: return
        if "lin" in X:
            a(f"ds_read_b64 v[{b}:{b+1}], v{V_T+2}\nds_read_b64 v[{b+2}:{b+3}], v{V_T+2}"); return
        a(f"ds_read_b64 v[{b}:{b+1}], v{b}\nds_read_b64 v[{b+2}:{b+3}], v{b+2}")
    def flush(p):
        a("s_nop 7")
        if p==2:
            for i in range(4): a(f"v_mul_f32 v{V_ACC+i}, v{V_W}, v{V_ACC+i}")
        a(f"""v_cvt_pk_bf16_f32 v{V_PK}, v{V_ACC}, v{V_ACC+1}
          v_cvt_pk_bf16_f32 v{V_PK+1}, v{V_ACC+2}, v{V_ACC+3}
          ds_write_b64 v{V_D}, v[{V_PK}:{V_PK+1}]""")
        for i in range(4): a(f"v_mov_b32 v{V_ACC+i}, 0")
        if p==2:
            for i in range(3): a(f"v_mov_b32 v{V_W+i}, v{V_W+i+1}")
    for p in range(3):
        H=S_HDR+8*p; I=V_IDX+24*p
        if "lin" in os.environ.get("K3X",""): a(f"v_lshlrev_b32 v{V_T+2}, 1, v{V_T}")
        if p==2 and "fine" in os.environ.get("K3X",""): a(f"s_memtime s[72:73]")
        if os.environ.get("PRIO",""): a("s_setprio 3")
        for j in range(DPT): issue(I+j,j%NB)
        sd(V_D,I,0)
        for i in range(4): a(f"v_mov_b32 v{V_ACC+i}, 0")
        if p==2:
            for i in range(4): a(f"v_mov_b32 v{V_W+i}, v{V_SC+i}")
        for j in range(24):
            PR=os.environ.get("PRIO","")
            if PR:
                st_=int(PR)
                if j in (st_,2*st_,3*st_): a(f"s_setprio {3-j//st_}")
            if j+DPT<24:
                a(f"s_cmp_le_u32 s{H}, {j+DPT}\ns_cbranch_scc1 K3_DR{p}_{j}")
                issue(I+j+DPT,(j+DPT)%NB)
                a(f"s_waitcnt lgkmcnt({2*DPT})\nK3_MF{p}_{j}:")
            else:
                a(f"s_waitcnt lgkmcnt({2*(23-j)})")
            mf(j%NB)
            if p==2 and "fine" in os.environ.get("K3X","") and j<13: a(f"s_memtime s[{74+2*j}:{75+2*j}]")
            a(f"s_bitcmp1_b32 s{H+1}, {j}\ns_cbranch_scc1 K3_FL{p}_{j}\nK3_RT{p}_{j}:")
        a(f"""s_mov_b32 s{S_T+1}, 0
          K3_OVE{p}:
          s_mov_b32 s{S_T}, s{H+6}
          s_mov_b32 s{S_T+2}, 24
          K3_OV{p}:
          buffer_load_dword v{V_T+1}, v{V_T}, s[{S_OVF}:{S_OVF+3}], s{S_T} offen
          s_add_u32 s{S_T}, s{S_T}, 256
          s_add_u32 s{S_T+2}, s{S_T+2}, 1
          s_waitcnt vmcnt(0)
          s_cmp_eq_u32 s{S_T+1}, 0
          s_cbranch_scc1 K3_OVN{p}""")
        sd(V_D,V_T+1,0)
        a(f"s_mov_b32 s{S_T+1}, 0\nK3_OVN{p}:")
        issue(V_T+1,0)
        a("s_waitcnt lgkmcnt(0)"); mf(0)
        for e in range(4): a(f"s_cmp_eq_u32 s{S_T+2}, s{H+2+e}\ns_cbranch_scc1 K3_OVF{p}")
        a(f"s_branch K3_OV{p}\nK3_OVF{p}:")
        flush(p)
        a(f"""s_mov_b32 s{S_T+1}, 1
          s_cmp_lt_u32 s{S_T+2}, s{H}
          s_cbranch_scc1 K3_OV{p}
          s_branch K3_PE{p}""")
        for j in range(24):
            if j+DPT<24: a(f"K3_DR{p}_{j}:\ns_waitcnt lgkmcnt(0)\ns_branch K3_MF{p}_{j}")
        for j in range(24):
            a(f"K3_FL{p}_{j}:"); flush(p)
            if j<23:
                sd(V_D,I+j+1,0)
                a(f"s_cmp_lg_u32 s{H}, {j+1}\ns_cbranch_scc1 K3_RT{p}_{j}\ns_branch K3_PE{p}")
            else:
                a(f"s_mov_b32 s{S_T+1}, 1\ns_cmp_lg_u32 s{H}, 24\ns_cbranch_scc1 K3_OVE{p}")
        a(f"K3_PE{p}:")
        a("s_waitcnt vmcnt(0) lgkmcnt(0)"); st(); a("s_barrier"); st()
    def readout(st):
        l=a.label("RO")
        a(f"""s_lshl_b32 s{S_T}, s3, 10
          v_add_u32 v{V_T+2}, s{S_T}, v{V_L16}
          v_add_u32 v{V_T+3}, {LDS_OUT}, v{V_T+2}
          ds_read_b128 v[{V_B}:{V_B+3}], v{V_T+3}
          s_cmp_ge_u32 s3, 9
          s_cbranch_scc1 {l}
          ds_read_b128 v[{V_B+4}:{V_B+7}], v{V_T+3} offset:16384
          s_mov_b32 s{S_T+1}, 16384
          s_waitcnt lgkmcnt(0)
          buffer_store_dwordx4 v[{V_B+4}:{V_B+7}], v{V_T+2}, s[{S_OUT}:{S_OUT+3}], s{S_T+1} offen sc1
          ds_write_b128 v{V_T+3}, v[4:7] offset:16384
          {l}:
          s_waitcnt lgkmcnt(0)
          buffer_store_dwordx4 v[{V_B}:{V_B+3}], v{V_T+2}, s[{S_OUT}:{S_OUT+3}], 0 offen sc1
          ds_write_b128 v{V_T+3}, v[4:7]
          s_add_u32 s{S_HOP}, s{S_HOP}, 1
          s_cmp_eq_u32 s{S_HOP}, {nhop}
          s_cbranch_scc1 K3_END
          s_add_u32 s{S_TAB}, s{S_TAB}, {TSTR}
          s_addc_u32 s{S_TAB+1}, s{S_TAB+1}, 0
          s_add_u32 s{S_OUT}, s{S_OUT}, {TSTR}
          s_addc_u32 s{S_OUT+1}, s{S_OUT+1}, 0
          """)
        st(); a("s_waitcnt vmcnt(0) lgkmcnt(0)"); st(); a("s_barrier"); st()
    readout(st)
    a("s_barrier"); st()
    first_fill()
    a("s_waitcnt vmcnt(0)"); st(); a("s_barrier"); st()
    if st.on:
        a(f"s_cmp_lg_u32 s{S_HOP}, 5\ns_cbranch_scc1 K3_GLOOP\ns_waitcnt lgkmcnt(0)")
        st.dump(77,0,0); st.dump(77,13,16); a("s_mov_b64 exec, -1")
    a("s_branch K3_GLOOP")
    a(f"""K3_HELPER:
      v_and_b32 v11, 7, v2
      v_lshlrev_b32 v11, 2, v11
      s_lshl_b32 s6, s5, 2
      v_mov_b32 v8, s6
      s_waitcnt vmcnt(0) lgkmcnt(0)
      s_barrier
      K3_HLOOP:""")
    st=Stamper(a,"k3" in STAMP); st()
    def hidden_fill(goff,loff):
        a(f"""s_sub_u32 s{S_T}, s3, 14
          s_lshl_b32 s{S_T}, s{S_T}, 15
          s_add_u32 s{S_T+1}, s{S_T}, {loff}
          s_add_u32 s{S_T}, s{S_T}, {goff}""")
        for g in range(8):
            a(f"s_mov_b32 m0, s{S_T+1}\ns_add_u32 s{S_T+1}, s{S_T+1}, 4096")
            for i in range(4): a(f"buffer_load_dwordx4 v{V_L16}, s[{S_TAB}:{S_TAB+3}], s{S_T} offen offset:{1024*i} sc1 lds")
            a(f"s_add_u32 s{S_T}, s{S_T}, 4096")
        l=a.label("HF")
        a(f"""s_cmp_lg_u32 s3, 14
          s_cbranch_scc1 {l}
          s_mov_b32 m0, {loff+65536}
          s_mov_b32 s{S_T}, {goff+65536}
          buffer_load_dwordx4 v{V_L16}, s[{S_TAB}:{S_TAB+3}], s{S_T} offen sc1 lds
          {l}:""")
        st(); a("s_waitcnt vmcnt(0)"); st(); a("s_barrier"); st()
    hidden_fill(LDS_T1,LDS_T1)
    hidden_fill(TH2*8,0)
    a("s_barrier"); st()
    readout(st)
    a(f"""s_cmp_lg_u32 s3, 15
      s_cbranch_scc1 K3_NOPOLL
      v_mov_b32 v9, s{S_HOP}
      s_mov_b64 exec, 1
      buffer_store_dword v9, v8, s[{S_FLAG}:{S_FLAG+3}], 0 offen sc1
      s_mov_b64 exec, -1
      s_mov_b32 s{S_T}, {SPIN}
      K3_POLL:
      buffer_load_dword v10, v11, s[{S_FLAG}:{S_FLAG+3}], 0 offen sc1
      s_sub_u32 s{S_T}, s{S_T}, 1
      s_cmp_eq_u32 s{S_T}, 0
      s_cbranch_scc1 K3_POLLX
      s_waitcnt vmcnt(0)
      v_cmp_gt_u32 vcc, v9, v10
      s_nop 0
      s_cbranch_vccnz K3_POLL
      K3_POLLX:
      s_waitcnt vmcnt(0)
      K3_NOPOLL:""")
    st(); a("s_barrier")
    first_fill()
    a("s_waitcnt vmcnt(0)"); st(); a("s_barrier"); st()
    if st.on:
        a(f"s_cmp_lg_u32 s{S_HOP}, 5\ns_cbranch_scc1 K3_HLOOP\ns_waitcnt lgkmcnt(0)")
        st.dump(77,15,32); a("s_mov_b64 exec, -1")
    a("s_branch K3_HLOOP")
    a("K3_END:\ns_endpgm")
    return a.text(), desc(name,128,102 if STAMP else 72)
```

```python
from common import *
from sched import *
from k1 import f2u
import math
TOK=69632
K4_LDS=TOK+65536
GP=[0,26]; VX=[52,92]; UP=[132,148]; WR=164; ACC=[180,188]; MI=[196,214]
vW,vW2=232,233; TB=[234,235]; TR=[236,237]; vAL,vX32,vVM,vDMA,vXG,vXL,vDI,vOUT=238,239,240,241,242,243,244,245
DN=[246,247]; X4=248; vWS=252; vC128=253; vEPS=254; vL2E=255
S_G=12; S_X=16; S_D=20; S_O=24; S_WF=28
S_N0=32
def chunk(t,c): return GP[t]+2+6*c
def Pc(t,i): return GP[t]+6*i
def gE(t,b): return VX[t]+10*(b>>1)+(0 if b%2==0 else 8)
def VP(t,b): return VX[t]+10*(b>>1)+(2 if b%2==0 else 6)
def SEL(t,q): return VX[t]+10*q+4

def body(NT):
    B=Block(); T=range(NT)
    XT=lambda t:MI[t]; EP=lambda t:MI[t]+4; AL=lambda t:MI[t]+8; O2=lambda t:MI[t]+12; AK=lambda t:MI[t]+14; D=lambda t:MI[t]+15; DE=lambda t:MI[t]+16; TM=lambda t:MI[t]+17
    A0=lambda t:ACC[t]; A1=lambda t:ACC[t]+4
    nfr=[0]
    def frag(f):
        r=WR+4*(nfr[0]%4); nfr[0]+=1
        if f<64: B.add(f"ds_read_b128 v[{r}:{r+3}], v{vW} offset:{f*1024}","ds",R(vW),R(r,4))
        else: B.add(f"ds_read_b128 v[{r}:{r+3}], v{vW2} offset:{(f-64)*1024}","ds",R(vW2),R(r,4))
        return r
    def v(text,wr,rd,kind="valu",dpp=()): B.v(text,[f"v{x}" for x in wr],[f"v{x}" for x in rd],kind,[f"v{x}" for x in dpp])
    def swz16(d,s): B.add(f"ds_swizzle_b32 v{d}, v{s} offset:0x401F","ds",R(s),R(d))
    def bperm(d,a,s,off=0): B.add(f"ds_bpermute_b32 v{d}, v{a}, v{s}"+(f" offset:{off}" if off else ""),"ds",R(a)+R(s),R(d))
    def dpp(op,d,s0,s1,ctl): v(f"{op}_dpp v{d}, v{s0}, v{s1} {ctl} row_mask:0xf bank_mask:0xf",[d],[s0,s1],"dpp",[s0])
    def xg_reduce(x,tmp):
        swz16(tmp,x); v(f"v_add_f32 v{x}, v{x}, v{tmp}",[x],[x,tmp])
        bperm(tmp,vX32,x); v(f"v_add_f32 v{x}, v{x}, v{tmp}",[x],[x,tmp])
    for c in range(4):
        r=frag(64+c)
        for t in T: B.mfma(XT(t),r,chunk(t,c),None if c==0 else XT(t))
        for t in T: B.mfma(A1(t),chunk(t,c),r,None if c==0 else A1(t))
    for t in T:
        v(f"v_cvt_pk_bf16_f32 v{EP(t)}, v{A1(t)}, v{A1(t)+1}",[EP(t)],[A1(t),A1(t)+1])
        v(f"v_cvt_pk_bf16_f32 v{EP(t)+1}, v{A1(t)+2}, v{A1(t)+3}",[EP(t)+1],[A1(t)+2,A1(t)+3])
    for t in T:
        s2=O2(t); s2b=O2(t)+1
        for c in range(4):
            for i in range(4):
                g=chunk(t,c)+i; acc=s2 if i%2==0 else s2b
                if c==0 and i<2: v(f"v_mov_b32 v{acc}, 0",[acc],[])
                v(f"v_dot2c_f32_bf16 v{acc}, v{g}, v{g}",[acc],[acc,g],"dot")
        v(f"v_add_f32 v{s2}, v{s2}, v{s2b}",[s2],[s2,s2b])
        xg_reduce(s2,s2b)
        mu=TM(t)
        v(f"v_mul_f32 v{mu}, v{vC128}, v{XT(t)}",[mu],[vC128,XT(t)])
        v(f"v_mul_f32 v{DE(t)}, v{D(t)}, v{D(t)}",[DE(t)],[D(t)])
        v(f"v_mul_f32 v{DE(t)}, v{vEPS}, v{DE(t)}",[DE(t)],[vEPS,DE(t)])
        v(f"v_fma_f32 v{s2b}, -v{mu}, v{mu}, v{DE(t)}",[s2b],[mu,DE(t)])
        v(f"v_fmac_f32 v{s2b}, v{vC128}, v{s2}",[s2b],[s2b,vC128,s2])
        v(f"v_max_f32 v{s2b}, v{s2b}, v{DE(t)}",[s2b],[s2b,DE(t)])
        v(f"v_rsq_f32 v{AK(t)}, v{s2b}",[AK(t)],[s2b],"trans")
        v(f"v_and_b32 v{mu}, 0x80000000, v{D(t)}",[mu],[D(t)])
        v(f"v_or_b32 v{AK(t)}, v{AK(t)}, v{mu}",[AK(t)],[AK(t),mu])
        for r in range(4): bperm(AL(t)+r,vAL,AK(t),4*r)
    for b in range(8):
        for c in range(4):
            r=frag(b*4+c)
            for t in T:
                a=ACC[t]+4*(b&1); B.mfma(a,r,chunk(t,c),None if c==0 else a)
        for t in T:
            a=ACC[t]+4*(b&1); u=UP[t]+2*b
            v(f"v_cvt_pk_bf16_f32 v{u}, v{a}, v{a+1}",[u],[a,a+1]); v(f"v_cvt_pk_bf16_f32 v{u+1}, v{a+2}, v{a+3}",[u+1],[a+2,a+3])
    for c in range(4):
        for t in T: B.mfma(A0(t),chunk(t,c),UP[t]+4*c,None if c==0 else A0(t))
    for t in T:
        S=A0(t); W=A1(t); m=O2(t); m2=O2(t)+1
        for r in range(4): v(f"v_mul_f32 v{W+r}, v{AK(t)}, v{AL(t)+r}",[W+r],[AK(t),AL(t)+r])
        for r in range(4): v(f"v_mul_f32 v{S+r}, v{S+r}, v{W+r}",[S+r],[S+r,W+r])
        v(f"v_max3_f32 v{m}, v{S}, v{S+1}, v{S+2}",[m],[S,S+1,S+2]); v(f"v_max_f32 v{m}, v{m}, v{S+3}",[m],[m,S+3])
        swz16(m2,m); v(f"v_max_f32 v{m}, v{m}, v{m2}",[m],[m,m2])
        for r in range(4): v(f"v_sub_f32 v{S+r}, v{S+r}, v{m}",[S+r],[S+r,m])
        for r in range(4): v(f"v_exp_f32 v{S+r}, v{S+r}",[S+r],[S+r],"trans")
        v(f"v_add_f32 v{m}, v{S}, v{S+1}",[m],[S,S+1]); v(f"v_add_f32 v{m2}, v{S+2}, v{S+3}",[m2],[S+2,S+3]); v(f"v_add_f32 v{m}, v{m}, v{m2}",[m],[m,m2])
        swz16(m2,m); v(f"v_add_f32 v{m}, v{m}, v{m2}",[m],[m,m2])
        v(f"v_rcp_f32 v{m}, v{m}",[m],[m],"trans")
        v(f"v_mul_f32 v{m}, v{m}, v{D(t)}",[m],[m,D(t)]); v(f"v_and_b32 v{m}, v{m}, v{vVM}",[m],[m,vVM])
        for r in range(4): v(f"v_mul_f32 v{W+r}, v{m}, v{AL(t)+r}",[W+r],[m,AL(t)+r])
        for r in range(4): v(f"v_mul_f32 v{S+r}, v{S+r}, v{W+r}",[S+r],[S+r,W+r])
        v(f"v_cvt_pk_bf16_f32 v{Pc(t,0)}, v{S}, v{S+1}",[Pc(t,0)],[S,S+1]); v(f"v_cvt_pk_bf16_f32 v{Pc(t,0)+1}, v{S+2}, v{S+3}",[Pc(t,0)+1],[S+2,S+3])
        for i in range(1,5):
            for h in range(2): v(f"v_mov_b32 v{Pc(t,i)+h}, v{Pc(t,0)+h}",[Pc(t,i)+h],[Pc(t,0)+h])
    for b in range(8):
        for c in range(4):
            r=frag(32+b*4+c)
            for t in T:
                a=UP[t]+4*(b&3); B.mfma(a,chunk(t,c),r,None if c==0 else a)
        for t in T:
            a=UP[t]+4*(b&3); u=VP(t,b)
            v(f"v_cvt_pk_bf16_f32 v{u}, v{a}, v{a+1}",[u],[a,a+1]); v(f"v_cvt_pk_bf16_f32 v{u+1}, v{a+2}, v{a+3}",[u+1],[a+2,a+3])
    for t in T: B.mfma(A1(t),EP(t),Pc(t,0),None)
    for b in range(8):
        for t in T:
            a=UP[t]+4*(b&3)
            if b%2==0: B.mfma(a,VP(t,b),Pc(t,b>>1),None)
            else: B.mfma(a,SEL(t,b>>1),chunk(t,b>>1)+2,None)
        for t in T:
            a=UP[t]+4*(b&3); o=O2(t)
            for h in range(2):
                if b==0 and h==0: v(f"v_pk_mul_f32 v[{o}:{o+1}], v[{a}:{a+1}], v[{a}:{a+1}]",[o,o+1],[a,a+1])
                else: v(f"v_pk_fma_f32 v[{o}:{o+1}], v[{a+2*h}:{a+2*h+1}], v[{a+2*h}:{a+2*h+1}], v[{o}:{o+1}]",[o,o+1],[o,o+1,a+2*h,a+2*h+1])
    for t in T:
        o=O2(t); o1=o+1; x=XT(t); S=A0(t); BG=UP[t]+8; mu=x; lg=x+1; t2=x+2; t3=x+3
        v(f"v_add_f32 v{o}, v{o}, v{o1}",[o],[o,o1]); xg_reduce(o,o1)
        v(f"v_add_f32 v{mu}, v{x}, v{A1(t)+2}",[mu],[x,A1(t)+2]); v(f"v_add_f32 v{lg}, v{x+1}, v{A1(t)+3}",[lg],[x+1,A1(t)+3])
        v(f"v_mul_f32 v{mu}, v{vC128}, v{mu}",[mu],[vC128,mu])
        v(f"v_fma_f32 v{lg}, -v{mu}, v{vWS}, v{lg}",[lg],[mu,vWS,lg])
        v(f"v_fma_f32 v{t2}, -v{mu}, v{mu}, v{DE(t)}",[t2],[mu,DE(t)])
        v(f"v_rcp_f32 v{t3}, v{D(t)}",[t3],[D(t)],"trans")
        v(f"v_mul_f32 v{lg}, v{vL2E}, v{lg}",[lg],[vL2E,lg])
        v(f"v_fmac_f32 v{t2}, v{vC128}, v{o}",[t2],[t2,vC128,o])
        v(f"v_max_f32 v{t2}, v{t2}, v{DE(t)}",[t2],[t2,DE(t)])
        v(f"v_rsq_f32 v{t2}, v{t2}",[t2],[t2],"trans")
        v(f"v_and_b32 v{mu}, 0x80000000, v{D(t)}",[mu],[D(t)])
        v(f"v_mul_f32 v{lg}, v{lg}, v{t2}",[lg],[lg,t2])
        v(f"v_xor_b32 v{lg}, v{lg}, v{mu}",[lg],[lg,mu])
        dpp("v_max_f32",t2,lg,lg,"quad_perm:[1,0,3,2]"); dpp("v_max_f32",t2,t2,t2,"quad_perm:[2,3,0,1]"); dpp("v_max_f32",t2,t2,t2,"row_half_mirror")
        v(f"v_sub_f32 v{lg}, v{lg}, v{t2}",[lg],[lg,t2]); v(f"v_exp_f32 v{lg}, v{lg}",[lg],[lg],"trans")
        dpp("v_add_f32",t2,lg,lg,"quad_perm:[1,0,3,2]"); dpp("v_add_f32",t2,t2,t2,"quad_perm:[2,3,0,1]"); dpp("v_add_f32",t2,t2,t2,"row_half_mirror")
        v(f"v_rcp_f32 v{t2}, v{t2}",[t2],[t2],"trans")
        v(f"v_mul_f32 v{lg}, v{lg}, v{t3}",[lg],[lg,t3]); v(f"v_mul_f32 v{lg}, v{lg}, v{t2}",[lg],[lg,t2])
        v(f"v_mov_b32_dpp v{t2}, v{lg} quad_perm:[1,0,3,2] row_mask:0xf bank_mask:0xf",[t2],[lg],"dpp",[lg])
        v(f"v_cvt_pk_bf16_f32 v{t2}, v{lg}, v{t2}",[t2],[lg,t2])
        bperm(BG+4,vAL,t2,0); bperm(BG+5,vAL,t2,8)
        for r in range(4): v(f"v_mul_f32 v{S+r}, v{S+r}, v{lg}",[S+r],[S+r,lg])
        for ctl in("quad_perm:[1,0,3,2]","quad_perm:[2,3,0,1]","row_half_mirror"):
            for r in range(4): dpp("v_add_f32",S+r,S+r,S+r,ctl)
        v(f"v_cvt_pk_bf16_f32 v{BG+2}, v{S}, v{S+1}",[BG+2],[S,S+1]); v(f"v_cvt_pk_bf16_f32 v{BG+3}, v{S+2}, v{S+3}",[BG+3],[S+2,S+3])
        for h in range(2): v(f"v_and_b32 v{BG+h}, v{BG+4+h}, v{vVM}",[BG+h],[BG+4+h,vVM])
        for h in range(2): v(f"v_and_b32 v{BG+4+h}, v{BG+4+h}, v{vVM}",[BG+4+h],[BG+4+h,vVM])
    for b in range(8):
        for t in T:
            BG=UP[t]+8; f=[UP[t],UP[t]+4,A0(t),A1(t)][b&3]
            if b%2==0: B.mfma(f,gE(t,b),BG,None)
            else: B.mfma(f,VP(t,b),BG+2,None)
        for t in T:
            f=[UP[t],UP[t]+4,A0(t),A1(t)][b&3]; u=chunk(t,b>>1)+2*(b&1)
            v(f"v_cvt_pk_bf16_f32 v{u}, v{f}, v{f+1}",[u],[f,f+1]); v(f"v_cvt_pk_bf16_f32 v{u+1}, v{f+2}, v{f+3}",[u+1],[f+2,f+3])
            if b&1:
                c=chunk(t,b>>1)
                B.add(f"buffer_store_dwordx4 v[{c}:{c+3}], v{vOUT}, s[{S_O}:{S_O+3}], s36 offen offset:{512*t+64*(b>>1)}","vst",R(c,4)+R(vOUT),[])
    return B

def gen_k4(name):
    a=Asm(); a.l.append(head(name))
    st=Stamper(a,"k4" in STAMP); st()
    a(f"""s_cmp_ge_u32 s2, 256
      s_cbranch_scc1 K4_END
      s_load_dwordx2 s[8:9], s[0:1], 88
      s_load_dwordx2 s[4:5], s[0:1], 0
      s_load_dwordx2 s[6:7], s[0:1], 24
      s_load_dwordx2 s[10:11], s[0:1], 72
      v_lshrrev_b32 v1, 6, v0
      v_and_b32 v2, 63, v0
      v_lshrrev_b32 v3, 4, v2
      v_readfirstlane_b32 s3, v1
      v_and_b32 v4, 15, v2
      v_lshlrev_b32 v{vW}, 4, v2
      s_mul_i32 s{S_N0}, s2, 96
      v_lshrrev_b32 v5, 1, v3
      v_lshlrev_b32 v5, 3, v5
      v_sub_u32 v6, v4, v5
      v_subrev_u32 v6, s3, v6
      v_and_b32 v6, 15, v6
      v_lshlrev_b32 v6, 4, v6
      s_mov_b32 s33, {GSTR}
      v_mad_u32_u24 v{vDMA}, v3, s33, v6
      s_lshl_b32 s33, s3, 10
      v_add_u32 v{vXG}, s33, v{vW}
      v_lshl_add_u32 v{vXG}, v3, 8, s33
      v_lshl_add_u32 v{vXG}, v4, 4, v{vXG}
      s_waitcnt lgkmcnt(0)""")
    a.srd(S_G,8,9,8*TSTR); a.srd(S_X,4,5,N*256); a.srd(S_D,6,7,N*2); a.srd(S_O,10,11,N*256); a.srd(S_WF,8,9,69*1024,OFF_WF)
    a(f"""v_lshrrev_b32 v7, 3, v4
      v_and_b32 v8, 7, v4
      s_lshl_b32 s33, s3, 2
      v_add_lshl_u32 v9, v7, s33, 1
      v_mov_b32 v10, 0x40000000
      v_cmp_eq_u32 vcc, 0, v8
      s_nop 1
      v_cndmask_b32 v{vDI}, v9, v10, vcc
      v_add_lshl_u32 v9, v7, s33, 8
      v_lshl_add_u32 v9, v3, 4, v9
      v_cndmask_b32 v{vOUT}, v10, v9, vcc""")
    def prefetch():
        l=a.label("PF")
        a(f"""s_cmp_eq_u32 s3, 0
          s_cbranch_scc1 {l}
          s_mul_i32 s33, s3, {TSTR}
          s_lshl_b32 s34, s{S_N0}, 3
          s_add_u32 s33, s33, s34
          s_lshl_b32 s34, s3, 13
          s_add_u32 s34, s34, {TOK}""")
        for i in range(8):
            a(f"s_mov_b32 m0, s34\ns_add_u32 s34, s34, 1024\nbuffer_load_dwordx4 v{vDMA}, s[{S_G}:{S_G+3}], s33 offen lds")
            if i<7: a(f"s_add_u32 s33, s33, {4*GSTR}")
        a(f"""{l}:
          s_lshl_b32 s33, s{S_N0}, 8
          s_lshl_b32 s34, s{S_N0}, 1
          buffer_load_dwordx4 v[{X4}:{X4+3}], v{vXG}, s[{S_X}:{S_X+3}], s33 offen
          buffer_load_ushort v{DN[0]}, v{vDI}, s[{S_D}:{S_D+3}], s34 offen
          buffer_load_ushort v{DN[1]}, v{vDI}, s[{S_D}:{S_D+3}], s34 offen offset:4""")
    prefetch()
    a(f"s_lshl_b32 s33, s3, 10")
    for i in range(9):
        if i==8: a("s_cmp_ge_u32 s3, 4\ns_cbranch_scc1 K4_WD")
        a(f"s_mov_b32 m0, s33\ns_nop 0\nbuffer_load_dwordx4 v{vW}, s[{S_WF}:{S_WF+3}], s33 offen lds\ns_add_u32 s33, s33, 8192")
    a(f"""K4_WD:
      s_mov_b32 s33, {68*1024+252}
      buffer_load_dword v{vWS}, off, s[{S_WF}:{S_WF+3}], s33
      v_add_u32 v{vW2}, 0x10000, v{vW}
      v_mov_b32 v{vC128}, {f2u(1/128):#x}
      v_mov_b32 v{vEPS}, {f2u(1e-5):#x}
      v_mov_b32 v{vL2E}, {f2u(math.log2(math.e)):#x}
      v_lshlrev_b32 v{vAL}, 4, v3
      v_xor_b32 v{vX32}, 32, v2
      v_lshlrev_b32 v{vX32}, 2, v{vX32}
      v_lshrrev_b32 v5, 1, v3
      v_cmp_eq_u32 vcc, v5, v7
      v_and_b32 v10, 1, v3
      s_lshl_b32 s33, s3, 1
      v_cndmask_b32 v{vVM}, 0, -1, vcc""")
    a(f"""v_lshlrev_b32 v11, 13, v8
      v_lshl_add_u32 v11, v3, 9, v11
      v_lshl_add_u32 v11, v7, 3, v11
      v_add_u32 v11, {TOK}, v11
      v_lshl_add_u32 v12, v10, 3, v8
      v_add_u32 v12, s33, v12""")
    for t in range(2):
        a(f"v_add_u32 v13, {t}, v12\nv_and_b32 v13, 15, v13\nv_lshl_add_u32 v{TB[t]}, v13, 4, v11")
    a(f"""v_lshrrev_b32 v14, 2, v4
      v_and_b32 v15, 3, v4
      v_lshl_add_u32 v14, v10, 2, v14
      v_lshlrev_b32 v11, 13, v14
      v_lshl_add_u32 v11, v15, 9, v11
      v_lshl_add_u32 v11, v5, 3, v11
      v_add_u32 v11, {TOK}, v11
      v_and_b32 v12, 1, v15
      v_lshl_add_u32 v12, v12, 3, v14
      v_add_u32 v12, s33, v12""")
    for t in range(2):
        a(f"v_add_u32 v13, {t}, v12\nv_and_b32 v13, 15, v13\nv_lshl_add_u32 v{TR[t]}, v13, 4, v11")
    a(f"""v_and_b32 v12, 1, v4
      v_lshl_add_u32 v12, v12, 3, v5
      v_add_u32 v12, s33, v12
      v_and_b32 v12, 15, v12
      v_lshlrev_b32 v11, 9, v4
      v_lshl_add_u32 v11, v12, 4, v11
      v_lshl_add_u32 v11, v10, 3, v11
      v_add_u32 v{vXL}, {TOK}, v11
      v_lshlrev_b32 v12, 2, v3
      v_sub_u32 v12, v4, v12
      v_mov_b32 v13, 0x3f80
      v_mov_b32 v14, 0x3f800000
      v_cmp_eq_u32 s[40:41], 0, v12
      v_cmp_eq_u32 s[42:43], 1, v12
      v_cmp_eq_u32 s[44:45], 2, v12
      v_cmp_eq_u32 vcc, 3, v12
      v_cndmask_b32 v15, 0, v13, s[40:41]
      v_cndmask_b32 v16, 0, v13, s[44:45]
      v_cndmask_b32 v15, v15, v14, s[42:43]
      v_cndmask_b32 v16, v16, v14, vcc""")
    for t in range(2):
        for q in range(4): a(f"v_mov_b32 v{SEL(t,q)}, v15\nv_mov_b32 v{SEL(t,q)+1}, v16")
        a(f"v_mov_b32 v{MI[t]+6}, 0\nv_mov_b32 v{MI[t]+7}, 0")
    a("s_mov_b32 s35, 0")
    def land(NT):
        a(f"""s_waitcnt vmcnt(0)
          ds_write_b64 v{vXL}, v[{X4}:{X4+1}]
          ds_write_b64 v{vXL}, v[{X4+2}:{X4+3}] offset:256""")
        for t in range(NT):
            d=MI[t]+15
            a(f"v_lshlrev_b32 v{d}, 16, v{DN[t]}\nv_cmp_eq_f32 vcc, 0, v{d}\ns_nop 1\nv_cndmask_b32 v{d}, v{d}, 1.0, vcc")
        a(f"s_lshl_b32 s36, s{S_N0}, 8\ns_waitcnt lgkmcnt(0)\ns_barrier")
    def reads(NT):
        for t in range(NT):
            for c in range(4):
                for h in range(2):
                    r=chunk(t,c)+2*h; a(f"ds_read_b64 v[{r}:{r+1}], v{TB[t]} offset:{c*2048+h*256}")
        for t in range(NT):
            for b in range(8):
                r=gE(t,b); a(f"ds_read_b64_tr_b16 v[{r}:{r+1}], v{TR[t]} offset:{(8*(b>>1)+(b&1))*256}")
        a("s_waitcnt lgkmcnt(0)")
    a("K4_LOOP:")
    land(2); st(); reads(2)
    a(f"""s_barrier
      s_add_u32 s35, s35, 1
      s_add_u32 s{S_N0}, s{S_N0}, 32
      s_cmp_lt_u32 s35, 3
      s_cbranch_scc1 K4_PFN
      s_lshl_b32 s{S_N0}, s2, 1
      s_add_u32 s{S_N0}, s{S_N0}, 24576
      s_cmp_ge_u32 s2, 212
      s_cbranch_scc1 K4_NOPF
      K4_PFN:""")
    prefetch()
    a("K4_NOPF:")
    st()
    SCH=os.environ.get("NOSCHED","")==""
    B=body(2); ops=B.schedule(SCH); lines,dsq,vmq=finalize(ops)
    print("K4 body(2): ops",len(ops),"est",getattr(B,"est",None),"mfma",sum(o.kind=="mfma" for o in ops),"valu",sum(o.kind in VAL for o in ops),"nops",sum(l.startswith("s_nop") for l in lines))
    for l in lines: a(l)
    st()
    a(f"""s_cmp_lt_u32 s35, 3
      s_cbranch_scc1 K4_LOOP
      s_cmp_ge_u32 s2, 212
      s_cbranch_scc1 K4_END""")
    land(1)
    a("s_cmp_lg_u32 s3, 0\ns_cbranch_scc1 K4_END")
    reads(1)
    B=body(1); ops=B.schedule(SCH); lines,dsq,vmq=finalize(ops)
    for l in lines: a(l)
    st(); st.dump(5,0)
    a("K4_END:\ns_endpgm")
    return a.text(), desc(name,256,102 if STAMP else 64)
```

```python
import re
def R(base,n=1): return [f"v{base+i}" for i in range(n)]
class Op:
    __slots__=("text","kind","rd","wr","rc","cost","lat","idx","deps","succ","cp","t","ddp")
    def __init__(s,text,kind,rd=(),wr=(),rc=(),dpp=()):
        s.text=text; s.kind=kind; s.rd=set(rd)|set(rc); s.wr=set(wr); s.rc=tuple(rc); s.ddp=set(dpp)
        s.cost={"mfma":8,"valu":4,"trans":8,"dpp":4,"perml":8,"dot":4,"ds":1,"dsw":1,"vld":1,"vst":1,"salu":1}[kind]
        s.lat={"mfma":40,"valu":6,"trans":12,"dpp":6,"perml":10,"dot":8,"ds":140,"dsw":4,"vld":900,"vst":4,"salu":4}[kind]
VAL=("valu","trans","dpp","perml","dot")
class Block:
    def __init__(s): s.ops=[]
    def add(s,*a,**k): o=Op(*a,**k); s.ops.append(o); return o
    def mfma(s,d,a,b,c=None,shape="16x16x32"):
        ct="0" if c is None else f"v[{c}:{c+3}]"
        return s.add(f"v_mfma_f32_{shape}_bf16 v[{d}:{d+3}], v[{a}:{a+3}], v[{b}:{b+3}], {ct}","mfma",R(a,4)+R(b,4),R(d,4),() if c is None else R(c,4))
    def v(s,text,wr,rd,kind="valu",dpp=()):
        return s.add(text,kind,rd,wr,(),dpp)
    def schedule(s,on=True):
        ops=s.ops; n=len(ops)
        if not on: return list(ops)
        lastw={}; readers={}
        mem_prev=None
        for i,o in enumerate(ops):
            o.idx=i; o.deps={}; o.succ=[]
            for r in o.rd:
                if r in lastw:
                    y=lastw[r]; l=y.lat
                    if y.kind=="mfma" and o.kind=="mfma" and r in o.rc and set(o.rc)==y.wr and not (y.wr & (o.rd-set(o.rc))): l=16
                    elif y.kind in VAL and o.kind=="mfma": l=y.lat+6
                    elif y.kind in VAL and o.kind in("dpp","perml"): l=y.lat+6
                    o.deps[y]=max(o.deps.get(y,0),l)
            for r in o.wr:
                if r in lastw:
                    y=lastw[r]; o.deps[y]=max(o.deps.get(y,0), 16 if (y.kind=="mfma" and o.kind=="mfma") else (y.lat if y.kind in("mfma","ds","vld") else 1))
                for y in readers.get(r,()):
                    if y is not o: o.deps[y]=max(o.deps.get(y,0), 14 if (y.kind=="mfma" and r in y.rc) else 1)
            for r in o.rd: readers.setdefault(r,[]).append(o)
            for r in o.wr: lastw[r]=o; readers[r]=[]
        for o in ops:
            for y in o.deps: y.succ.append(o)
        for o in reversed(ops):
            o.cp=max([x.cp+x.deps[o] for x in o.succ],default=0)+ (16 if o.kind=="mfma" else o.cost)*0
        done=set(); out=[]; now=0; mfree=0; left=list(ops); ndep={o:len(o.deps) for o in ops}
        ready=[o for o in ops if ndep[o]==0]; rt={o:0 for o in ready}
        while ready:
            def est(o): return max(rt[o], mfree if o.kind=="mfma" else 0)
            avail=[o for o in ready if est(o)<=now]
            if avail:
                mem=[o for o in avail if o.cost==1]
                mf=[o for o in avail if o.kind=="mfma"]
                if mem: o=max(mem,key=lambda x:(x.cp,-x.idx))
                elif mf: o=max(mf,key=lambda x:(x.cp,-x.idx))
                else: o=max(avail,key=lambda x:(x.cp,-x.idx))
            else:
                o=min(ready,key=lambda x:(est(x),-x.cp,x.idx)); now=est(o)
            ready.remove(o); out.append(o); o.t=now
            if o.kind=="mfma": mfree=now+16
            now+=o.cost
            for x in o.succ:
                ndep[x]-=1; rt[x]=max(rt.get(x,0),o.t+x.deps[o])
                if ndep[x]==0: ready.append(x)
        assert len(out)==n
        s.est=now
        return out
def finalize(ops,pend_vm=None,drain=True):
    out=[]; hist=[]
    state=0; dsq=[]; vmq=[set(x) for x in (pend_vm or [])]
    def emit(t,n=1):
        nonlocal state
        out.append(t); state+=n
    for o in ops:
        touch=o.rd|o.wr
        w=[]
        for q,name,mx in((dsq,"lgkmcnt",15),(vmq,"vmcnt",63)):
            k=-1
            for i,regs in enumerate(q):
                if regs & touch: k=i
            if k>=0:
                rem=len(q)-1-k; w.append(f"{name}({min(rem,mx)})"); del q[:k+1]
        if w: emit("s_waitcnt "+" ".join(w))
        need=0
        for y,st in hist[-14:]:
            d=state-st-1
            req=0
            if y.kind in VAL:
                if o.kind=="mfma" and y.wr&o.rd: req=2
                if o.kind in("dpp","perml") and y.wr&(o.rd if o.kind=="perml" else o.ddp): req=max(req,2)
                if y.kind=="dot" and y.wr&touch and not (o.kind=="dot" and o.wr==y.wr): req=max(req,3)
                if y.kind=="trans" and o.kind in VAL and y.wr&o.rd: req=max(req,1)
                if o.kind in VAL and any((r[0]=="s" or r=="vcc") for r in y.wr&o.rd): req=max(req,2)
                if o.kind in("vld","vst") and any(r[0]=="s" for r in y.wr&o.rd): req=max(req,5)
                if "exec" in y.wr and o.kind=="dpp": req=max(req,5)
            if y.kind=="mfma":
                if o.kind=="mfma":
                    ab=o.rd-set(o.rc) if not (set(o.rc)&(o.rd-set(o.rc))) else o.rd
                    if y.wr&ab: req=8
                    elif y.wr&set(o.rc): req=0 if set(o.rc)==y.wr else 6
                    elif y.wr&o.wr: req=0 if o.wr==y.wr else 6
                elif y.wr&touch: req=8
                if o.kind in VAL and set(y.rc)&o.wr: req=max(req,3)
            if y.kind=="vst" and o.kind in VAL and y.rd&o.wr: req=max(req,2)
            need=max(need,req-d)
        if need>0: emit(f"s_nop {need-1}",need)
        hist.append((o,state)); emit(o.text)
        if o.kind=="ds": dsq.append(set(o.wr))
        if o.kind=="dsw": dsq.append(set())
        if o.kind=="vld": vmq.append(set(o.wr))
        if o.kind=="vst": vmq.append(set())
    return out,dsq,vmq
```

```python
import sys
from common import *
import k1,k2,k3
def build(stages=("k1","k2","k3","k4")):
    hdr=open("standalone__hybrid_graph_tf_nagphormer__graph.s.ref").read().split("; Override launch")[0]
    L=[]; T=[]; D=[]
    if "k1" in stages:
        t,d=k1.gen_k1("prep_kernel"); T.append(t); D.append(d); L.append(f"; @launch kernel=prep_kernel grid=({PW+32+k1.NTW},1,1) block=(1024,1,1) lds=65536")
    if "k2" in stages:
        t,d=k2.gen_k2("build_kernel"); T.append(t); D.append(d); L.append(f"; @launch kernel=build_kernel grid=({NBIN+33+(48 if os.environ.get('WARM','1')=='1' else 0)},1,1) block=(1024,1,1) lds={k2.K2_LDS}")
    if "k3" in stages:
        t,d=k3.gen_k3("hops_kernel"); T.append(t); D.append(d); L.append(f"; @launch kernel=hops_kernel grid=(256,1,1) block=(1024,1,1) lds={k3.K3_LDS}")
    if "k4" in stages:
        import k4
        t,d=k4.gen_k4("attn_kernel"); T.append(t); D.append(d); L.append(f"; @launch kernel=attn_kernel grid=(256,1,1) block=(512,1,1) lds={k4.K4_LDS}")
    return hdr+"\n".join(L)+'\n.amdgcn_target "amdgcn-amd-amdhsa--gfx950"\n'+"".join(T)+("" if "k4" in stages else "attn_kernel:\n")+"CODE_END:\n"+"".join(D)
if __name__=="__main__":
    out=sys.argv[1]; st=sys.argv[2].split(",") if len(sys.argv)>2 else ("k1","k2","k3","k4")
    open(out,"w").write(build(st))
```

```python
N=25000; NP=25088; E=400000
GSTR=NP*8
TSTR=32*GSTR
OFF_G=0
OFF_EDG=8*TSTR
OFF_OFFS=0x3290000
OFF_BLOB=0x3A00000
OFF_SCALE=0x34B0000
OFF_HDR=0x34D0000
OFF_FLAG=0x34E0000
OFF_WF=0x34F0000
OFF_WT=0x3510000
WT_CS=131072; WT_R1=WT_CS+8192; WT_R2=WT_R1+8192; WT_SIZE=WT_R2+8192
OFF_OVF=0x4000000
OVF_SIZE=0x3400000
WS_SIZE=268435456
PW=100
PE=4000
NBIN=168
PIECE=3136
SEG=[0,896,2048,3136]
TST=1152
ZT=7*TST
TB_=(ZT+32)*8
LDS_OUT=2*TB_
ZO=PIECE
LDS_CNT=LDS_OUT+(PIECE+32)*8
BLOBSZ=20480

class Asm:
    gid=0
    def __init__(self): self.l=[]; self.uid=0
    def __call__(self,s=""):
        for ln in s.split("\n"):
            ln=ln.strip()
            if ln: self.l.append(ln if ln.endswith(":") else "    "+ln)
    def label(self,p="L"):
        Asm.gid+=1; return f"{p}_{Asm.gid}"
    def srd(self,d,lo,hi,size,off=0):
        if off:
            self(f"s_add_u32 s{d}, s{lo}, {off:#x}\ns_addc_u32 s{d+1}, s{hi}, 0")
        else:
            self(f"s_mov_b32 s{d}, s{lo}\ns_mov_b32 s{d+1}, s{hi}")
        self(f"s_mov_b32 s{d+2}, {size:#x}\ns_mov_b32 s{d+3}, 0x20000")
    def text(self): return "\n".join(self.l)+"\n"

def desc(name,vgpr,sgpr=102,accum=None):
    accum = accum or ((vgpr+3)//4*4)
    return f""".section .rodata,"a"
.p2align 6
.amdhsa_kernel {name}
  .amdhsa_next_free_vgpr {vgpr}
  .amdhsa_next_free_sgpr {sgpr}
  .amdhsa_accum_offset {accum}
  .amdhsa_group_segment_fixed_size 0
  .amdhsa_kernarg_size 96
  .amdhsa_user_sgpr_count 2
  .amdhsa_user_sgpr_kernarg_segment_ptr 1
  .amdhsa_system_sgpr_workgroup_id_x 1
  .amdhsa_float_denorm_mode_32 3
.end_amdhsa_kernel
"""
def head(name):
    return f""".text
.globl {name}
.p2align 8
.type {name},@function
{name}:
"""
def wave_scan_u32(a,v):
    for sh in (1,2,4,8):
        a(f"s_nop 1\nv_add_u32_dpp v{v}, v{v}, v{v} row_shr:{sh} row_mask:0xf bank_mask:0xf bound_ctrl:0")
    a(f"s_nop 1\nv_add_u32_dpp v{v}, v{v}, v{v} row_bcast:15 row_mask:0xa bank_mask:0xf")
    a(f"s_nop 1\nv_add_u32_dpp v{v}, v{v}, v{v} row_bcast:31 row_mask:0xc bank_mask:0xf")

import os
STAMP=os.environ.get("STAMP","")
class Stamper:
    def __init__(self,a,on): self.a=a; self.on=on; self.n=0
    def __call__(self):
        if not self.on: return
        if "fine" in os.environ.get("K3X",""):
            self.n=14; return
        self.a(f"s_memtime s[{72+2*self.n}:{73+2*self.n}]"); self.n+=1
    def dump(self,wg,wave,base=0,wavereg=3):
        if not self.on: return
        a=self.a; l=a.label("ST")
        a(f"""s_cmp_lg_u32 s{wavereg}, {wave}
          s_cbranch_scc1 {l}
          s_load_dwordx2 s[100:101], s[0:1], 88
          s_lshl_b32 vcc_lo, s2, 8
          s_add_u32 vcc_lo, vcc_lo, {OFF_ST:#x}
          s_waitcnt lgkmcnt(0)
          s_add_u32 s100, s100, vcc_lo
          s_addc_u32 s101, s101, 0
          s_mov_b64 exec, 1""")
        for i in range(self.n):
            a(f"v_mov_b32 v0, s{72+2*i}\nv_mov_b32 v1, {4*(base+i)}\nglobal_store_dword v1, v0, s[100:101]")
        a(f"s_waitcnt vmcnt(0)\n{l}:")
OFF_ST=0x7F00000

ROWS={0:[6,3,1],1:[5,4,2,0]}
REGS=[{0:[6,6,6],1:[5,5,5,5]},{0:[9,4,3],1:[5,5,3,3]},{0:[12,6,6],1:[7,6,6,5]},{0:[11,5,4],1:[7,5,4,4]}]
UNITS=[5,4,6,5]; UOFF=[0,5,9,15]; E0=[0,0,1,1]
LAY=[{h:[(ROWS[h][i],sum(REGS[p][h][:i]),REGS[p][h][i]) for i in range(len(ROWS[h]))] for h in (0,1)} for p in range(4)]
SORT=os.environ.get("SORT","class")
CAPS={"class":[[3]*7,[2,2,3,3,4,4,6],[3,3,4,4,5,5,7],[3,3,4,4,5,5,7]],
      "global":[[3]*7,[1,2,2,2,3,3,6],[2,3,3,3,4,5,7],[2,3,3,3,4,4,7]]}[SORT]
if os.environ.get("CAPS"): CAPS=eval(os.environ["CAPS"])
OFF_DST=0x3540000
```

```python
from common import *
import math
def wave_scan_f32(a,v):
    for sh in (1,2,4,8):
        a(f"s_nop 1\nv_add_f32_dpp v{v}, v{v}, v{v} row_shr:{sh} row_mask:0xf bank_mask:0xf bound_ctrl:0")
    a(f"s_nop 1\nv_add_f32_dpp v{v}, v{v}, v{v} row_bcast:15 row_mask:0xa bank_mask:0xf")
    a(f"s_nop 1\nv_add_f32_dpp v{v}, v{v}, v{v} row_bcast:31 row_mask:0xc bank_mask:0xf")
def f2u(x):
    import struct; return struct.unpack("<I",struct.pack("<f",x))[0]

def row16_reduce(a,src,dst,n):
    for i in range(n): a(f"v_add_f32_dpp v{dst+i}, v{src+i}, v{src+i} row_ror:8 row_mask:0xf bank_mask:0xf")
    for sh in (4,2,1):
        for i in range(n): a(f"v_add_f32_dpp v{dst+i}, v{dst+i}, v{dst+i} row_ror:{sh} row_mask:0xf bank_mask:0xf")

def gen_k1(name):
    a=Asm(); a.l.append(head(name))
    st=Stamper(a,"k1" in STAMP)
    st()
    a(f"""s_cmp_ge_u32 s2, 230
      s_cbranch_scc1 K1_END
      s_load_dwordx2 s[8:9], s[0:1], 88
      v_lshrrev_b32 v1, 6, v0
      v_and_b32 v2, 63, v0
      s_cmp_ge_u32 s2, {PW}
      v_readfirstlane_b32 s3, v1
      s_cbranch_scc1 K1_NOTPART""")
    a(f"""s_load_dwordx4 s[4:7], s[0:1], 8
      v_lshlrev_b32 v3, 2, v0
      v_mov_b32 v4, 0
      ds_write_b32 v3, v4
      v_lshlrev_b32 v3, 4, v0
      s_mul_i32 s10, s2, {PE*4}
      s_waitcnt lgkmcnt(0)""")
    a.srd(12,4,5,E*4); a.srd(16,6,7,E*4)
    a(f"""v_cmp_gt_u32 vcc, {PE//4}, v0
      s_and_saveexec_b64 s[20:21], vcc
      buffer_load_dwordx4 v[8:11], v3, s[16:19], s10 offen
      buffer_load_dwordx4 v[4:7], v3, s[12:15], s10 offen
      s_movk_i32 s22, {SEG[1]}
      s_movk_i32 s23, {SEG[2]}
      s_movk_i32 s24, -448
      s_movk_i32 s25, {-PIECE}
      s_movk_i32 s42, {TST}
      v_mov_b32 v28, 1
      v_mov_b32 v29, {SEG[1]}
      v_mov_b32 v30, {SEG[2]}
      s_barrier
      s_waitcnt vmcnt(1)""")
    R4=range(4)
    for i in R4: a(f"v_lshrrev_b32 v{12+i}, 6, v{8+i}")
    for i in R4: a(f"v_mul_u32_u24 v{32+i}, 1338, v{12+i}")
    for i in R4: a(f"v_mul_u32_u24 v{12+i}, 9363, v{12+i}")
    for i in R4: a(f"v_lshrrev_b32 v{32+i}, 16, v{32+i}")
    for i in R4: a(f"v_lshrrev_b32 v{12+i}, 16, v{12+i}")
    for i in R4: a(f"v_mad_i32_i24 v{8+i}, v{12+i}, s24, v{8+i}")
    for i in R4: a(f"v_lshl_add_u32 v{12+i}, v{12+i}, 1, v{12+i}")
    a("s_waitcnt vmcnt(0)")
    for i in R4: a(f"v_lshrrev_b32 v{36+i}, 6, v{4+i}")
    for i in R4: a(f"v_mul_u32_u24 v{36+i}, 1338, v{36+i}")
    for i in R4: a(f"v_lshrrev_b32 v{36+i}, 16, v{36+i}")
    for i in R4: a(f"v_mad_i32_i24 v{4+i}, v{36+i}, s25, v{4+i}")
    for i in R4: a(f"v_cmp_le_u32 s[{26+2*i}:{27+2*i}], s22, v{4+i}")
    for i in R4: a(f"v_cmp_le_u32 s[{34+2*i}:{35+2*i}], s23, v{4+i}")
    for i in R4: a(f"v_cndmask_b32 v{16+i}, 0, v29, s[{26+2*i}:{27+2*i}]")
    for i in R4: a(f"v_cndmask_b32 v{40+i}, 0, 1, s[{26+2*i}:{27+2*i}]")
    for i in R4: a(f"v_cndmask_b32 v{16+i}, v{16+i}, v30, s[{34+2*i}:{35+2*i}]")
    for i in R4: a(f"v_cndmask_b32 v{40+i}, v{40+i}, 2, s[{34+2*i}:{35+2*i}]")
    for i in R4: a(f"v_cmp_gt_u32 s[{26+2*i}:{27+2*i}], v{36+i}, v{32+i}")
    for i in R4: a(f"v_cmp_eq_u32 s[{34+2*i}:{35+2*i}], v{36+i}, v{32+i}")
    for i in R4: a(f"v_sub_u32 v{16+i}, v{4+i}, v{16+i}")
    for i in R4: a(f"v_subb_co_u32 v{36+i}, vcc, v{36+i}, 0, s[{26+2*i}:{27+2*i}]")
    for i in R4: a(f"v_or_b32 v{44+i}, 0x200, v{8+i}")
    for i in R4: a(f"v_mad_u32_u24 v{16+i}, v{36+i}, s42, v{16+i}")
    for i in R4: a(f"v_cndmask_b32 v{40+i}, v{40+i}, 0, s[{34+2*i}:{35+2*i}]")
    for i in R4: a(f"v_cndmask_b32 v{8+i}, v{8+i}, v{44+i}, s[{34+2*i}:{35+2*i}]")
    for i in R4: a(f"v_cndmask_b32 v{4+i}, v{16+i}, v{4+i}, s[{34+2*i}:{35+2*i}]")
    for i in R4: a(f"v_add_lshl_u32 v{12+i}, v{12+i}, v{40+i}, 2")
    for i in R4: a(f"ds_add_rtn_u32 v{16+i}, v{12+i}, v28")
    for i in R4: a(f"v_lshl_or_b32 v{4+i}, v{8+i}, 16, v{4+i}")
    a(f"""s_waitcnt lgkmcnt(0)
      s_barrier
      s_cmp_lg_u32 s3, 0
      s_cbranch_scc1 K1_P_SKIPSCAN
      v_lshlrev_b32 v20, 4, v2
      ds_read_b128 v[24:27], v20
      s_mul_i32 s11, s2, {NBIN*4}
      s_add_u32 s44, s8, {OFF_OFFS:#x}
      s_addc_u32 s45, s9, 0
      s_add_u32 s44, s44, s11
      s_addc_u32 s45, s45, 0
      s_mov_b32 s46, {NBIN*4}
      s_mov_b32 s47, 0x20000
      s_waitcnt lgkmcnt(0)
      v_add_u32 v21, v24, v25
      v_add3_u32 v21, v21, v26, v27
      v_mov_b32 v22, v21""")
    wave_scan_u32(a,22)
    a(f"""v_sub_u32 v32, v22, v21
      v_add_u32 v33, v32, v24
      v_add_u32 v34, v33, v25
      v_add_u32 v35, v34, v26
      ds_write_b128 v20, v[32:35] offset:1024
      v_lshl_or_b32 v36, v24, 16, v32
      v_lshl_or_b32 v37, v25, 16, v33
      v_lshl_or_b32 v38, v26, 16, v34
      v_lshl_or_b32 v39, v27, 16, v35
      buffer_store_dwordx4 v[36:39], v20, s[44:47], 0 offen
      s_waitcnt lgkmcnt(0)
      K1_P_SKIPSCAN:
      s_barrier""")
    for i in range(4): a(f"ds_read_b32 v{20+i}, v{12+i} offset:1024")
    a.srd(12,8,9,E*4,OFF_EDG)
    for i in range(4):
        a(f"s_waitcnt lgkmcnt({3-i})\nv_add_lshl_u32 v{20+i}, v{20+i}, v{16+i}, 2")
    for i in range(4): a(f"ds_write_b32 v{20+i}, v{4+i} offset:2048")
    a(f"""s_waitcnt lgkmcnt(0)
      s_barrier
      ds_read_b128 v[4:7], v3 offset:2048
      s_waitcnt lgkmcnt(0)
      buffer_store_dwordx4 v[4:7], v3, s[12:15], s10 offen
      s_endpgm""")
    a(f"""K1_NOTPART:
      s_cmp_ge_u32 s2, 198
      s_cbranch_scc1 K1_WEIGHTS
      s_load_dwordx2 s[4:5], s[0:1], 0
      s_load_dwordx2 s[6:7], s[0:1], 24
      s_sub_u32 s10, s2, {PW}
      s_lshl_b32 s10, s10, 4
      s_add_u32 s10, s10, s3
      s_lshr_b32 s11, s10, 2
      s_and_b32 s10, s10, 3
      s_lshl_b32 s11, s11, 6
      v_add_u32 v2, s11, v2
      s_lshl_b32 s24, s10, 6
      v_lshlrev_b32 v3, 8, v2
      v_lshlrev_b32 v4, 1, v2
      v_lshlrev_b32 v5, 3, v2
      s_waitcnt lgkmcnt(0)""")
    a.srd(12,4,5,N*256); a.srd(16,6,7,N*2); a.srd(20,8,9,TSTR)
    a("buffer_load_ushort v6, v4, s[16:19], 0 offen")
    for i in range(4): a(f"buffer_load_dwordx4 v[{8+4*i}:{11+4*i}], v3, s[12:15], s24 offen offset:{16*i}")
    a(f"""s_mul_i32 s25, s10, {8*GSTR}
      s_mov_b32 s26, 0xffff0000
      s_waitcnt vmcnt(4)
      v_lshlrev_b32 v6, 16, v6""")
    for i in range(4):
        a(f"s_waitcnt vmcnt({3-i + 2*i})")
        for j in range(4):
            r=8+4*i+j
            a(f"v_lshlrev_b32 v{24+2*j}, 16, v{r}\nv_and_b32 v{25+2*j}, s26, v{r}")
        for j in range(8): a(f"v_mul_f32 v{24+j}, v6, v{24+j}")
        for j in range(4): a(f"v_cvt_pk_bf16_f32 v{8+4*i+j}, v{24+2*j}, v{25+2*j}")
        for h in range(2):
            a(f"buffer_store_dwordx2 v[{8+4*i+2*h}:{9+4*i+2*h}], v5, s[20:23], s25 offen")
            if not (i==3 and h==1): a(f"s_add_u32 s25, s25, {GSTR}")
    a("s_endpgm")
    a(f"""K1_WEIGHTS:
      s_cmp_lg_u32 s2, 198
      s_cbranch_scc1 K1_W1
      v_mov_b32 v12, 0
      v_mov_b32 v13, 0
      v_mov_b32 v14, 0
      v_mov_b32 v15, 0
      v_lshlrev_b32 v16, 6, v0
      s_waitcnt lgkmcnt(0)""")
    a.srd(28,8,9,65536,OFF_FLAG)
    for i in range(4): a(f"buffer_store_dwordx4 v[12:15], v16, s[28:31], 0 offen offset:{16*i}")
    a(f"""
      K1_W1:
      s_cmp_lg_u32 s3, 0
      s_cbranch_scc1 K1_END
      s_load_dwordx8 s[36:43], s[0:1], 32
      s_load_dwordx2 s[6:7], s[0:1], 64
      s_sub_u32 s4, s2, 198
      s_bfe_u32 s10, s4, 0x30001
      s_and_b32 s11, s4, 1""")
    lane_setup(a)
    a("s_waitcnt lgkmcnt(0)")
    a.srd(20,8,9,WT_SIZE,OFF_WT)
    A0=32; B0=16; ACC=96; T=32
    a("s_cmp_ge_u32 s4, 16\ns_cbranch_scc1 K1_WV")
    a.srd(24,36,37,32768); a.srd(28,38,39,32768)
    for s_ in range(4): a(f"buffer_load_dwordx4 v[{B0+4*s_}:{B0+4*s_+3}], v3, s[28:31], s17 offen offset:{64*s_}")
    a("s_branch K1_WA\nK1_WV:")
    a.srd(24,40,41,32768); a.srd(28,42,43,32768); a.srd(32,6,7,256)
    a(f"""v_lshrrev_b32 v15, 1, v8
      buffer_load_ushort v10, v15, s[32:35], 0 offen
      v_lshl_add_u32 v15, v5, 11, v15""")
    for s_ in range(4):
        a(f"s_mov_b32 s18, {8192*s_}")
        for j in range(8):
            a(f"buffer_load_ushort v{96+8*s_+j}, v15, s[28:31], s18 offen offset:{256*j}")
    a("K1_WA:")
    for i in range(4):
        so="s15" if i<2 else "s16"
        for s_ in range(4):
            a(f"buffer_load_dwordx4 v[{A0+16*i+4*s_}:{A0+16*i+4*s_+3}], v3, s[24:27], {so} offen offset:{(i&1)*1024+64*s_}")
    a(f"""s_lshl_b32 s18, s4, 12
      s_lshl_b32 s19, s4, 8
      s_add_u32 s19, s19, {WT_CS}
      v_lshlrev_b32 v13, 2, v2
      v_lshlrev_b32 v14, 6, v5
      s_waitcnt vmcnt(0)
      s_cmp_lt_u32 s4, 16
      s_cbranch_scc1 K1_WB""")
    for k in range(16): a(f"v_lshl_or_b32 v{B0+k}, v{97+2*k}, 16, v{96+2*k}")
    a("s_nop 1\nK1_WB:")
    for s_ in range(4):
        for i in range(4):
            c = "0" if s_==0 else f"v[{ACC+4*i}:{ACC+4*i+3}]"
            a(f"v_mfma_f32_16x16x32_bf16 v[{ACC+4*i}:{ACC+4*i+3}], v[{A0+16*i+4*s_}:{A0+16*i+4*s_+3}], v[{B0+4*s_}:{B0+4*s_+3}], {c}")
    a("s_nop 7")
    for i in range(4): a(f"buffer_store_dwordx4 v[{ACC+4*i}:{ACC+4*i+3}], v11, s[20:23], s18 offen offset:{1024*i}")
    a(f"v_add_f32 v12, v{ACC}, v{ACC+1}")
    for i in range(2,16): a(f"v_add_f32 v12, v12, v{ACC+i}")
    a("buffer_store_dword v12, v13, s[20:23], s19 offen")
    a("v_lshlrev_b32 v10, 16, v10")
    for i in range(16): a(f"v_mul_f32 v{64+i}, v10, v{ACC+i}")
    row16_reduce(a,ACC,T,16); row16_reduce(a,64,48,16)
    a(f"""s_add_u32 s19, s19, 8192
      s_add_u32 s18, s19, {8192-4096}
      s_mov_b32 exec_lo, 0x00010001
      s_mov_b32 exec_hi, 0x00010001""")
    for i in range(4): a(f"buffer_store_dwordx4 v[{T+4*i}:{T+4*i+3}], v14, s[20:23], s19 offen offset:{16*i}")
    a("s_cmp_lt_u32 s4, 16\ns_cbranch_scc1 K1_END")
    for i in range(4): a(f"buffer_store_dwordx4 v[{48+4*i}:{48+4*i+3}], v14, s[20:23], s18 offen offset:{16*i}")
    a("K1_END:\ns_endpgm")
    return a.text(), desc(name,128,102 if STAMP else 64)

def lane_setup(a):
    a(f"""v_and_b32 v4, 15, v2
      v_lshrrev_b32 v5, 4, v2
      v_lshrrev_b32 v6, 2, v4
      v_and_b32 v7, 3, v4
      v_lshl_add_u32 v6, v6, 3, v7
      v_lshlrev_b32 v3, 8, v6
      v_lshl_add_u32 v3, v5, 4, v3
      s_lshr_b32 s12, s10, 1
      s_and_b32 s13, s10, 1
      s_lshl_b32 s12, s12, 5
      s_lshl_b32 s13, s13, 2
      s_add_u32 s12, s12, s13
      v_add_lshl_u32 v8, v6, s12, 2
      v_lshlrev_b32 v9, 5, v5
      s_lshl_b32 s14, s11, 8
      v_add_u32 v9, s14, v9
      v_lshlrev_b32 v11, 4, v2
      s_lshl_b32 s15, s11, 14
      s_add_u32 s16, s15, 8192
      s_lshl_b32 s17, s12, 8""")

def weights_stage2(a,first_wg):
    kappa=128**-0.5*math.log2(math.e)
    ACC=16; T=32
    a(f"""W2_START:
      s_cmp_lg_u32 s3, 0
      s_cbranch_scc1 W2_END
      s_waitcnt lgkmcnt(0)
      s_load_dwordx2 s[6:7], s[0:1], 64
      s_sub_u32 s4, s2, {first_wg}
      s_bfe_u32 s10, s4, 0x30001
      s_and_b32 s11, s4, 1""")
    lane_setup(a)
    a(f"""v_lshlrev_b32 v13, 2, v2
      v_lshlrev_b32 v14, 6, v2
      v_and_b32 v15, 3, v2
      v_lshlrev_b32 v15, 5, v15
      v_bfe_u32 v12, v2, 2, 1
      v_lshl_add_u32 v15, v12, 8, v15
      v_mov_b32 v48, 0
      v_mov_b32 v49, 0
      v_mov_b32 v50, 0
      v_mov_b32 v51, 0
      ds_write_b128 v11, v[48:51]
      ds_write_b128 v11, v[48:51] offset:1024
      s_waitcnt lgkmcnt(0)""")
    a.srd(20,8,9,WT_SIZE,OFF_WT); a.srd(24,8,9,69*1024,OFF_WF); a.srd(28,6,7,256)
    def rowsums(goff,loff,tot):
        a(f"s_mov_b32 s18, {goff}")
        for i in range(4): a(f"buffer_load_dwordx4 v[{T+4*i}:{T+4*i+3}], v14, s[20:23], s18 offen offset:{16*i}")
        a("s_waitcnt vmcnt(0)")
        for i in range(16): a(f"ds_add_f32 v15, v{T+i} offset:{loff+((i>>3)*32+((i>>2)&1)*4+(i&3))*4}")
        a(f"v_add_f32 v12, v{T}, v{T+1}")
        for i in range(2,16): a(f"v_add_f32 v12, v12, v{T+i}")
        wave_scan_f32(a,12)
        a(f"s_nop 1\nv_readlane_b32 s{tot}, v12, 63")
    a("s_cmp_eq_u32 s4, 32\ns_cbranch_scc1 W2_EXT")
    a(f"""s_lshl_b32 s18, s4, 12
      s_and_b32 s19, s4, 30
      s_lshl_b32 s19, s19, 8
      s_add_u32 s19, s19, {WT_CS}
      buffer_load_dword v52, v13, s[20:23], s19 offen
      buffer_load_dword v53, v13, s[20:23], s19 offen offset:256""")
    for i in range(4): a(f"buffer_load_dwordx4 v[{ACC+4*i}:{ACC+4*i+3}], v11, s[20:23], s18 offen offset:{1024*i}")
    a(f"""s_mov_b32 s32, 0
      s_cmp_ge_u32 s4, 16
      s_cbranch_scc1 W2_NOROW""")
    rowsums(WT_R1,0,32)
    a(f"""s_mov_b32 s33, {f2u(kappa):#x}
      s_branch W2_R2
      W2_NOROW:
      s_mov_b32 s33, 1.0
      W2_R2:
      s_waitcnt vmcnt(0) lgkmcnt(0)
      v_add_f32 v52, v52, v53
      v_xor_b32 v54, 128, v13""")
    for i in range(4): a(f"ds_read_b128 v[{T+4*i}:{T+4*i+3}], v9 offset:{((i>>1)*32+(i&1)*4)*4}")
    a(f"""ds_swizzle_b32 v53, v52 offset:0x401F
      s_waitcnt lgkmcnt(0)
      v_add_f32 v52, v52, v53
      ds_bpermute_b32 v53, v54, v52
      s_mov_b32 s34, {f2u(1/128):#x}
      s_mov_b32 s35, {f2u(-1/128):#x}
      v_mov_b32 v55, s32
      s_waitcnt lgkmcnt(0)
      v_add_f32 v52, v52, v53
      v_fma_f32 v52, v55, s34, -v52
      v_mul_f32 v52, s34, v52
      v_mul_f32 v52, s33, v52""")
    for i in range(16): a(f"v_fma_f32 v{ACC+i}, v{T+i}, s35, v{ACC+i}")
    for i in range(16): a(f"v_fma_f32 v{ACC+i}, v{ACC+i}, s33, v52")
    a("s_lshl_b32 s18, s4, 11")
    for c in range(2):
        for h in range(2):
            for p in range(2):
                a(f"v_cvt_pk_bf16_f32 v{48+4*c+2*h+p}, v{ACC+8*c+4*h+2*p}, v{ACC+8*c+4*h+2*p+1}")
        a(f"buffer_store_dwordx4 v[{48+4*c}:{51+4*c}], v11, s[24:27], s18 offen offset:{1024*c}")
    a("s_endpgm\nW2_EXT:")
    a(f"""v_lshlrev_b32 v16, 1, v2
      buffer_load_ushort v52, v16, s[28:31], 0 offen
      buffer_load_ushort v53, v16, s[28:31], 0 offen offset:128""")
    rowsums(WT_R1+4096,1024,32); rowsums(WT_R2,1536,33)
    a(f"""v_lshlrev_b32 v52, 16, v52
      v_lshlrev_b32 v53, 16, v53
      v_mov_b32 v54, 1.0
      ds_write_b32 v13, v54
      ds_write_b32 v13, v54 offset:256
      ds_write_b32 v13, v52 offset:512
      ds_write_b32 v13, v53 offset:768
      v_add_f32 v12, v52, v53
      v_mov_b32 v55, s32
      v_mov_b32 v56, s33
      v_mul_f32 v55, {f2u(-1/128):#x}, v55
      v_mul_f32 v56, {f2u(-1/128):#x}, v56
      ds_add_f32 v13, v55 offset:1024
      ds_add_f32 v13, v55 offset:1280
      ds_add_f32 v13, v56 offset:1536
      ds_add_f32 v13, v56 offset:1792""")
    wave_scan_f32(a,12)
    a(f"""s_mov_b32 s18, {68*1024}
      buffer_store_dword v12, v13, s[24:27], s18 offen
      v_lshlrev_b32 v17, 9, v7
      v_lshl_add_u32 v17, v5, 5, v17
      s_mov_b32 s18, 65536
      s_waitcnt lgkmcnt(0)""")
    for c in range(4):
        a(f"ds_read_b128 v[{T+8*c}:{T+8*c+3}], v17 offset:{128*c}\nds_read_b128 v[{T+8*c+4}:{T+8*c+7}], v17 offset:{128*c+16}")
    a("s_waitcnt lgkmcnt(0)")
    for c in range(4):
        for p in range(4): a(f"v_cvt_pk_bf16_f32 v{16+4*c+p}, v{T+8*c+2*p}, v{T+8*c+2*p+1}")
        a(f"buffer_store_dwordx4 v[{16+4*c}:{19+4*c}], v11, s[24:27], s18 offen offset:{1024*c}")
    a("W2_END:\ns_endpgm")
```

```python
from common import *
L_CNT=0
L_CNT2=4096
L_CUR2=8192
L_HIST=12288
L_RMAX=12544
L_OVF=12608
L_INFO=12800
L_STG=16896
K2_LDS=L_STG+24576
SENT_T=ZT|(ZT<<16); SENT_O=ZO|(ZO<<16)
def lut(f,bits): return sum(f(r)<<(bits*r) for r in range(7))
def rowinfo(p):
    d={}
    for h,l in LAY[p].items():
        for s_,(r,pb,n) in enumerate(l): d[r]=(h,s_,pb,n)
    return d
RI=[rowinfo(p) for p in range(4)]
HS=lut(lambda r:RI[0][r][0]*4+RI[0][r][1],4)|(3<<28)
PB8=[lut(lambda r:RI[p][r][2]+24*RI[p][r][0],8) for p in range(4)]
NR4=[lut(lambda r:RI[p][r][3],4) for p in range(4)]

def gen_k2(name):
    a=Asm(); a.l.append(head(name))
    a(f"""s_cmp_ge_u32 s2, {NBIN+33}
      s_cbranch_scc1 K2_END
      s_load_dwordx2 s[8:9], s[0:1], 88
      s_load_dwordx2 s[4:5], s[0:1], 24
      s_load_dwordx2 s[6:7], s[0:1], 80
      v_lshrrev_b32 v1, 6, v0
      v_and_b32 v2, 63, v0
      v_lshrrev_b32 v3, 5, v0
      v_readfirstlane_b32 s3, v1
      v_and_b32 v4, 31, v0
      s_cmp_ge_u32 s2, {NBIN}
      s_cbranch_scc1 W2_START
      s_mul_i32 s10, s2, 21846
      s_lshr_b32 s10, s10, 16
      s_mul_i32 s11, s10, 3
      s_sub_u32 s11, s2, s11
      v_mul_u32_u24 v5, {NBIN*4}, v3
      s_lshl_b32 s12, s2, 2
      v_lshlrev_b32 v7, 4, v0
      v_mov_b32 v8, 0
      v_mov_b32 v9, 0
      v_mov_b32 v10, 0
      v_mov_b32 v11, 0
      ds_write_b128 v7, v[8:11]
      s_and_b32 s13, s3, 3
      s_mul_i32 s13, s13, 0x80008
      s_add_u32 s14, s13, {SENT_O+0x10000:#x}
      s_add_u32 s13, s13, {SENT_T+0x10000:#x}
      v_mov_b32 v8, s13
      v_add_u32 v9, 0x20002, v8
      v_add_u32 v10, 0x40004, v8
      v_add_u32 v11, 0x60006, v8
      v_mov_b32 v20, s14
      v_add_u32 v21, 0x20002, v20
      v_add_u32 v22, 0x40004, v20
      v_add_u32 v23, 0x60006, v20
      s_min_u32 s64, s11, 1
      s_waitcnt lgkmcnt(0)""")
    a.srd(16,8,9,PW*NBIN*4,OFF_OFFS); a.srd(20,8,9,E*4,OFF_EDG); a.srd(24,4,5,N*2)
    for k in range(4):
        a(f"s_add_u32 s13, s12, {32*k*NBIN*4}\nbuffer_load_dword v{12+k}, v5, s[16:19], s13 offen")
    a(f"""s_mul_i32 s13, s10, 896
      v_lshl_add_u32 v16, v0, 1, s13
      buffer_load_ushort v16, v16, s[24:27], 0 offen
      s_cmp_ge_u32 s3, 12
      s_cbranch_scc1 K2_NOSTG
      ds_write_b128 v7, v[8:11] offset:{L_STG}
      ds_write_b128 v7, v[20:23] offset:{L_STG+12288}
      K2_NOSTG:
      v_mul_u32_u24 v17, {PE*4}, v3
      v_lshl_add_u32 v17, v4, 2, v17
      v_mov_b32 v18, 1
      v_add_u32 v19, 32, v4
      s_mov_b32 s14, 0xffff""")
    for reg,vals in ((66,[x&0xffffffff for x in PB8]),(67,[x>>32 for x in PB8]),(68,NR4),(69,UNITS),(70,UOFF)):
        a(f"s_mov_b32 s{reg}, {vals[1]:#x}\ns_cmp_eq_u32 s11, 1\ns_cselect_b32 s{reg}, {vals[2]:#x}, s{reg}\ns_cmp_eq_u32 s11, 2\ns_cselect_b32 s{reg}, {vals[3]:#x}, s{reg}")
    for k in range(4):
        a(f"""s_waitcnt vmcnt({4-k+2*k})
          v_and_b32 v{20+k}, s14, v{12+k}
          v_lshrrev_b32 v{24+k}, 16, v{12+k}
          v_lshl_add_u32 v{20+k}, v{20+k}, 2, v17
          v_cmp_lt_u32 s[{30+2*k}:{31+2*k}], v4, v{24+k}
          v_cmp_lt_u32 s[{38+2*k}:{39+2*k}], v19, v{24+k}
          s_mov_b32 s13, {32*k*PE*4}
          buffer_load_dword v{28+k}, v{20+k}, s[20:23], s13 offen
          buffer_load_dword v{32+k}, v{20+k}, s[20:23], s13 offen offset:128""")
    a(f"""v_max_u32 v36, v24, v25
      v_max3_u32 v36, v36, v26, v27
      v_cmp_lt_u32 vcc, 64, v36
      s_waitcnt lgkmcnt(0)
      s_barrier
      s_mov_b64 s[46:47], vcc""")
    order=[0,4,1,5,2,6,3,7]
    for n,j in enumerate(order):
        a(f"""s_waitcnt vmcnt({7-n})
          s_mov_b64 exec, s[{30+2*j}:{31+2*j}]
          v_lshrrev_b32 v{36+j}, 14, v{28+j}
          v_and_b32 v{36+j}, 0xffc, v{36+j}
          ds_add_rtn_u32 v{44+j}, v{36+j}, v18""")
    a("s_mov_b64 exec, -1")
    a(f"""s_cmp_eq_u64 s[46:47], 0
      s_cbranch_scc1 K2_NOSLOWA""")
    for k in range(4):
        a(f"""v_add_u32 v52, 64, v4
          v_add_u32 v53, 256, v{20+k}
          s_mov_b32 s13, {32*k*PE*4}
          K2_SA{k}:
          v_cmp_lt_u32 vcc, v52, v{24+k}
          s_and_saveexec_b64 s[48:49], vcc
          s_cbranch_execz K2_SA{k}_E
          buffer_load_dword v54, v53, s[20:23], s13 offen
          s_waitcnt vmcnt(0)
          v_lshrrev_b32 v54, 14, v54
          v_and_b32 v54, 0xffc, v54
          ds_add_u32 v54, v18 offset:{L_CNT2}
          s_mov_b64 exec, s[48:49]
          v_add_u32 v52, 32, v52
          v_add_u32 v53, 128, v53
          s_branch K2_SA{k}
          K2_SA{k}_E:
          s_mov_b64 exec, s[48:49]""")
    a(f"""K2_NOSLOWA:
      s_waitcnt lgkmcnt(0)
      s_barrier
      s_mul_i32 s50, s10, 9363
      s_lshr_b32 s50, s50, 16
      s_mul_i32 s50, s50, 7
      s_sub_u32 s50, s10, s50
      s_mul_i32 s50, s50, 448
      v_lshlrev_b32 v52, 2, v0
      v_add_u32 v60, s50, v0""")
    if SORT=="class":
        a(f"""s_cmp_ge_u32 s3, 7
          s_cbranch_scc1 K2_SKIP2
          v_lshlrev_b32 v62, 2, v4
          v_add_u32 v63, 1024, v62
          ds_read2st64_b32 v[54:55], v52 offset0:0 offset1:{L_CNT2//256}
          ds_read2st64_b32 v[56:57], v52 offset0:8 offset1:{8+L_CNT2//256}""")
        for m in range(7): a(f"ds_read2_b32 v[{64+2*m}:{65+2*m}], v{62 if m<4 else 63} offset0:{64*(m&3)} offset1:{64*(m&3)+32}")
        a(f"v_add_u32 v62, {L_CNT2}, v62\nv_add_u32 v63, {L_CNT2}, v63\ns_waitcnt lgkmcnt(6)")
        for m in range(7): a(f"ds_read2_b32 v[{78+2*m}:{79+2*m}], v{62 if m<4 else 63} offset0:{64*(m&3)} offset1:{64*(m&3)+32}")
        a(f"""v_add_u32 v53, v54, v55
          v_add_u32 v6, v56, v57
          v_mov_b32 v57, 0
          v_lshl_add_u32 v54, v53, 4, v3
          s_waitcnt lgkmcnt(0)""")
        for m in range(14): a(f"v_add_u32 v{64+m}, v{64+m}, v{78+m}")
        for m in range(14): a(f"v_lshl_add_u32 v{64+m}, v{64+m}, 4, {m}")
        for m in range(0,14,2):
            a(f"v_cmp_lt_u32 vcc, v{64+m}, v54\nv_cmp_lt_u32 s[48:49], v{65+m}, v54\ns_nop 0\nv_addc_co_u32 v57, vcc, 0, v57, vcc\nv_addc_co_u32 v57, vcc, 0, v57, s[48:49]")
        a(f"""v_lshrrev_b32 v58, 1, v57
          v_and_b32 v57, 1, v57
          v_lshl_add_u32 v57, v57, 5, v4""")
    else:
        a(f"""s_cmp_ge_u32 s3, 7
          s_cbranch_scc1 K2_SKIP1
          ds_read2st64_b32 v[54:55], v52 offset0:0 offset1:{L_CNT2//256}
          ds_read2st64_b32 v[56:57], v52 offset0:8 offset1:{8+L_CNT2//256}
          s_waitcnt lgkmcnt(0)
          v_add_u32 v53, v54, v55
          v_add_u32 v6, v56, v57
          v_min_u32 v54, 63, v53
          v_lshlrev_b32 v54, 2, v54
          ds_add_rtn_u32 v55, v54, v18 offset:{L_HIST}
          s_waitcnt lgkmcnt(0)
          K2_SKIP1:
          s_barrier
          s_cmp_ge_u32 s3, 7
          s_cbranch_scc1 K2_SKIP2
          v_lshlrev_b32 v56, 2, v2
          ds_read_b32 v56, v56 offset:{L_HIST}
          s_waitcnt lgkmcnt(0)
          v_mov_b32 v57, v56""")
        wave_scan_u32(a,57)
        a(f"""v_sub_u32 v57, v57, v56
          ds_bpermute_b32 v57, v54, v57
          s_waitcnt lgkmcnt(0)
          v_add_u32 v57, v57, v55
          v_lshrrev_b32 v58, 6, v57
          v_and_b32 v57, 63, v57""")
    a(f"""v_lshlrev_b32 v59, 2, v58
      ds_max_u32 v59, v53 offset:{L_RMAX}
      ds_max_u32 v59, v6 offset:{L_RMAX+32}
      s_mov_b32 s48, {PB8[0]&0xffffffff:#x}
      s_mov_b32 s49, {PB8[0]>>32:#x}
      s_mov_b32 s13, {NR4[0]:#x}
      s_mov_b32 s15, {HS:#x}
      v_lshlrev_b32 v61, 1, v59
      v_lshrrev_b64 v[62:63], v61, s[66:67]
      v_lshrrev_b64 v[54:55], v61, s[48:49]
      v_lshrrev_b32 v61, v59, s68
      v_lshrrev_b32 v56, v59, s13
      v_lshlrev_b32 v63, 8, v57
      v_lshl_or_b32 v63, v58, 24, v63
      v_and_b32 v62, 0xff, v62
      v_and_b32 v54, 0xff, v54
      v_and_b32 v61, 15, v61
      v_and_b32 v56, 15, v56
      v_lshl_or_b32 v62, v62, 1, v63
      v_lshl_or_b32 v61, v61, 17, v62
      v_lshl_add_u32 v54, v54, 1, v63
      v_lshl_or_b32 v54, v56, 17, v54
      v_add_u32 v54, {96+(8<<24):#x}, v54
      ds_write2st64_b32 v52, v61, v54 offset0:{L_INFO//256} offset1:{L_INFO//256+8}
      v_lshrrev_b32 v62, v59, s15
      s_cmp_eq_u32 s11, 1
      s_cbranch_scc1 K2_NOSCALE
      s_cmp_eq_u32 s11, 0
      s_cbranch_scc1 K2_DST""")
    a.srd(52,8,9,56*2048,OFF_SCALE)
    a(f"""v_and_b32 v62, 15, v62
      v_lshlrev_b32 v62, 8, v62
      v_lshl_add_u32 v62, v57, 2, v62
      s_lshl_b32 s51, s10, 11
      v_lshlrev_b32 v16, 16, v16
      v_mul_f32 v16, v16, v16
      buffer_store_dword v16, v62, s[52:55], s51 offen
      s_branch K2_NOSCALE
      K2_DST:""")
    a.srd(52,8,9,56*1024,OFF_DST)
    a(f"""v_and_b32 v63, 3, v62
      v_bfe_u32 v62, v62, 2, 1
      v_lshlrev_b32 v62, 9, v62
      v_lshl_add_u32 v62, v57, 3, v62
      v_lshl_add_u32 v62, v63, 1, v62
      s_lshl_b32 s51, s10, 10
      buffer_store_short v60, v62, s[52:55], s51 offen
      K2_NOSCALE:
      s_waitcnt lgkmcnt(0)
      K2_SKIP2:
      s_barrier""")
    a(f"""v_and_b32 v52, 15, v2
      v_lshlrev_b32 v52, 2, v52
      ds_read_b32 v53, v52 offset:{L_RMAX}""")
    for j in range(8):
        a(f"s_mov_b64 exec, s[{30+2*j}:{31+2*j}]\nds_read_b32 v{36+j}, v{36+j} offset:{L_INFO}")
    a(f"""s_mov_b64 exec, -1
      s_mov_b32 s48, s68
      s_mov_b32 s49, {NR4[0]:#x}
      v_lshrrev_b64 v[54:55], v52, s[48:49]
      v_and_b32 v55, 15, v54
      v_mov_b32 v56, s64
      v_cmp_gt_u32 vcc, 32, v52
      s_nop 1
      v_cndmask_b32 v56, 0, v56, vcc
      s_waitcnt lgkmcnt(0)
      v_add3_u32 v53, v53, v56, 1
      v_lshrrev_b32 v53, 1, v53
      v_cmp_ne_u32 vcc, 0, v55
      s_nop 1
      v_cndmask_b32 v53, 0, v53, vcc
      v_sub_u32 v54, v53, v55
      v_max_i32 v54, 0, v54
      v_cmp_ne_u32 vcc, 0, v54
      v_mov_b32 v56, 0""")
    a.srd(56,8,9,OVF_SIZE,OFF_OVF)
    a(f"""s_cbranch_vccz K2_NOOVF
      v_mov_b32 v57, v54""")
    for sh in (1,2,4,8): a(f"s_nop 1\nv_add_u32_dpp v57, v57, v57 row_shr:{sh} row_mask:0xf bank_mask:0xf bound_ctrl:0")
    a(f"""s_nop 1
      v_readlane_b32 s60, v57, 15
      v_readlane_b32 s65, v57, 7
      v_sub_u32 v57, v57, v54
      s_lshl_b32 s60, s60, 8
      s_lshl_b32 s65, s65, 8
      s_cmp_lg_u32 s3, 0
      s_cbranch_scc1 K2_OV1
      s_mov_b64 exec, 1
      v_mov_b32 v58, s60
      v_mov_b32 v59, 0
      global_atomic_add v58, v59, v58, s[6:7] sc0 sc1
      s_waitcnt vmcnt(0)
      ds_write_b32 v59, v58 offset:{L_OVF+64}
      s_waitcnt lgkmcnt(0)
      s_mov_b64 exec, -1
      K2_OV1:
      s_barrier
      v_mov_b32 v59, 0
      ds_read_b32 v58, v59 offset:{L_OVF+64}
      s_waitcnt lgkmcnt(0)
      s_nop 0
      v_readfirstlane_b32 s61, v58
      v_lshl_add_u32 v56, v57, 8, v58
      ds_write_b32 v52, v56 offset:{L_OVF}
      v_lshlrev_b32 v59, 2, v0
      v_mov_b32 v62, {SENT_T:#x}
      v_mov_b32 v63, {SENT_O:#x}
      K2_OVF_FILL:
      v_cmp_gt_u32 s[48:49], s65, v59
      v_cmp_gt_u32 vcc, s60, v59
      s_nop 0
      v_cndmask_b32 v58, v63, v62, s[48:49]
      s_and_saveexec_b64 s[48:49], vcc
      s_cbranch_execz K2_OVF_FILL_E
      buffer_store_dword v58, v59, s[56:59], s61 offen
      s_mov_b64 exec, s[48:49]
      s_nop 0
      v_add_u32 v59, 4096, v59
      s_branch K2_OVF_FILL
      K2_OVF_FILL_E:
      s_mov_b64 exec, s[48:49]
      s_waitcnt vmcnt(0) lgkmcnt(0)
      s_barrier
      K2_NOOVF:
      s_cmp_lg_u32 s3, 8
      s_cbranch_scc1 K2_NOHDR""")
    a.srd(52,8,9,112*128,OFF_HDR)
    a(f"""s_mov_b32 s15, {HS:#x}
      v_and_b32 v57, 28, v52
      v_lshrrev_b32 v57, v57, s15
      v_and_b32 v58, 3, v57
      v_bfe_u32 v57, v57, 2, 1
      v_lshlrev_b32 v57, 7, v57
      v_lshl_add_u32 v57, v58, 2, v57
      s_lshl_b32 s62, s11, 4
      s_add_u32 s62, s62, 16
      v_mov_b32 v58, s62
      v_cmp_gt_u32 vcc, 32, v52
      s_lshl_b32 s51, s10, 8
      s_movk_i32 s62, 0xff
      s_cmp_eq_u32 s11, 0
      v_cndmask_b32 v58, 0, v58, vcc
      s_cselect_b32 s62, 0xffff, s62
      v_add_u32 v57, v57, v58
      s_mov_b32 exec_lo, s62
      s_mov_b32 exec_hi, 0
      buffer_store_dword v53, v57, s[52:55], s51 offen
      buffer_store_dword v56, v57, s[52:55], s51 offen offset:64
      s_mov_b64 exec, -1
      K2_NOHDR:""")
    def place(ent,info,rank,t0,t1,t2,tag):
        a(f"""v_and_b32 v{t0}, 0xff, v{info}
          v_bfe_u32 v{t2}, v{info}, 16, 6
          v_add_u32 v{t0}, v{t0}, v{rank}
          v_cmp_lt_u32 vcc, v{rank}, v{t2}
          v_lshrrev_b32 v{t1}, 3, v{t0}
          v_and_b32 v{t0}, 7, v{t0}
          v_lshlrev_b32 v{t0}, 1, v{t0}
          v_lshl_add_u32 v{t0}, v{t1}, 10, v{t0}
          v_bfe_u32 v{t1}, v{info}, 8, 6
          v_lshl_add_u32 v{t0}, v{t1}, 4, v{t0}
          s_and_saveexec_b64 s[48:49], vcc
          ds_write_b16 v{t0}, v{ent} offset:{L_STG}
          s_andn2_b64 exec, s[48:49], exec
          s_cbranch_execz K2_PL_{tag}
          v_lshrrev_b32 v{t0}, 22, v{info}
          v_and_b32 v{t0}, 0x3c, v{t0}
          ds_read_b32 v{t0}, v{t0} offset:{L_OVF}
          v_sub_u32 v{rank}, v{rank}, v{t2}
          v_lshrrev_b32 v{t2}, 1, v{rank}
          v_and_b32 v{rank}, 1, v{rank}
          s_waitcnt lgkmcnt(0)
          v_lshl_add_u32 v{t0}, v{t2}, 8, v{t0}
          v_lshl_add_u32 v{t0}, v{t1}, 2, v{t0}
          v_lshl_add_u32 v{t0}, v{rank}, 1, v{t0}
          buffer_store_short v{ent}, v{t0}, s[56:59], 0 offen
          K2_PL_{tag}:""")
    a(f"""s_cmp_ge_u32 s3, 7
      s_cbranch_scc1 K2_PL_N
      s_cmp_eq_u32 s11, 0
      s_cbranch_scc1 K2_PL_N
      v_mov_b32 v55, 0""")
    place(60,61,55,57,58,59,"N")
    for j in range(8):
        a(f"s_mov_b64 exec, s[{30+2*j}:{31+2*j}]")
        if j>=4: a(f"s_cbranch_execz K2_PL_{j}")
        a(f"v_add_u32 v{44+j}, s64, v{44+j}")
        place(28+j,36+j,44+j,57,58,59,str(j))
    a(f"""s_mov_b64 exec, -1
      s_cmp_eq_u64 s[46:47], 0
      s_cbranch_scc1 K2_NOSLOWB""")
    for k in range(4):
        a(f"""v_add_u32 v52, 64, v4
          v_add_u32 v53, 256, v{20+k}
          s_mov_b32 s13, {32*k*PE*4}
          K2_SB{k}:
          v_cmp_lt_u32 vcc, v52, v{24+k}
          s_and_saveexec_b64 s[62:63], vcc
          s_cbranch_execz K2_SB{k}_E
          buffer_load_dword v28, v53, s[20:23], s13 offen
          s_waitcnt vmcnt(0)
          v_lshrrev_b32 v54, 14, v28
          v_and_b32 v54, 0xffc, v54
          ds_add_rtn_u32 v44, v54, v18 offset:{L_CUR2}
          ds_read_b32 v45, v54
          ds_read_b32 v36, v54 offset:{L_INFO}
          s_waitcnt lgkmcnt(0)
          v_add3_u32 v44, v44, v45, s64""")
        place(28,36,44,57,58,59,f"S{k}")
        a(f"""s_mov_b64 exec, s[62:63]
          v_add_u32 v52, 32, v52
          v_add_u32 v53, 128, v53
          s_branch K2_SB{k}
          K2_SB{k}_E:
          s_mov_b64 exec, s[62:63]""")
    a(f"""K2_NOSLOWB:
      s_waitcnt lgkmcnt(0)
      s_barrier
      s_cmp_ge_u32 s3, 12
      s_cbranch_scc1 K2_END
      ds_read_b128 v[8:11], v7 offset:{L_STG}
      ds_read_b128 v[12:15], v7 offset:{L_STG+12288}
      v_lshlrev_b32 v16, 4, v2""")
    a.srd(52,8,9,112*BLOBSZ,OFF_BLOB)
    a(f"""s_cmp_ge_u32 s3, 6
      s_cselect_b32 s48, 6, 0
      s_cselect_b32 s49, {BLOBSZ}, 0
      s_sub_u32 s48, s3, s48
      s_mul_i32 s51, s10, {2*BLOBSZ}
      s_add_u32 s51, s51, s49
      s_lshl_b32 s49, s48, 10
      s_add_u32 s51, s51, s49
      s_lshl_b32 s62, s70, 10
      s_add_u32 s62, s62, s51
      s_waitcnt lgkmcnt(0)
      s_cmp_ge_u32 s48, s69
      s_cbranch_scc1 K2_NOMAIN
      buffer_store_dwordx4 v[8:11], v16, s[52:55], s62 offen
      K2_NOMAIN:
      s_cmp_lg_u32 s11, 0
      s_cbranch_scc1 K2_END
      s_cmp_ge_u32 s48, {UNITS[0]}
      s_cbranch_scc1 K2_END
      buffer_store_dwordx4 v[12:15], v16, s[52:55], s51 offen
      K2_END:
      s_endpgm""")
    import k1
    k1.weights_stage2(a,NBIN)
    return a.text(), desc(name,96 if SORT=="class" else 64,72)
```

```python
from common import *
K3_LDS=LDS_CNT+128
NHOP=7
DPT=int(os.environ.get("DPT",2))
V_T0=0; V_T1=1
V_DP=2
V_IDX=4
V_SC=84
V_D=88
V_ACC=92
V_A=108
V_PK=112
V_L16=114
V_B=116
NV3=V_B+4*(DPT+1)
assert NV3<=128
S_TAB=12
S_OUT=16
S_BLOB=72
S_OVF=24
S_FLAG=28
S_HDR=32
S_HOP=20; S_B0=21; S_B1=22; S_OB=23; S_T=64
SCD='' if 'pd' in os.environ.get('PLAIN','') else ' sc1'
SCF='' if 'pf' in os.environ.get('PLAIN','') else ' sc1'
PLD=os.environ.get('PLD','sc1')
SPIN=2000000
SLP=int(os.environ.get('SLP',2))
C_E,C_D,C_4,C_L,C_PA,C_PB,G_S0,G_S1,G_S2,C_0,C_1,C_P,C_E2=0,4,8,12,16,20,24,28,32,36,40,48,80
NE=2
S_PC=11

def gen_k3(name,nhop=NHOP):
    a=Asm(); a.l.append(head(name))
    X=os.environ.get("K3X","")
    a(f"""s_cmp_ge_u32 s2, 256
      s_cbranch_scc1 K3_END
      s_load_dwordx2 s[8:9], s[0:1], 88
      v_lshrrev_b32 v1, 6, v0
      v_and_b32 v2, 63, v0
      s_and_b32 s4, s2, 7
      v_readfirstlane_b32 s3, v1
      s_lshr_b32 s5, s2, 6
      s_lshl_b32 s5, s5, 3
      s_add_u32 s4, s4, s5
      s_bfe_u32 s5, s2, 0x30003
      v_lshlrev_b32 v{V_L16}, 4, v2
      s_mul_i32 s6, s4, {GSTR}
      s_mul_i32 s7, s5, 25088
      s_mov_b32 s{S_B0}, 0
      s_mov_b32 s{S_B1}, {TB_}
      s_mov_b32 s{S_OB}, {LDS_OUT}
      s_mov_b32 s{S_HOP}, 0
      s_waitcnt lgkmcnt(0)
      s_add_u32 s{S_TAB}, s8, s6
      s_addc_u32 s{S_TAB+1}, s9, 0
      s_mov_b32 s{S_TAB+2}, {GSTR}
      s_mov_b32 s{S_TAB+3}, 0x20000""")
    def dma(off=0): a(f"buffer_load_dwordx4 v{V_L16}, s[{S_TAB}:{S_TAB+3}], s{S_T} offen"+(f" offset:{off}" if off else "")+" sc1 lds")
    def seg_fill(rreg,seg,base,i0,n):
        a(f"""s_cmp_ge_u32 s{rreg}, s5
          s_addc_u32 s{S_T}, s{rreg}, 0
          s_mul_i32 s{S_T}, s{S_T}, 25088
          s_add_u32 s{S_T}, s{S_T}, {SEG[seg]*8+i0*1024}
          s_mul_i32 s{S_T+1}, s{rreg}, {TST*8}
          s_add_u32 s{S_T+1}, s{S_T+1}, s{base}""")
        if i0: a(f"s_add_u32 s{S_T+1}, s{S_T+1}, {i0*1024}")
        for i in range(n):
            if i%4==0:
                if i: a(f"s_add_u32 s{S_T}, s{S_T}, 4096\ns_add_u32 s{S_T+1}, s{S_T+1}, 4096")
                a(f"s_mov_b32 m0, s{S_T+1}\ns_nop 0")
            dma(1024*(i%4))
    a(f"""s_lshl_b32 s{S_T+1}, s3, 10
      s_add_u32 s{S_T}, s7, s{S_T+1}
      s_add_u32 s{S_T+1}, s{S_T+1}, {LDS_OUT}
      s_mov_b32 m0, s{S_T+1}
      s_nop 0"""); dma()
    a(f"""s_cmp_ge_u32 s3, 9
      s_cbranch_scc1 K3_I1
      s_add_u32 s{S_T}, s{S_T}, 16384
      s_add_u32 m0, s{S_T+1}, 16384
      s_cmp_lg_u32 s3, 8
      s_cbranch_scc1 K3_I0
      s_mov_b32 exec_hi, 0
      K3_I0:"""); dma()
    a(f"""s_mov_b64 exec, -1
      K3_I1:
      s_cmp_ge_u32 s3, 14
      s_cbranch_scc1 K3_I3
      s_lshr_b32 s10, s3, 1
      s_bitcmp1_b32 s3, 0
      s_cbranch_scc1 K3_I2""")
    seg_fill(10,0,S_B0,0,4)
    a("s_branch K3_I3\nK3_I2:")
    seg_fill(10,0,S_B0,4,3)
    a(f"""K3_I3:
      s_add_u32 s{S_OUT}, s{S_TAB}, s7
      s_addc_u32 s{S_OUT+1}, s{S_TAB+1}, 0
      s_add_u32 s{S_OUT}, s{S_OUT}, {TSTR}
      s_addc_u32 s{S_OUT+1}, s{S_OUT+1}, 0
      s_mov_b32 s{S_OUT+2}, 25088
      s_mov_b32 s{S_OUT+3}, 0x20000
      s_cmp_ge_u32 s3, 14
      s_cbranch_scc1 K3_HELPER""")
    def flag_srd():
        a(f"""s_and_b32 s10, s2, 7
          s_lshr_b32 s11, s2, 6
          s_lshl_b32 s11, s11, 3
          s_add_u32 s10, s10, s11
          s_lshl_b32 s10, s10, 11
          s_add_u32 s{S_FLAG}, s8, s10
          s_addc_u32 s{S_FLAG+1}, s9, 0
          s_add_u32 s{S_FLAG}, s{S_FLAG}, {OFF_FLAG:#x}
          s_addc_u32 s{S_FLAG+1}, s{S_FLAG+1}, 0
          s_mov_b32 s{S_FLAG+2}, 2048
          s_mov_b32 s{S_FLAG+3}, 0x20000
          s_lshl_b32 s7, s5, 7""")
    def arrive_flag(c,mult,off,fadd):
        l=a.label("AF")
        a(f"""v_mov_b32 v{V_T0}, {LDS_CNT}
          v_mov_b32 v{V_T1}, 1
          s_add_u32 s{S_T+2}, s{S_HOP}, {fadd}
          s_mul_i32 s{S_T+3}, s{S_HOP}, {mult}
          s_mov_b64 exec, 1
          ds_add_rtn_u32 v{V_T1}, v{V_T0}, v{V_T1} offset:{c}
          s_add_u32 s{S_T+3}, s{S_T+3}, {mult-1}
          s_waitcnt lgkmcnt(0)
          v_cmp_eq_u32 vcc, s{S_T+3}, v{V_T1}
          v_mov_b32 v{V_T1}, s{S_T+2}
          s_cbranch_vccz {l}
          buffer_store_dword v{V_T1}, off, s[{S_FLAG}:{S_FLAG+3}], s7 offset:{off}{SCF}
          {l}:
          s_mov_b64 exec, -1""")
    def poll(off,vi,vv,vr,hopadd):
        l=a.label("PO")
        ld=lambda r: a(f"buffer_load_dword v{r}, v{vi}, s[{S_FLAG}:{S_FLAG+3}], 0 offen offset:{off} {PLD}")
        a(f"""s_add_u32 s{S_T}, s{S_HOP}, {hopadd}
          v_mov_b32 v{vv}, s{S_T}
          s_mov_b32 s{S_T}, {SPIN}""")
        if os.environ.get("P1","1")=="1":
            a(f"{l}:"); ld(vr)
            a(f"""s_waitcnt vmcnt(0)
              v_cmp_gt_u32 vcc, v{vv}, v{vr}
              s_sub_u32 s{S_T}, s{S_T}, 1
              s_cbranch_vccz {l}_X
              s_cmp_gt_i32 s{S_T}, 0
              s_cbranch_scc1 {l}
              {l}_X:""")
            return
        ld(vr)
        a(f"s_sleep {SLP}\n{l}:")
        for k in range(2):
            ld(vr+1-k)
            a(f"""s_waitcnt vmcnt(1)
              v_cmp_gt_u32 vcc, v{vv}, v{vr+k}
              s_sub_u32 s{S_T}, s{S_T}, 1
              s_cbranch_vccz {l}_X""")
        a(f"""s_cmp_gt_i32 s{S_T}, 0
          s_cbranch_scc1 {l}
          {l}_X:""")
    def arrive(c):
        a(f"""v_mov_b32 v{V_T0}, {LDS_CNT}
          v_mov_b32 v{V_T1}, 1
          s_mov_b64 exec, 1
          ds_add_u32 v{V_T0}, v{V_T1} offset:{c}
          s_mov_b64 exec, -1""")
    def spin(c,mult,hadd=1):
        l=a.label("SP")
        a(f"""v_mov_b32 v{V_T0}, {LDS_CNT}
          s_add_u32 s{S_T+2}, s{S_HOP}, {hadd}
          s_mul_i32 s{S_T+2}, s{S_T+2}, {mult}
          {l}:
          ds_read_b32 v{V_T1}, v{V_T0} offset:{c}
          s_waitcnt lgkmcnt(0)
          v_readfirstlane_b32 s{S_T+3}, v{V_T1}
          s_cmp_ge_u32 s{S_T+3}, s{S_T+2}
          s_cbranch_scc1 {l}_E
          s_sleep 1
          s_branch {l}
          {l}_E:""")
    def handover(call,gate,k):
        l=a.label("HO")
        a(f"""v_mov_b32 v{V_T0}, s{S_PC}
          v_writelane_b32 v{V_T0}, s{S_T+4+k}, 1
          v_mov_b32 v{V_T1}, 1
          s_mul_i32 s{S_T+2}, s{S_HOP}, 4
          s_add_u32 s{S_T+2}, s{S_T+2}, {2*(k+1)}
          s_add_u32 s{S_T+3}, s{S_HOP}, 1
          s_lshl_b32 s{S_T+3}, s{S_T+3}, 1
          s_mov_b64 exec, 3
          s_waitcnt lgkmcnt(0)
          ds_add_u32 v{V_T0}, v{V_T1}
          v_mov_b32 v{V_PK}, s{S_T+2}
          v_writelane_b32 v{V_PK}, s{S_T+3}, 1
          v_writelane_b32 v{V_T0}, s{S_T+6+k}, 1
          {l}:
          ds_read_b32 v{V_T1}, v{V_T0}
          s_waitcnt lgkmcnt(0)
          v_cmp_gt_u32 vcc, v{V_PK}, v{V_T1}
          s_nop 0
          s_cbranch_vccz {l}_E
          s_sleep 1
          s_branch {l}
          {l}_E:
          s_mov_b64 exec, -1""")
    m={0:0,1:8,2:3,3:9,4:2,5:10,6:5,7:11,8:4,9:12,10:7,11:13,12:6,13:1}
    lo=sum(m[w]<<(4*w) for w in range(8)); hi=sum(m[w]<<(4*(w-8)) for w in range(8,14))
    a(f"""s_mov_b32 s10, {lo:#x}
      s_mov_b32 s11, {hi:#x}
      s_lshl_b32 s6, s3, 2
      s_lshr_b64 s[10:11], s[10:11], s6
      s_and_b32 s4, s10, 15
      s_mul_i32 s6, s5, 14
      s_add_u32 s6, s6, s4
      s_lshl_b32 s7, s6, 7
      s_add_u32 s10, s8, s7
      s_addc_u32 s11, s9, 0
      s_add_u32 s10, s10, {OFF_HDR:#x}
      s_addc_u32 s11, s11, 0
      s_load_dwordx16 s[{S_HDR}:{S_HDR+15}], s[10:11], 0
      s_load_dwordx16 s[{S_HDR+16}:{S_HDR+31}], s[10:11], 64
      s_mul_i32 s7, s6, {BLOBSZ}
      s_add_u32 s{S_BLOB}, s8, s7
      s_addc_u32 s{S_BLOB+1}, s9, 0
      s_add_u32 s{S_BLOB}, s{S_BLOB}, {OFF_BLOB:#x}
      s_addc_u32 s{S_BLOB+1}, s{S_BLOB+1}, 0
      s_mov_b32 s{S_BLOB+2}, {BLOBSZ}
      s_mov_b32 s{S_BLOB+3}, 0x20000""")
    def load_blob(u0,u1):
        for u in range(u0,u1):
            r=V_IDX+4*u
            if u%4==0 or u==u0: a(f"s_mov_b32 s{S_T}, {(u//4)*4096}")
            a(f"buffer_load_dwordx4 v[{r}:{r+3}], v{V_L16}, s[{S_BLOB}:{S_BLOB+3}], s{S_T} offen offset:{(u%4)*1024}")
    load_blob(0,UOFF[2])
    a(f"""s_lshl_b32 s7, s6, 9
      s_add_u32 s{S_FLAG}, s8, s7
      s_addc_u32 s{S_FLAG+1}, s9, 0
      s_add_u32 s{S_FLAG}, s{S_FLAG}, {OFF_DST:#x}
      s_addc_u32 s{S_FLAG+1}, s{S_FLAG+1}, 0
      s_mov_b32 s{S_FLAG+2}, 512
      s_mov_b32 s{S_FLAG+3}, 0x20000
      v_lshlrev_b32 v0, 3, v2
      v_and_b32 v{V_PK}, 15, v2
      v_lshrrev_b32 v1, 4, v2
      v_lshlrev_b32 v{V_PK+1}, 2, v2
      buffer_load_dwordx2 v[{V_DP}:{V_DP+1}], v0, s[{S_FLAG}:{S_FLAG+3}], 0 offen""")
    a.srd(S_OVF,8,9,OVF_SIZE,OFF_OVF)
    a(f"""v_lshlrev_b32 v1, 2, v1
      v_sub_u32 v{V_PK}, v{V_PK}, v1
      v_mov_b32 v0, 0x3f80
      v_mov_b32 v1, 0x3f800000
      v_cmp_eq_u32 s[64:65], 0, v{V_PK}
      v_cmp_eq_u32 s[66:67], 1, v{V_PK}
      v_cmp_eq_u32 s[10:11], 2, v{V_PK}
      v_cmp_eq_u32 vcc, 3, v{V_PK}
      v_cndmask_b32 v{V_A}, 0, v0, s[64:65]
      v_cndmask_b32 v{V_A+1}, 0, v0, s[10:11]
      v_cndmask_b32 v{V_A}, v{V_A}, v1, s[66:67]
      v_cndmask_b32 v{V_A+1}, v{V_A+1}, v1, vcc
      v_mov_b32 v{V_A+2}, v{V_A}
      v_mov_b32 v{V_A+3}, v{V_A+1}
      s_waitcnt vmcnt(0) lgkmcnt(0)
      s_barrier""")
    load_blob(UOFF[2],20)
    a(f"""s_lshl_b32 s7, s6, 10
      s_add_u32 s{S_FLAG}, s8, s7
      s_addc_u32 s{S_FLAG+1}, s9, 0
      s_add_u32 s{S_FLAG}, s{S_FLAG}, {OFF_SCALE:#x}
      s_addc_u32 s{S_FLAG+1}, s{S_FLAG+1}, 0
      s_mov_b32 s{S_FLAG+2}, 1024""")
    for s_ in range(4): a(f"buffer_load_dword v{V_SC+s_}, v{V_PK+1}, s[{S_FLAG}:{S_FLAG+3}], 0 offen offset:{256*s_}")
    flag_srd()
    a(f"""s_lshr_b32 s{S_PC}, s4, 1
      s_lshl_b32 s{S_PC}, s{S_PC}, 2
      s_add_u32 s{S_PC}, s{S_PC}, {LDS_CNT+C_P}
      s_mov_b32 s{S_T+4}, {LDS_CNT+C_0}
      s_mov_b32 s{S_T+5}, {LDS_CNT+C_1}
      s_mov_b32 s{S_T+6}, {LDS_CNT+G_S1}
      s_mov_b32 s{S_T+7}, {LDS_CNT+G_S2}""")
    NB=DPT+1
    def mf(acc,b,first):
        c="0" if first else f"v[{acc}:{acc+3}]"
        a(f"v_mfma_f32_16x16x32_bf16 v[{acc}:{acc+3}], v[{V_A}:{V_A+3}], v[{b}:{b+3}], {c}")
    def ad(d,ireg,w,base): a(f"v_mad_u32_u16 v{d}, v{ireg}, 8, s{base}"+(" op_sel:[1,0,0,0]" if w else ""))
    def issue(ireg,b,base,lo=None):
        if lo is None: ad(b,ireg,0,base)
        else: ad(lo,ireg,0,S_OB)
        ad(b+2,ireg,1,base)
        if "lin" in X: a(f"ds_read_b64 v[{b}:{b+1}], v{V_L16}\nds_read_b64 v[{b+2}:{b+3}], v{V_L16}"); return
        a(f"ds_read_b64 v[{b}:{b+1}], v{b if lo is None else lo}\nds_read_b64 v[{b+2}:{b+3}], v{b+2}")
    def accq(p,slot): return V_ACC+4*(slot if p<2 else slot&1)
    def flush(p,slot):
        acc=accq(p,slot); d=V_D+slot
        if p==1: ad(d,V_DP+(slot>>1),slot&1,S_OB)
        if p==3:
            for i in range(4): a(f"v_mul_f32 v{acc+i}, v{V_SC+slot}, v{acc+i}")
        a(f"""v_cvt_pk_bf16_f32 v{V_PK}, v{acc}, v{acc+1}
          v_cvt_pk_bf16_f32 v{V_PK+1}, v{acc+2}, v{acc+3}
          ds_write_b64 v{d}, v[{V_PK}:{V_PK+1}]""")
    PR=int(os.environ.get("PRIO","4"))
    LLO=int(os.environ.get("LLO",0)); LSW=float(os.environ.get("LSW",0.5)); LHI=int(os.environ.get("LHI",4)); LE=int(os.environ.get("LE",4))
    def phase(h,p,side,early=None):
        H=S_HDR+4*p; I=V_IDX+4*UOFF[p]; base=[S_OB,S_B0,S_B1,S_B0][p]
        RB=[V_B+4*k for k in range(NB)]+([V_ACC+8,V_ACC+12] if p>=2 else [])
        seq=[]
        for slot,(r,pb,n) in enumerate(LAY[p][h]):
            cap=CAPS[p][r]; assert cap<=n
            for k in range(cap): seq.append((I+pb+k,slot,k==0,k==cap-1))
        n=len(seq)
        if p<2: L=lambda i:DPT; prios={0:2,n//3+1:1,2*(n//3+1):0}
        elif early: L=lambda i:LE; prios={0:2}
        else: L=lambda i:(LLO if i<LSW*n else LHI); prios={0:1,n//2:0}
        q=[]; ip=0; pend=None; mark=0
        for i,(ireg,slot,first,last) in enumerate(seq):
            if PR and i in prios: a(f"s_setprio {prios[i]}")
            while ip<min(n,i+1+L(i)):
                r_,s_,f_,_=seq[ip]
                issue(r_,RB[ip%len(RB)],base,V_D+s_ if (f_ and p>1) else None); q.extend([ip,ip]); ip+=1
            if i in q:
                k=max(x for x,t in enumerate(q) if t==i); a(f"s_waitcnt lgkmcnt({len(q)-1-k})"); del q[:k+1]
            mf(accq(p,slot),RB[i%len(RB)],first and p!=1)
            if pend is not None:
                nb=len([x for x in a.l[mark:] if not x.endswith(":")])
                if p==1 and pend==0: spin(C_L,15); q.clear()
                elif nb<8: a(f"s_nop {8-nb-1}")
                flush(p,pend); q.append("w"); pend=None
            if last:
                r,pb,nr=LAY[p][h][slot]; cap=CAPS[p][r]; tag=f"{h}{p}{slot}{'e' if early else ''}"
                mark=len(a.l)
                a(f"s_cmp_gt_u32 s{H+slot}, {cap}\ns_cbranch_scc1 K3_X{tag}\nK3_R{tag}:")
                side.append((tag,H+slot,I+pb,cap,nr,accq(p,slot),RB[i%len(RB)],base))
                if p>0: pend=slot
        if p>0: a("s_nop 5"); flush(p,pend)
    def sidepath(tag,np_,I,cap,n,acc,b,base):
        a(f"K3_X{tag}:")
        for k in range(cap,n):
            issue(I+k,b,base); a("s_waitcnt lgkmcnt(0)"); mf(acc,b,False)
            a(f"s_cmp_le_u32 s{np_}, {k+1}\ns_cbranch_scc1 K3_Y{tag}")
        a(f"""s_mov_b32 s{S_T}, s{np_+16}
          s_sub_u32 s{S_T+1}, s{np_}, {n}
          v_lshrrev_b32 v{V_T0}, 2, v{V_L16}
          K3_O{tag}:
          buffer_load_dword v{V_T1}, v{V_T0}, s[{S_OVF}:{S_OVF+3}], s{S_T} offen
          s_add_u32 s{S_T}, s{S_T}, 256
          s_waitcnt vmcnt(0)""")
        issue(V_T1,b,base); a("s_waitcnt lgkmcnt(0)"); mf(acc,b,False)
        a(f"""s_sub_u32 s{S_T+1}, s{S_T+1}, 1
          s_cmp_lg_u32 s{S_T+1}, 0
          s_cbranch_scc1 K3_O{tag}
          K3_Y{tag}:
          s_branch K3_R{tag}""")
    def readout(c0reg,two,climit):
        l=a.label("RO")
        a(f"""s_lshl_b32 s{S_T}, s{c0reg}, 10
          v_add_u32 v{V_T0}, s{S_T}, v{V_L16}
          v_add_u32 v{V_T1}, {LDS_OUT}, v{V_T0}
          ds_read_b128 v[{V_B}:{V_B+3}], v{V_T1}
          s_cmp_ge_u32 s{c0reg}, {climit-two}
          s_cbranch_scc1 {l}
          ds_read_b128 v[{V_B+4}:{V_B+7}], v{V_T1} offset:{two*1024}
          s_mov_b32 s{S_T+1}, {two*1024}
          s_waitcnt lgkmcnt(0)
          buffer_store_dwordx4 v[{V_B+4}:{V_B+7}], v{V_T0}, s[{S_OUT}:{S_OUT+3}], s{S_T+1} offen{SCD}
          {l}:
          s_waitcnt lgkmcnt(0)
          buffer_store_dwordx4 v[{V_B}:{V_B+3}], v{V_T0}, s[{S_OUT}:{S_OUT+3}], 0 offen{SCD}""")
    side=[]
    st=Stamper(a,"k3" in STAMP)
    a("K3_GOWN:\ns_bitcmp1_b32 s4, 0\ns_cbranch_scc1 K3_GB")
    for h in range(2):
        if h==1: a("K3_GB:")
        st.n=0
        phase(h,0,side)
        a("s_waitcnt vmcnt(0)"); st()
        arrive(C_L); spin(G_S0,1); st()
        phase(h,1,side); st(); handover(None,None,0); st()
        a(f"s_cmp_lt_u32 s4, 4\ns_cbranch_scc1 K3_EA{h}")
        for e in (0,1):
            if e: a(f"K3_EA{h}:"); st.n=4
            phase(h,2,side,e); st(); handover(None,None,1); st()
            phase(h,3,side,e)
            a(f"s_waitcnt lgkmcnt(0)"); st()
            if not (h==1 and e==1): a("s_branch K3_GE")
    a("K3_GE:")
    arrive(C_4)
    a("s_cmp_ge_u32 s4, 4\ns_cbranch_scc1 K3_LATE")
    a(f"""s_setprio 3
      s_lshr_b32 s10, s4, 1
      s_lshl_b32 s{S_T}, s10, 2
      s_add_u32 s{S_T}, s{S_T}, {LDS_CNT+C_E2}
      v_mov_b32 v{V_T0}, s{S_T}
      s_mov_b64 exec, 1
      ds_add_rtn_u32 v{V_T1}, v{V_T0}, v{V_T1}
      s_mov_b64 exec, -1
      s_mul_i32 s{S_T}, s10, 3584
      v_add_u32 v{V_B+8}, s{S_T}, v{V_L16}
      v_add_u32 v{V_B+9}, {LDS_OUT}, v{V_B+8}
      s_waitcnt lgkmcnt(0)
      v_readfirstlane_b32 s{S_T+1}, v{V_T1}
      s_bitcmp1_b32 s{S_T+1}, 0
      s_cbranch_scc0 K3_E2""")
    for k in range(4): a(f"ds_read_b128 v[{V_ACC+4*k}:{V_ACC+4*k+3}], v{V_B+9} offset:{1024*k}")
    for k in range(4):
        a(f"s_waitcnt lgkmcnt({3-k})")
        if k==3: a("s_mov_b32 exec_hi, 0")
        a(f"buffer_store_dwordx4 v[{V_ACC+4*k}:{V_ACC+4*k+3}], v{V_B+8}, s[{S_OUT}:{S_OUT+3}], 0 offen offset:{1024*k}{SCD}")
    a("s_mov_b64 exec, -1\ns_waitcnt vmcnt(0)"); arrive(C_D)
    a("K3_E2:\ns_setprio 0\nK3_LATE:"); st()
    a(f"s_cmp_eq_u32 s{S_HOP}, {nhop-1}\ns_cbranch_scc1 K3_END")
    spin(C_4,14); st()
    a(f"""s_add_u32 s{S_HOP}, s{S_HOP}, 1
      s_add_u32 s{S_OUT}, s{S_OUT}, {TSTR}
      s_addc_u32 s{S_OUT+1}, s{S_OUT+1}, 0
      s_mov_b32 s10, s{S_B0}
      s_mov_b32 s{S_B0}, s{S_B1}
      s_mov_b32 s{S_B1}, s10"""); st()
    if st.on:
        a(f"s_cmp_lg_u32 s{S_HOP}, 5\ns_cbranch_scc1 K3_GOWN\ns_waitcnt lgkmcnt(0)")
        st.dump(77,0,0); st.dump(77,12,16); a("s_mov_b64 exec, -1")
    a("s_branch K3_GOWN")
    for x in side: sidepath(*x)
    a("K3_HELPER:\ns_setprio 3"); flag_srd()
    a(f"""v_mov_b32 v9, 0
      v_lshlrev_b32 v10, 2, v2
      v_add_u32 v11, {ZT*8}, v10
      ds_write_b32 v11, v9
      v_add_u32 v11, {TB_+ZT*8}, v10
      ds_write_b32 v11, v9
      v_add_u32 v11, {LDS_OUT+ZO*8}, v10
      ds_write_b32 v11, v9
      v_and_b32 v11, 0x7c, v10
      v_add_u32 v11, {LDS_CNT}, v11
      ds_write_b32 v11, v9
      v_and_b32 v11, 7, v2
      v_lshlrev_b32 v11, 7, v11
      s_getreg_b32 s4, hwreg(HW_REG_XCC_ID, 0, 4)
      s_mov_b32 s6, 0
      s_add_u32 s4, s4, 1
      v_mov_b32 v12, s4
      s_cmp_lg_u32 s3, 15
      s_cbranch_scc1 K3_HI
      s_mov_b64 exec, 1
      buffer_store_dword v12, off, s[{S_FLAG}:{S_FLAG+3}], s7 offset:64 sc1
      s_mov_b64 exec, -1
      K3_HI:
      s_waitcnt vmcnt(0) lgkmcnt(0)
      s_barrier""")
    a("s_cmp_eq_u32 s3, 14\ns_cbranch_scc1 K3_H14I"); arrive(G_S0); a("s_branch K3_H15\nK3_H14I:"); arrive(C_L); a("s_branch K3_H14GO")
    def fill(seg,base,ranks):
        n=(7,9,9)[seg]
        for r in ranks:
            a(f"s_mov_b32 s10, {r}"); seg_fill(10,seg,base,0,n)
    def setflag(off,hadd):
        l=a.label("SF")
        a(f"""s_add_u32 s10, s{S_HOP}, {hadd}
          v_mov_b32 v9, s10
          s_mov_b64 exec, 1
          s_cmp_eq_u32 s6, 1
          s_cbranch_scc1 {l}
          buffer_store_dword v9, off, s[{S_FLAG}:{S_FLAG+3}], s7 offset:{off} sc1
          s_branch {l}_E
          {l}:
          buffer_store_dword v9, off, s[{S_FLAG}:{S_FLAG+3}], s7 offset:{off}
          {l}_E:
          s_mov_b64 exec, -1""")
    def idcheck():
        l=a.label("ID")
        a(f"""s_cmp_lg_u32 s{S_HOP}, 0
          s_cbranch_scc1 {l}_E
          s_mov_b32 s{S_T}, {SPIN}
          {l}:
          buffer_load_dword v12, v11, s[{S_FLAG}:{S_FLAG+3}], 0 offen offset:64 sc1
          s_sub_u32 s{S_T}, s{S_T}, 1
          s_cmp_eq_u32 s{S_T}, 0
          s_waitcnt vmcnt(0)
          s_cbranch_scc1 {l}_E
          v_cmp_eq_u32 vcc, 0, v12
          s_nop 0
          s_cbranch_vccnz {l}
          v_cmp_ne_u32 vcc, s4, v12
          s_nop 0
          s_cbranch_vccnz {l}_E
          s_mov_b32 s6, {0 if os.environ.get("NOFAST") else 1}
          {l}_E:""")
    def nexthop():
        a(f"""s_add_u32 s{S_HOP}, s{S_HOP}, 1
          s_mov_b32 s10, s{S_B0}
          s_mov_b32 s{S_B0}, s{S_B1}
          s_mov_b32 s{S_B1}, s10
          s_add_u32 s{S_TAB}, s{S_TAB}, {TSTR}
          s_addc_u32 s{S_TAB+1}, s{S_TAB+1}, 0""")
    st=Stamper(a,"k3" in STAMP)
    a("K3_H14:"); spin(C_4,14,0); st()
    a(f"v_add_u32 v16, {LDS_OUT+7168}, v{V_L16}\nv_add_u32 v17, 7168, v{V_L16}")
    for k in range(18):
        if k>=12: a(f"s_waitcnt lgkmcnt(11)")
        a(f"ds_read_b128 v[{20+4*k}:{23+4*k}], v16 offset:{1024*k}")
    for k in range(18):
        if k%4==0: a(f"s_mov_b32 s10, {1024*k}")
        if k>=6: a(f"s_waitcnt lgkmcnt({17-k})")
        a(f"buffer_store_dwordx4 v[{20+4*k}:{23+4*k}], v17, s[{S_OUT}:{S_OUT+3}], s10 offen offset:{1024*(k%4)}{SCD}")
    a(f"""s_cmp_eq_u32 s{S_HOP}, {nhop}
      s_cbranch_scc1 K3_END
      s_add_u32 s{S_OUT}, s{S_OUT}, {TSTR}
      s_addc_u32 s{S_OUT+1}, s{S_OUT+1}, 0""")
    arrive(C_L); st()
    a("s_waitcnt vmcnt(0)"); setflag(1024,0); st()
    poll(1024,11,9,12,0); arrive(C_PB)
    a("K3_H14GO:"); st()
    fill(1,S_B1,range(4)); st(); a("s_waitcnt vmcnt(0)"); st(); arrive(G_S1)
    spin(C_0,14); st()
    fill(2,S_B0,range(4)); st(); a("s_waitcnt vmcnt(0)"); st(); arrive(G_S2)
    idcheck()
    nexthop()
    if st.on:
        a(f"s_cmp_lg_u32 s{S_HOP}, 5\ns_cbranch_scc1 K3_H14S\ns_waitcnt lgkmcnt(0)")
        st.dump(77,14,48); a(f"s_mov_b64 exec, -1\nK3_H14S:")
    a("s_branch K3_H14")
    st=Stamper(a,"k3" in STAMP)
    a("K3_H15:"); spin(C_PB,1,0); fill(1,S_B1,range(4,7)); a("s_waitcnt vmcnt(0)"); arrive(G_S1)
    spin(C_0,14); st()
    fill(2,S_B0,range(4,7)); st(); a("s_waitcnt vmcnt(0)"); st(); arrive(G_S2)
    a(f"s_cmp_eq_u32 s{S_HOP}, {nhop-1}\ns_cbranch_scc1 K3_END")
    idcheck()
    spin(C_D,NE); st(); setflag(0,1); poll(0,11,9,12,1); st(); spin(C_1,14)
    nexthop()
    fill(0,S_B0,range(7)); st()
    a("s_waitcnt vmcnt(0)"); st(); arrive(G_S0)
    if st.on:
        a(f"s_cmp_lg_u32 s{S_HOP}, 5\ns_cbranch_scc1 K3_H15\ns_waitcnt lgkmcnt(0)")
        st.dump(77,15,32); a(f"s_mov_b64 exec, -1")
    a("s_branch K3_H15")
    a("K3_END:\ns_endpgm")
    return a.text(), desc(name,128,102 if STAMP else 80)
```

```python
from common import *
from sched import *
from k1 import f2u
import math
TOK=69632
CNT=TOK+65536
K4_LDS=CNT+64
NRING=int(os.environ.get("NRING",6))
GP=[0,26]; VX=[52,92]; UP=[132,148]; ACC=[164,172]
EPQ=[180,184]
O2=[188,189]
AL=192
GO=[192,172]
Y,GW,AK,D,DE,T0,T1,T2,T3=196,197,198,199,200,201,202,203,204
vW,vW2=205,206; TB=[207,208]; TR=[209,210]; vBP,vALM,vXS,vVM,vDMA,vXG,vXL,vDI,vOUT,vDG,DN=211,212,213,214,215,216,217,218,219,220,221
X4=222
vBP1=226; vPF=227
WR=228
NV=WR+4*NRING
S_G=12; S_X=16; S_D=20; S_O=24; S_WF=28
S_N0=32
S_MA=44; S_MC=46; S_C128=48; S_EPS=49; S_L2E=50; S_WS=51; S_CNT=52
LOC=os.environ.get('LOCAL','')=='1'
GS4,TS4,NSH=(128,4096,11) if LOC else (GSTR,TSTR,3)
def chunk(t,c): return GP[t]+2+6*c
def Pc(t,i): return GP[t]+6*i
def gE(t,b): return VX[t]+10*(b>>1)+(0 if b%2==0 else 8)
def VP(t,b): return VX[t]+10*(b>>1)+(2 if b%2==0 else 6)
def SEL(t,q): return VX[t]+10*q+4
ID="quad_perm:[0,1,2,3]"

def body(NT,hook=None,hook2=None):
    B=Block(); T=range(NT)
    A0=lambda t:ACC[t]; A1=lambda t:ACC[t]+4
    nfr=[0]
    def frag(f):
        r=WR+4*(nfr[0]%NRING); nfr[0]+=1
        if f<64: B.add(f"ds_read_b128 v[{r}:{r+3}], v{vW} offset:{f*1024}","ds",R(vW),R(r,4))
        else: B.add(f"ds_read_b128 v[{r}:{r+3}], v{vW2} offset:{(f-64)*1024}","ds",R(vW2),R(r,4))
        return r
    def v(text,wr,rd,kind="valu",dpp=()): B.v(text,[f"v{x}" for x in wr],[f"v{x}" for x in rd],kind,[f"v{x}" for x in dpp])
    def op2(op,d,a,b): v(f"{op} v{d}, v{a}, v{b}",[d],[a,b]+([d] if "fmac" in op else []))
    def ops(op,d,sr,b): v(f"{op} v{d}, s{sr}, v{b}",[d],[b]+([d] if "fmac" in op else []))
    def cvt(d,a,b): v(f"v_cvt_pk_bf16_f32 v{d}, v{a}, v{b}",[d],[a,b])
    def tr(op,d,s): v(f"{op} v{d}, v{s}",[d],[s],"trans")
    def mov(d,s): v(f"v_mov_b32 v{d}, v{s}",[d],[s])
    def swap(n,a,b): v(f"v_permlane{n}_swap_b32 v{a}, v{b}",[a,b],[a,b],"perml")
    def swz16(d,s): B.add(f"ds_swizzle_b32 v{d}, v{s} offset:0x401F","ds",R(s),R(d))
    def bperm(d,a,s,off=0): B.add(f"ds_bpermute_b32 v{d}, v{a}, v{s}"+(f" offset:{off}" if off else ""),"ds",R(a)+R(s),R(d))
    def dpp(op,d,s0,s1,ctl,rm=0xf,bm=0xf):
        part=[d] if (rm,bm)!=(0xf,0xf) else []
        if s1 is None: v(f"{op}_dpp v{d}, v{s0} {ctl} row_mask:{rm:#x} bank_mask:{bm:#x}",[d],[s0]+part,"dpp",[s0])
        else: v(f"{op}_dpp v{d}, v{s0}, v{s1} {ctl} row_mask:{rm:#x} bank_mask:{bm:#x}",[d],[s0,s1]+part,"dpp",[s0])
    def merge(op,d,s0,s1=None):
        dpp(op,d,s0,s1,"row_ror:8",0x3,0xc); dpp(op,d,s0,s1,"row_ror:8",0xc,0x3)
    def cnd(d,a,b,m): B.v(f"v_cndmask_b32 v{d}, v{a}, v{b}, s[{m}:{m+1}]",[f"v{d}"],[f"v{a}",f"v{b}"])
    tok=[]
    for c in range(4):
        for t in T:
            r=chunk(t,c)
            if os.environ.get("RD2","0")=="1": B.add(f"ds_read2st64_b64 v[{r}:{r+3}], v{TB[t]} offset0:{2*c} offset1:{2*c+1}","ds",R(TB[t]),R(r,4))
            else:
                for h in range(2): B.add(f"ds_read_b64 v[{r+2*h}:{r+2*h+1}], v{TB[t]} offset:{c*1024+h*512}","ds",R(TB[t]),R(r+2*h,2))
            tok+=R(r,4)
    PACE=int(os.environ.get("PACE",2))
    trl=[(t,b) for b in range(8) for t in T]
    def trread(dep=()):
        t,b=trl.pop(0); r=gE(t,b); B.add(f"ds_read_b64_tr_b16 v[{r}:{r+1}], v{TR[t]} offset:{b*512}","ds",R(TR[t])+list(dep),R(r,2)); tok.extend(R(r,2))
        if not trl and hook: hook(B,tok)
    if not PACE:
        while trl: trread()
    if os.environ.get('NOBODY'): B.cut=B.cut0=0; return B
    for c in range(4):
        r=frag(64+c)
        for t in T: B.mfma(A0(t),chunk(t,c),chunk(t,c),None if c==0 else A0(t))
        for t in T: B.mfma(A1(t),chunk(t,c),r,None if c==0 else A1(t))
    for t in T:
        x=A0(t); cnd(x,x,x+1,S_MA); cnd(x+2,x+2,x+3,S_MA); cnd(x,x,x+2,S_MC)
        bperm(O2[t],vDG,x)
    for t in T:
        x=A1(t); cvt(EPQ[t],x,x+1); cvt(EPQ[t]+1,x+2,x+3)
        for q in range(1,4): dpp("v_mov_b32",x,x+q,None,ID,0xf,1<<q)
    if NT==2:
        dpp("v_mov_b32",A1(1)+1,A1(1),None,"quad_perm:[0,1,0,1]"); cnd(A1(0),A1(0),A1(1)+1,S_MC)
        merge("v_mov_b32",O2[0],O2[1])
    bperm(Y,vXS,A1(0)); bperm(GW,vXS,A1(0),4)
    s2=O2[0]
    ops("v_mul_f32",T0,S_C128,Y); op2("v_mul_f32",DE,D,D); ops("v_mul_f32",DE,S_EPS,DE)
    v(f"v_fma_f32 v{T1}, -v{T0}, v{T0}, v{DE}",[T1],[T0,DE]); ops("v_fmac_f32",T1,S_C128,s2); op2("v_max_f32",T1,T1,DE)
    tr("v_rsq_f32",T1,T1)
    v(f"v_and_b32 v{T0}, 0x80000000, v{D}",[T0],[D]); op2("v_or_b32",AK,T1,T0)
    for r in range(4): bperm(AL+r,vALM,AK,4*r)
    for b in range(8):
        for c in range(4):
            r=frag(b*4+c)
            for t in T:
                a=ACC[t]+4*(b&1); o=B.mfma(a,r,chunk(t,c),None if c==0 else a)
            if trl and (b*4+c)%PACE==PACE-1:
                o.wr=set(o.wr); tag=f"pace{b}_{c}"; B.ops[-1].tagw=tag; trread([tag])
        for t in T:
            a=ACC[t]+4*(b&1); u=UP[t]+2*b; cvt(u,a,a+1); cvt(u+1,a+2,a+3)
    for c in range(4):
        for t in T: B.mfma(A0(t),chunk(t,c),UP[t]+4*c,None if c==0 else A0(t))
    S=A0(0); W=A1(0); m=T0; m2=T1
    if NT==2:
        for r in range(4): merge("v_mov_b32",S+r,A0(1)+r)
    for r in range(4): op2("v_mul_f32",W+r,AK,AL+r)
    for r in range(4): op2("v_mul_f32",S+r,S+r,W+r)
    v(f"v_max3_f32 v{m}, v{S}, v{S+1}, v{S+2}",[m],[S,S+1,S+2]); op2("v_max_f32",m,m,S+3)
    swz16(m2,m); op2("v_max_f32",m,m,m2)
    for r in range(4): op2("v_sub_f32",S+r,S+r,m)
    for r in range(4): tr("v_exp_f32",S+r,S+r)
    op2("v_add_f32",m,S,S+1); op2("v_add_f32",m2,S+2,S+3); op2("v_add_f32",m,m,m2)
    swz16(m2,m); op2("v_add_f32",m,m,m2); tr("v_rcp_f32",m,m); op2("v_mul_f32",m,m,D)
    for r in range(4): op2("v_mul_f32",W+r,m,AL+r)
    for r in range(4): op2("v_mul_f32",S+r,S+r,W+r)
    cvt(W,S,S+1); cvt(W+1,S+2,S+3)
    for t in T:
        for h in range(2):
            if t==0: op2("v_and_b32",Pc(0,0)+h,W+h,vVM)
            else: dpp("v_and_b32",Pc(1,0)+h,W+h,vVM,"row_ror:8")
        for i in range(1,5):
            for h in range(2): v(f"v_mov_b32 v{Pc(t,i)+h}, v{Pc(t,0)+h}",[Pc(t,i)+h],[Pc(t,0)+h])
    for b in range(8):
        for c in range(4):
            r=frag(32+b*4+c)
            for t in T:
                a=UP[t]+4*(b&3); B.mfma(a,chunk(t,c),r,None if c==0 else a)
        for t in T:
            a=UP[t]+4*(b&3); u=VP(t,b); cvt(u,a,a+1); cvt(u+1,a+2,a+3)
    B.cut=len(B.ops)
    for t in T: B.mfma(A1(t),EPQ[t],Pc(t,0),None)
    for b in range(8):
        for t in T:
            a=UP[t]+4*(b&3)
            if b%2==0: B.mfma(a,VP(t,b),Pc(t,b>>1),None)
            else: B.mfma(a,SEL(t,b>>1),chunk(t,b>>1)+2,None)
        for t in T:
            a=UP[t]+4*(b&3); u=chunk(t,b>>1)+2*(b&1); cvt(u,a,a+1); cvt(u+1,a+2,a+3)
        if b&1:
            for t in T: B.mfma(GO[t],chunk(t,b>>1),chunk(t,b>>1),None if b==1 else GO[t])
    if hook2: hook2(B,R(GP[0]+2))
    for t in T:
        x=GO[t]; cnd(x,x,x+1,S_MA); cnd(x+2,x+2,x+3,S_MA); cnd(x,x,x+2,S_MC)
        bperm(O2[t],vDG,x)
    if NT==2: merge("v_mov_b32",O2[0],O2[1])
    o0=O2[0]
    mu=T0; lg=T1; o=o0
    op2("v_add_f32",mu,A1(0)+2,Y); op2("v_add_f32",lg,A1(0)+3,GW)
    if NT==2: merge("v_add_f32",mu,A1(1)+2,Y); merge("v_add_f32",lg,A1(1)+3,GW)
    ops("v_mul_f32",mu,S_C128,mu)
    v(f"v_fma_f32 v{lg}, -v{mu}, s{S_WS}, v{lg}",[lg],[mu,lg])
    v(f"v_fma_f32 v{T2}, -v{mu}, v{mu}, v{DE}",[T2],[mu,DE])
    tr("v_rcp_f32",T3,D); ops("v_mul_f32",lg,S_L2E,lg)
    v(f"v_and_b32 v{mu}, 0x80000000, v{D}",[mu],[D]); op2("v_xor_b32",lg,lg,mu)
    ops("v_fmac_f32",T2,S_C128,o); op2("v_max_f32",T2,T2,DE); tr("v_rsq_f32",T2,T2)
    op2("v_mul_f32",lg,lg,T2)
    Q=("quad_perm:[1,0,3,2]","quad_perm:[2,3,0,1]","row_half_mirror")
    dpp("v_max_f32",T2,lg,lg,Q[0]); dpp("v_max_f32",T2,T2,T2,Q[1]); dpp("v_max_f32",T2,T2,T2,Q[2])
    op2("v_sub_f32",lg,lg,T2); tr("v_exp_f32",lg,lg)
    dpp("v_add_f32",T2,lg,lg,Q[0]); dpp("v_add_f32",T2,T2,T2,Q[1]); dpp("v_add_f32",T2,T2,T2,Q[2])
    tr("v_rcp_f32",T2,T2); op2("v_mul_f32",lg,lg,T3); op2("v_mul_f32",lg,lg,T2)
    dpp("v_mov_b32",T2,lg,None,Q[0]); cvt(T2,lg,T2)
    for t in T:
        BG=UP[t]+8; bperm(BG+4,(vBP,vBP1)[t],T2); bperm(BG+5,(vBP,vBP1)[t],T2,8)
    for r in range(4): op2("v_mul_f32",S+r,S+r,lg)
    for ctl in Q:
        for r in range(4): dpp("v_add_f32",S+r,S+r,S+r,ctl)
    cvt(S,S,S+1); cvt(S+1,S+2,S+3)
    for t in T:
        BG=UP[t]+8
        for h in range(2):
            if t==0: op2("v_and_b32",BG+2+h,S+h,vVM)
            else: dpp("v_and_b32",BG+2+h,S+h,vVM,"row_ror:8")
        for h in range(2): op2("v_and_b32",BG+h,BG+4+h,vVM)
        for h in range(2): op2("v_and_b32",BG+4+h,BG+4+h,vVM)
    for b in range(8):
        for t in T:
            BG=UP[t]+8; f=[UP[t],UP[t]+4,A0(t),A1(t)][b&3]
            if b%2==0: B.mfma(f,gE(t,b),BG,None)
            else: B.mfma(f,VP(t,b),BG+2,None)
        for t in T:
            f=[UP[t],UP[t]+4,A0(t),A1(t)][b&3]; u=chunk(t,b>>1)+2*(b&1)
            cvt(u,f,f+1); cvt(u+1,f+2,f+3)
            if b&1:
                c=chunk(t,b>>1)
                B.add(f"buffer_store_dwordx4 v[{c}:{c+3}], v{vOUT}, s[{S_O}:{S_O+3}], s36 offen offset:{512*t+64*(b>>1)}","vst",R(c,4)+R(vOUT),[])
    return B

def emit_body(a,NT,hook=None,hook2=None):
    SCH=os.environ.get("NOSCHED","")==""
    B=body(NT,hook,hook2); ops=B.schedule(SCH); lines,dsq,vmq=finalize(ops)
    pr=os.environ.get("K4PRIO","0")
    if pr!="0": lines=add_prio(lines,*map(int,pr.split("_")))+["s_setprio 0"]
    print(f"K4 body({NT}): ops",len(ops),"est",getattr(B,"est",None),"mfma",sum(o.kind=="mfma" for o in ops),"valu",sum(o.kind in VAL for o in ops),"ds",sum(o.kind=="ds" for o in ops),"nops",sum(l.startswith("s_nop") for l in lines),"waits",sum(l.startswith("s_waitcnt") for l in lines))
    for l in lines: a(l)

def gen_k4(name):
    a=Asm(); a.l.append(head(name))
    st=Stamper(a,"k4" in STAMP); st()
    if st.on: a("s_memrealtime s[66:67]")
    a(f"""s_cmp_ge_u32 s2, 256
      s_cbranch_scc1 K4_END
      s_load_dwordx2 s[8:9], s[0:1], 88
      s_load_dwordx2 s[40:41], s[0:1], 0
      s_load_dwordx2 s[42:43], s[0:1], 24
      s_load_dwordx2 s[10:11], s[0:1], 72
      v_lshrrev_b32 v1, 6, v0
      v_and_b32 v2, 63, v0
      v_lshrrev_b32 v3, 4, v2
      v_readfirstlane_b32 s3, v1
      v_and_b32 v4, 15, v2
      v_lshlrev_b32 v{vW}, 4, v2
      v_lshrrev_b32 v5, 3, v2
      v_and_b32 v6, 7, v2
      s_and_b32 s4, s3, 3
      s_lshr_b32 s5, s3, 2
      s_mul_i32 s{S_N0}, s2, 96
      s_lshl_b32 s7, s5, 4
      s_add_u32 s{S_N0}, s{S_N0}, s7
      s_lshl_b32 s7, s5, 15
      s_add_u32 s7, s7, {TOK}
      s_add_u32 s33, s4, 1
      v_subrev_u32 v6, s33, v6
      v_and_b32 v6, 7, v6
      v_lshlrev_b32 v6, 4, v6
      v_and_b32 v7, 3, v5
      v_lshrrev_b32 v8, 2, v5
      v_lshl_or_b32 v7, v7, 1, v8
      s_mov_b32 s33, {GS4}
      v_mad_u32_u24 v{vDMA}, v7, s33, v6
      s_lshl_b32 s33, s4, 10
      v_lshl_add_u32 v{vXG}, v3, 8, s33
      v_lshl_add_u32 v{vXG}, v4, 4, v{vXG}
      v_lshrrev_b32 v7, 3, v4
      v_and_b32 v8, 7, v4
      v_lshrrev_b32 v5, 1, v3
      s_lshl_b32 s33, s4, 2
      v_xor_b32 v17, v5, v7
      v_lshl_add_u32 v9, v17, 1, v5
      v_add_lshl_u32 v9, v9, s33, 1
      v_mov_b32 v10, 0x40000000
      v_cmp_eq_u32 vcc, 0, v8
      s_waitcnt lgkmcnt(0)
      v_cndmask_b32 v{vDI}, v9, v10, vcc
      v_add_lshl_u32 v9, v7, s33, 8
      v_lshl_add_u32 v9, v3, 4, v9
      v_cndmask_b32 v{vOUT}, v10, v9, vcc""")
    a.srd(S_G,8,9,8*TSTR); a.srd(S_X,40,41,N*256); a.srd(S_D,42,43,N*2); a.srd(S_O,10,11,N*256); a.srd(S_WF,8,9,69*1024,OFF_WF)
    def prefetch(a):
        l=a.label("PF")
        a(f"""s_add_u32 s34, s4, 1
          s_mul_i32 s33, s34, {TS4}
          s_lshl_b32 s37, s{S_N0}, {NSH}
          s_add_u32 s33, s33, s37
          s_lshl_b32 s34, s34, 12
          s_add_u32 s34, s34, s7
          v_xor_b32 v{vPF}, 64, v{vDMA}""")
        for half in range(2):
            if half==1: a(f"s_cmp_eq_u32 s4, 3\ns_cbranch_scc1 {l}\ns_add_u32 s33, s33, {4*TS4-24*GS4}\ns_add_u32 s34, s34, {3*4096}")
            for i in range(4):
                if os.environ.get("NOLOAD"): continue
                a(f"s_mov_b32 m0, s34\ns_add_u32 s34, s34, 1024\nbuffer_load_dwordx4 v{vPF if half else vDMA}, s[{S_G}:{S_G+3}], s33 offen lds")
                if i<3: a(f"s_add_u32 s33, s33, {8*GS4}")
        a(f"""{l}:
          s_lshl_b32 s33, s{S_N0}, 8
          s_lshl_b32 s34, s{S_N0}, 1
          buffer_load_dwordx4 v[{X4}:{X4+3}], v{vXG}, s[{S_X}:{S_X+3}], s33 offen
          buffer_load_ushort v{DN}, v{vDI}, s[{S_D}:{S_D+3}], s34 offen""")
    def weights():
        l=a.label("WD")
        a(f"s_lshl_b32 s33, s3, 10")
        for i in range(9):
            if i==8: a(f"s_cmp_ge_u32 s3, 4\ns_cbranch_scc1 {l}")
            a(f"s_mov_b32 m0, s33\ns_nop 0\nbuffer_load_dwordx4 v{vW}, s[{S_WF}:{S_WF+3}], s33 offen lds\ns_add_u32 s33, s33, 8192")
        a(f"{l}:")
    a(f"s_load_dword s{S_WS}, s[{S_WF}:{S_WF+1}], {68*1024+252}\ns_cmp_eq_u32 s5, 0\ns_cbranch_scc0 K4_WB")
    prefetch(a); weights()
    a("s_branch K4_WC\nK4_WB:")
    weights()
    BD=os.environ.get("BDELAY","1")=="1"
    if not BD: prefetch(a)
    a(f"""K4_WC:
      v_add_u32 v{vW2}, 0x10000, v{vW}
      s_mov_b32 s{S_C128}, {f2u(1/128):#x}
      s_mov_b32 s{S_EPS}, {f2u(1e-5):#x}
      s_mov_b32 s{S_L2E}, {f2u(math.log2(math.e)):#x}
      v_cmp_eq_u32 vcc, v5, v7
      v_and_b32 v10, 1, v3
      s_lshl_b32 s33, s4, 1
      v_lshlrev_b32 v11, 7, v5
      v_lshl_add_u32 v{vBP}, v3, 4, v11
      v_xor_b32 v{vBP1}, 32, v{vBP}
      v_cndmask_b32 v{vVM}, 0, -1, vcc
      v_cndmask_b32 v{vALM}, v{vBP1}, v{vBP}, vcc
      v_lshrrev_b32 v14, 2, v4
      v_and_b32 v15, 3, v4
      v_lshlrev_b32 v11, 6, v14
      v_lshl_add_u32 v{vDG}, v4, 2, v11
      v_lshlrev_b32 v12, 7, v17
      v_xor_b32 v11, v11, v12
      v_lshl_add_u32 v{vXS}, v15, 4, v11
      v_lshl_add_u32 v{vXS}, v17, 3, v{vXS}
      s_lshl_b32 s{S_CNT}, s5, 3
      s_add_u32 s{S_CNT}, s{S_CNT}, {CNT}
      v_mov_b32 v11, s{S_CNT}
      v_mov_b32 v12, 0
      v_mov_b32 v13, 0
      ds_write_b64 v11, v[12:13]""")
    a(f"""v_lshlrev_b32 v11, 12, v8
      v_lshl_add_u32 v11, v3, 7, v11
      v_lshl_add_u32 v11, v7, 3, v11
      v_add_u32 v11, s7, v11
      v_add_u32 v12, s33, v8""")
    for t in range(2):
        a(f"v_add_u32 v13, {t}, v12\nv_and_b32 v13, 7, v13\nv_lshl_add_u32 v{TB[t]}, v13, 4, v11")
    a(f"""v_lshl_add_u32 v14, v10, 2, v14
      v_lshlrev_b32 v11, 12, v14
      v_lshl_add_u32 v11, v15, 7, v11
      v_lshl_add_u32 v11, v5, 3, v11
      v_add_u32 v11, s7, v11
      v_add_u32 v12, s33, v14""")
    for t in range(2):
        a(f"v_add_u32 v13, {t}, v12\nv_and_b32 v13, 7, v13\nv_lshl_add_u32 v{TR[t]}, v13, 4, v11")
    a(f"""v_lshrrev_b32 v11, 2, v4
      v_lshlrev_b32 v11, 10, v11
      v_lshl_add_u32 v11, v15, 7, v11
      v_add_u32 v12, s33, v5
      v_lshl_add_u32 v11, v12, 4, v11
      v_lshl_add_u32 v11, v10, 3, v11
      v_add_u32 v{vXL}, s7, v11
      v_lshlrev_b32 v12, 2, v3
      v_sub_u32 v12, v4, v12
      v_mov_b32 v13, 0x3f80
      v_mov_b32 v14, 0x3f800000
      v_cmp_eq_u32 s[40:41], 0, v12
      v_cmp_eq_u32 s[42:43], 1, v12
      v_cmp_eq_u32 s[44:45], 2, v12
      v_cmp_eq_u32 vcc, 3, v12
      v_cndmask_b32 v15, 0, v13, s[40:41]
      v_cndmask_b32 v16, 0, v13, s[44:45]
      v_cndmask_b32 v15, v15, v14, s[42:43]
      v_cndmask_b32 v16, v16, v14, vcc""")
    for t in range(2):
        for q in range(4): a(f"v_mov_b32 v{SEL(t,q)}, v15\nv_mov_b32 v{SEL(t,q)+1}, v16")
        a(f"v_mov_b32 v{EPQ[t]+2}, 0\nv_mov_b32 v{EPQ[t]+3}, 0")
    a(f"""s_mov_b32 s35, 0
      s_mov_b32 s{S_MA}, 0xaaaaaaaa
      s_mov_b32 s{S_MA+1}, 0xaaaaaaaa
      s_mov_b32 s{S_MC}, 0xcccccccc
      s_mov_b32 s{S_MC+1}, 0xcccccccc
      s_cmp_eq_u32 s5, 0
      s_cbranch_scc0 K4_WE
      s_waitcnt vmcnt(0)
      K4_WE:
      s_waitcnt vmcnt({0 if BD else 6}) lgkmcnt(0)
      s_barrier""")
    if BD:
        a("s_cmp_eq_u32 s5, 0\ns_cbranch_scc1 K4_WF")
        prefetch(a)
        a("K4_WF:")
    def arrive(a,off,t0,t1):
        a(f"""v_mov_b32 v{t0}, s{S_CNT}
          v_mov_b32 v{t1}, 1
          s_mov_b64 exec, 1
          ds_add_u32 v{t0}, v{t1} offset:{off}
          s_mov_b64 exec, -1""")
    def spin(a,off,t0,t1):
        l=a.label("SP")
        a(f"""{l}:
          ds_read_b32 v{t1}, v{t0} offset:{off}
          s_waitcnt lgkmcnt(0)
          v_readfirstlane_b32 s33, v{t1}
          s_cmp_ge_u32 s33, s38
          s_cbranch_scc1 {l}_E
          s_sleep 1
          s_branch {l}
          {l}_E:""")
    def publish(a,t0,t1):
        a(f"""s_waitcnt vmcnt(0)
          ds_write2st64_b64 v{vXL}, v[{X4}:{X4+1}], v[{X4+2}:{X4+3}] offset1:1
          s_waitcnt lgkmcnt(0)""")
        arrive(a,0,t0,t1)
    def land():
        a(f"""v_mov_b32 v{T2}, s{S_CNT}
          v_lshlrev_b32 v{D}, 16, v{DN}
          s_add_u32 s35, s35, 1
          v_cmp_eq_f32 vcc, 0, v{D}
          s_lshl_b32 s38, s35, 2
          s_lshl_b32 s36, s{S_N0}, 8
          v_cndmask_b32 v{D}, v{D}, 1.0, vcc""")
        spin(a,0,T2,T3)
    def hook2(B,dep):
        x=Asm(); publish(x,vPF,GP[0])
        B.add("\n".join(x.l),"blk",dep+["pf2"]+R(GP[0]),R(vPF)+R(GP[0]))
    def hook(B,tok):
        x=Asm(); x.uid=1000; arrive(x,4,T2,T3)
        B.add("\n".join(x.l),"blk",tok,R(T2)+R(T3)+["pf"])
        x=Asm(); x.uid=2000; spin(x,4,T2,T3)
        x(f"""s_add_u32 s{S_N0}, s{S_N0}, 32
          s_cmp_lt_u32 s35, 3
          s_cbranch_scc1 K4_PFN
          s_lshl_b32 s{S_N0}, s2, 1
          s_add_u32 s{S_N0}, s{S_N0}, 24576
          s_cmp_ge_u32 s2, 212
          s_cbranch_scc1 K4_NOPF
          s_cmp_lg_u32 s5, 0
          s_cbranch_scc1 K4_NOPF
          K4_PFN:""")
        prefetch(x); x("K4_NOPF:")
        B.add("\n".join(x.l),"blk",R(T2)+R(T3)+["pf"],R(T3)+R(vPF)+["pf2"])
    publish(a,T2,T3)
    a("K4_LOOP:")
    land(); st(); st(); st()
    if os.environ.get("FIFO","1")=="1":
        a("""s_setprio 3
          s_cmp_eq_u32 s35, 1
          s_cbranch_scc1 K4_PS
          s_setprio 2
          s_cmp_eq_u32 s35, 2
          s_cbranch_scc1 K4_PS
          s_setprio 1
          K4_PS:""")
    emit_body(a,2,hook,hook2)
    st()
    if st.on:
        a("s_waitcnt lgkmcnt(0)")
        for it in (1,2):
            a(f"s_cmp_lg_u32 s35, {it}\ns_cbranch_scc1 K4_SV{it}")
            for k in range(4): a(f"s_mov_b32 s{86+8*(it-1)+2*k}, s{74+2*k}")
            a(f"K4_SV{it}:")
    a(f"""s_cmp_lt_u32 s35, 3
      s_cbranch_scc1 K4_LOOP""")
    if st.on:
        a("s_memrealtime s[68:69]\ns_waitcnt lgkmcnt(0)\ns_sub_u32 s82, s68, s66\ns_add_u32 s82, s82, s72\ns_mov_b32 s84, s72")
        st.n=15; st.dump(5,7,16); st.dump(5,4,32); st.n=5
    a(f"""s_cmp_ge_u32 s2, 212
      s_cbranch_scc1 K4_END
      s_cmp_lg_u32 s5, 0
      s_cbranch_scc1 K4_END""")
    a("s_setprio 0")
    land(); st()
    a("s_cmp_lg_u32 s3, 0\ns_cbranch_scc1 K4_END")
    emit_body(a,1)
    st(); st.n=15; st.dump(5,0)
    a("K4_END:\ns_endpgm")
    return a.text(), desc(name,NV,102 if STAMP else 64)
```

```python
import re,os
def R(base,n=1): return [f"v{base+i}" for i in range(n)]
class Op:
    __slots__=("text","kind","rd","wr","rc","cost","lat","idx","deps","succ","cp","t","ddp","tagw")
    def __init__(s,text,kind,rd=(),wr=(),rc=(),dpp=()):
        s.text=text; s.kind=kind; s.rd=set(rd)|set(rc); s.wr=set(wr); s.rc=tuple(rc); s.ddp=set(dpp)
        s.cost={"mfma":8,"valu":4,"trans":8,"dpp":4,"perml":8,"dot":4,"ds":1,"dsw":1,"vld":1,"vst":1,"salu":1,"blk":20}[kind]
        if kind in("ds","dsw","vst"): s.cost=int(os.environ.get("DSC",1))
        if kind=="ds" and ("bperm" in text or "swizzle" in text): s.cost=8
        s.lat={"mfma":40,"valu":6,"trans":12,"dpp":6,"perml":10,"dot":8,"ds":int(os.environ.get("DSLAT",140)),"dsw":4,"vld":900,"vst":4,"salu":4,"blk":int(__import__("os").environ.get("BLKLAT",300))}[kind]
VAL=("valu","trans","dpp","perml","dot")
class Block:
    def __init__(s): s.ops=[]
    def add(s,*a,**k): o=Op(*a,**k); s.ops.append(o); return o
    def mfma(s,d,a,b,c=None,shape="16x16x32"):
        ct="0" if c is None else f"v[{c}:{c+3}]"
        return s.add(f"v_mfma_f32_{shape}_bf16 v[{d}:{d+3}], v[{a}:{a+3}], v[{b}:{b+3}], {ct}","mfma",R(a,4)+R(b,4),R(d,4),() if c is None else R(c,4))
    def v(s,text,wr,rd,kind="valu",dpp=()):
        return s.add(text,kind,rd,wr,(),dpp)
    def schedule(s,on=True):
        ops=s.ops; n=len(ops)
        if not on: return list(ops)
        lastw={}; readers={}
        mem_prev=None
        for i,o in enumerate(ops):
            o.idx=i; o.deps={}; o.succ=[]
            for r in o.rd:
                if r in lastw:
                    y=lastw[r]; l=y.lat
                    if r.startswith("pace"): l=0; o.deps[y]=max(o.deps.get(y,0),0); continue
                    if y.kind=="mfma" and o.kind=="mfma" and r in o.rc and set(o.rc)==y.wr and not (y.wr & (o.rd-set(o.rc))): l=16
                    elif y.kind in VAL and o.kind=="mfma": l=y.lat+6
                    elif y.kind in VAL and o.kind in("dpp","perml"): l=y.lat+6
                    o.deps[y]=max(o.deps.get(y,0),l)
            for r in o.wr:
                if r in lastw:
                    y=lastw[r]; o.deps[y]=max(o.deps.get(y,0), 16 if (y.kind=="mfma" and o.kind=="mfma") else (y.lat if y.kind in("mfma","ds","vld") else 1))
                for y in readers.get(r,()):
                    if y is not o: o.deps[y]=max(o.deps.get(y,0), 14 if (y.kind=="mfma" and r in y.rc) else 1)
            for r in o.rd: readers.setdefault(r,[]).append(o)
            for r in o.wr: lastw[r]=o; readers[r]=[]
            if getattr(o,"tagw",None): lastw[o.tagw]=o
        for o in ops:
            for y in o.deps: y.succ.append(o)
        for o in reversed(ops):
            o.cp=max([x.cp+x.deps[o] for x in o.succ],default=0)+ (16 if o.kind=="mfma" else o.cost)*0
        done=set(); out=[]; now=0; mfree=0; left=list(ops); ndep={o:len(o.deps) for o in ops}
        ready=[o for o in ops if ndep[o]==0]; rt={o:0 for o in ready}
        while ready:
            def est(o): return max(rt[o], mfree if o.kind=="mfma" else 0)
            avail=[o for o in ready if est(o)<=now]
            if avail:
                mem=[o for o in avail if o.kind in ("ds","dsw","vld","vst","salu","blk")]
                mf=[o for o in avail if o.kind=="mfma"]
                if mem: o=max(mem,key=lambda x:(x.cp,-x.idx))
                elif mf: o=max(mf,key=lambda x:(x.cp,-x.idx))
                else: o=max(avail,key=lambda x:(x.cp,-x.idx))
            else:
                o=min(ready,key=lambda x:(est(x),-x.cp,x.idx)); now=est(o)
            ready.remove(o); out.append(o); o.t=now
            if o.kind=="mfma": mfree=now+int(os.environ.get("MGAP",16))
            now+=o.cost
            for x in o.succ:
                ndep[x]-=1; rt[x]=max(rt.get(x,0),o.t+x.deps[o])
                if ndep[x]==0: ready.append(x)
        assert len(out)==n
        s.est=now
        return out
def finalize(ops,pend_vm=None,drain=True):
    out=[]; hist=[]
    import os
    COAL=int(os.environ.get("COAL",1000)); dst=[]
    state=0; dsq=[]; vmq=[set(x) for x in (pend_vm or [])]
    def emit(t,n=1):
        nonlocal state
        out.append(t); state+=n
    for o in ops:
        touch=o.rd|o.wr
        w=[]
        if o.kind in("ds","dsw") and len(dsq)>=14 and not any(regs&touch for regs in dsq):
            emit("s_waitcnt lgkmcnt(10)"); del dst[:len(dsq)-10]; del dsq[:len(dsq)-10]
        for q,name,mx in((dsq,"lgkmcnt",15),(vmq,"vmcnt",63)):
            k=-1
            for i,regs in enumerate(q):
                if regs & touch: k=i
            if k>=0:
                if name=="lgkmcnt" and hasattr(o,"t"):
                    while k+1<len(q) and dst[k+1]+COAL<=o.t: k+=1
                    del dst[:k+1]
                rem=len(q)-1-k; w.append(f"{name}({min(rem,mx)})"); del q[:k+1]
        if w: emit("s_waitcnt "+" ".join(w))
        need=0
        for y,st in hist[-14:]:
            d=state-st-1
            req=0
            if y.kind in VAL+("blk",):
                if o.kind=="mfma" and y.wr&o.rd: req=2
                if o.kind in("dpp","perml") and y.wr&(o.rd if o.kind=="perml" else o.ddp): req=max(req,2)
                if y.kind=="dot" and y.wr&touch and not (o.kind=="dot" and o.wr==y.wr): req=max(req,3)
                if y.kind=="trans" and o.kind in VAL and y.wr&o.rd: req=max(req,1)
                if o.kind in VAL and any((r[0]=="s" or r=="vcc") for r in y.wr&o.rd): req=max(req,2)
                if o.kind in("vld","vst") and any(r[0]=="s" for r in y.wr&o.rd): req=max(req,5)
                if "exec" in y.wr and o.kind=="dpp": req=max(req,5)
            if y.kind=="mfma":
                if o.kind=="mfma":
                    ab=o.rd-set(o.rc) if not (set(o.rc)&(o.rd-set(o.rc))) else o.rd
                    if y.wr&ab: req=8
                    elif y.wr&set(o.rc): req=0 if set(o.rc)==y.wr else 6
                    elif y.wr&o.wr: req=0 if o.wr==y.wr else 6
                elif y.wr&touch: req=8
                if o.kind in VAL and set(y.rc)&o.wr: req=max(req,3)
            if y.kind=="vst" and o.kind in VAL and y.rd&o.wr: req=max(req,2)
            need=max(need,req-d)
        if need>0: emit(f"s_nop {need-1}",need)
        hist.append((o,state)); emit(o.text)
        if o.kind=="ds": dsq.append(set(o.wr)); dst.append(getattr(o,"t",0))
        if o.kind=="dsw": dsq.append(set()); dst.append(getattr(o,"t",0))
        if o.kind=="vld": vmq.append(set(o.wr))
        if o.kind=="vst": vmq.append(set())
    return out,dsq,vmq

def add_prio(lines,win=12,thr=3,hi=2):
    out=[]; cur=None
    ism=[l.startswith("v_mfma") for l in lines]
    for i,l in enumerate(lines):
        d=sum(ism[i:i+win])
        want = hi if d>=thr else 0
        if want!=cur and (want==hi or not any(ism[i:i+4])):
            out.append(f"s_setprio {want}"); cur=want
        out.append(l)
    return out
```

```python
N=25000; NP=25088; E=400000
GSTR=NP*8
TSTR=32*GSTR
OFF_G=0
OFF_EDG=8*TSTR
OFF_OFFS=0x3290000
OFF_BLOB=0x3A00000
OFF_SCALE=0x34B0000
OFF_HDR=0x34D0000
OFF_FLAG=0x34E0000
OFF_WF=0x34F0000
OFF_WT=0x3510000
WT_CS=131072; WT_R1=WT_CS+8192; WT_R2=WT_R1+8192; WT_SIZE=WT_R2+8192
OFF_OVF=0x4000000
OVF_SIZE=0x3400000
WS_SIZE=268435456
PW=100
PE=4000
NBIN=168
PIECE=3136
SEG=[0,896,2048,3136]
TST=1152
ZT=7*TST
TB_=(ZT+32)*8
LDS_OUT=2*TB_
ZO=PIECE
LDS_CNT=LDS_OUT+(PIECE+32)*8
BLOBSZ=20480

class Asm:
    gid=0
    def __init__(self): self.l=[]; self.uid=0
    def __call__(self,s=""):
        for ln in s.split("\n"):
            ln=ln.strip()
            if ln: self.l.append(ln if ln.endswith(":") else "    "+ln)
    def label(self,p="L"):
        Asm.gid+=1; return f"{p}_{Asm.gid}"
    def srd(self,d,lo,hi,size,off=0):
        if off:
            self(f"s_add_u32 s{d}, s{lo}, {off:#x}\ns_addc_u32 s{d+1}, s{hi}, 0")
        else:
            self(f"s_mov_b32 s{d}, s{lo}\ns_mov_b32 s{d+1}, s{hi}")
        self(f"s_mov_b32 s{d+2}, {size:#x}\ns_mov_b32 s{d+3}, 0x20000")
    def text(self): return "\n".join(self.l)+"\n"

def desc(name,vgpr,sgpr=102,accum=None):
    accum = accum or ((vgpr+3)//4*4)
    return f""".section .rodata,"a"
.p2align 6
.amdhsa_kernel {name}
  .amdhsa_next_free_vgpr {vgpr}
  .amdhsa_next_free_sgpr {sgpr}
  .amdhsa_accum_offset {accum}
  .amdhsa_group_segment_fixed_size 0
  .amdhsa_kernarg_size 96
  .amdhsa_user_sgpr_count 2
  .amdhsa_user_sgpr_kernarg_segment_ptr 1
  .amdhsa_system_sgpr_workgroup_id_x 1
  .amdhsa_float_denorm_mode_32 3
.end_amdhsa_kernel
"""
def head(name):
    return f""".text
.globl {name}
.p2align 8
.type {name},@function
{name}:
"""
def wave_scan_u32(a,v):
    for sh in (1,2,4,8):
        a(f"s_nop 1\nv_add_u32_dpp v{v}, v{v}, v{v} row_shr:{sh} row_mask:0xf bank_mask:0xf bound_ctrl:0")
    a(f"s_nop 1\nv_add_u32_dpp v{v}, v{v}, v{v} row_bcast:15 row_mask:0xa bank_mask:0xf")
    a(f"s_nop 1\nv_add_u32_dpp v{v}, v{v}, v{v} row_bcast:31 row_mask:0xc bank_mask:0xf")

import os
STAMP=os.environ.get("STAMP","")
class Stamper:
    def __init__(self,a,on): self.a=a; self.on=on; self.n=0
    def __call__(self):
        if not self.on: return
        if "fine" in os.environ.get("K3X",""):
            self.n=14; return
        self.a(f"s_memtime s[{72+2*self.n}:{73+2*self.n}]"); self.n+=1
    def dump(self,wg,wave,base=0,wavereg=3):
        if not self.on: return
        a=self.a; l=a.label("ST")
        a(f"""s_cmp_lg_u32 s{wavereg}, {wave}
          s_cbranch_scc1 {l}
          s_load_dwordx2 s[100:101], s[0:1], 88
          s_lshl_b32 vcc_lo, s2, 8
          s_add_u32 vcc_lo, vcc_lo, {OFF_ST:#x}
          s_waitcnt lgkmcnt(0)
          s_add_u32 s100, s100, vcc_lo
          s_addc_u32 s101, s101, 0
          s_mov_b64 exec, 1""")
        for i in range(self.n):
            a(f"v_mov_b32 v0, s{72+2*i}\nv_mov_b32 v1, {4*(base+i)}\nglobal_store_dword v1, v0, s[100:101]")
        a(f"s_waitcnt vmcnt(0)\n{l}:")
OFF_ST=0x7F00000

ROWS={0:[6,3,1],1:[5,4,2,0]}
REGS=[{0:[6,6,6],1:[5,5,5,5]},{0:[9,4,3],1:[5,5,3,3]},{0:[12,6,6],1:[7,6,6,5]},{0:[11,5,4],1:[7,5,4,4]}]
UNITS=[5,4,6,5]; UOFF=[0,5,9,15]; E0=[0,0,1,1]
LAY=[{h:[(ROWS[h][i],sum(REGS[p][h][:i]),REGS[p][h][i]) for i in range(len(ROWS[h]))] for h in (0,1)} for p in range(4)]
SORT=os.environ.get("SORT","class")
CAPS={"class":[[3]*7,[2,2,3,3,4,4,6],[3,3,4,4,5,5,7],[3,3,4,4,5,5,7]],
      "global":[[3]*7,[1,2,2,2,3,3,6],[2,3,3,3,4,5,7],[2,3,3,3,4,4,7]]}[SORT]
if os.environ.get("CAPS"): CAPS=eval(os.environ["CAPS"])
OFF_DST=0x3540000

def code_prefetch(a,first,last,widx,nw,per,sr=40,vt=20):
    l=a.label("CP")
    a(f"""s_getpc_b64 s[{sr}:{sr+1}]
      {l}:
      s_add_u32 s{sr}, s{sr}, {first}-{l}
      s_addc_u32 s{sr+1}, s{sr+1}, 0
      s_mov_b32 s{sr+2}, {last}-{first}
      s_mov_b32 s{sr+3}, 0x20000
      v_and_b32 v{vt}, 63, v0
      v_lshlrev_b32 v{vt}, 4, v{vt}
      s_lshl_b32 s{sr+4}, s{widx}, 10""")
    for i in range(per):
        a(f"buffer_load_dwordx4 v[{vt+4}:{vt+7}], v{vt}, s[{sr}:{sr+3}], s{sr+4} offen\ns_add_u32 s{sr+4}, s{sr+4}, {nw*1024}")
```

```python
from common import *
import math
def wave_scan_f32(a,v):
    for sh in (1,2,4,8):
        a(f"s_nop 1\nv_add_f32_dpp v{v}, v{v}, v{v} row_shr:{sh} row_mask:0xf bank_mask:0xf bound_ctrl:0")
    a(f"s_nop 1\nv_add_f32_dpp v{v}, v{v}, v{v} row_bcast:15 row_mask:0xa bank_mask:0xf")
    a(f"s_nop 1\nv_add_f32_dpp v{v}, v{v}, v{v} row_bcast:31 row_mask:0xc bank_mask:0xf")
def f2u(x):
    import struct; return struct.unpack("<I",struct.pack("<f",x))[0]

def row16_reduce(a,src,dst,n):
    for i in range(n): a(f"v_add_f32_dpp v{dst+i}, v{src+i}, v{src+i} row_ror:8 row_mask:0xf bank_mask:0xf")
    for sh in (4,2,1):
        for i in range(n): a(f"v_add_f32_dpp v{dst+i}, v{dst+i}, v{dst+i} row_ror:{sh} row_mask:0xf bank_mask:0xf")

def gen_k1(name):
    a=Asm(); a.l.append(head(name))
    st=Stamper(a,"k1" in STAMP)
    st()
    a(f"""s_cmp_ge_u32 s2, 230
      s_cbranch_scc1 K1_END
      s_load_dwordx2 s[8:9], s[0:1], 88
      v_lshrrev_b32 v1, 6, v0
      v_and_b32 v2, 63, v0
      s_cmp_ge_u32 s2, {PW}
      v_readfirstlane_b32 s3, v1
      s_cbranch_scc1 K1_NOTPART""")
    a(f"""s_load_dwordx4 s[4:7], s[0:1], 8
      v_lshlrev_b32 v3, 2, v0
      v_mov_b32 v4, 0
      ds_write_b32 v3, v4
      v_lshlrev_b32 v3, 4, v0
      s_mul_i32 s10, s2, {PE*4}
      s_waitcnt lgkmcnt(0)""")
    a.srd(12,4,5,E*4); a.srd(16,6,7,E*4)
    a(f"""v_cmp_gt_u32 vcc, {PE//4}, v0
      s_and_saveexec_b64 s[20:21], vcc
      buffer_load_dwordx4 v[8:11], v3, s[16:19], s10 offen
      buffer_load_dwordx4 v[4:7], v3, s[12:15], s10 offen
      s_movk_i32 s22, {SEG[1]}
      s_movk_i32 s23, {SEG[2]}
      s_movk_i32 s24, -448
      s_movk_i32 s25, {-PIECE}
      s_movk_i32 s42, {TST}
      v_mov_b32 v28, 1
      v_mov_b32 v29, {SEG[1]}
      v_mov_b32 v30, {SEG[2]}
      s_barrier
      s_waitcnt vmcnt(1)""")
    R4=range(4)
    for i in R4: a(f"v_lshrrev_b32 v{12+i}, 6, v{8+i}")
    for i in R4: a(f"v_mul_u32_u24 v{32+i}, 1338, v{12+i}")
    for i in R4: a(f"v_mul_u32_u24 v{12+i}, 9363, v{12+i}")
    for i in R4: a(f"v_lshrrev_b32 v{32+i}, 16, v{32+i}")
    for i in R4: a(f"v_lshrrev_b32 v{12+i}, 16, v{12+i}")
    for i in R4: a(f"v_mad_i32_i24 v{8+i}, v{12+i}, s24, v{8+i}")
    for i in R4: a(f"v_lshl_add_u32 v{12+i}, v{12+i}, 1, v{12+i}")
    a("s_waitcnt vmcnt(0)")
    for i in R4: a(f"v_lshrrev_b32 v{36+i}, 6, v{4+i}")
    for i in R4: a(f"v_mul_u32_u24 v{36+i}, 1338, v{36+i}")
    for i in R4: a(f"v_lshrrev_b32 v{36+i}, 16, v{36+i}")
    for i in R4: a(f"v_mad_i32_i24 v{4+i}, v{36+i}, s25, v{4+i}")
    for i in R4: a(f"v_cmp_le_u32 s[{26+2*i}:{27+2*i}], s22, v{4+i}")
    for i in R4: a(f"v_cmp_le_u32 s[{34+2*i}:{35+2*i}], s23, v{4+i}")
    for i in R4: a(f"v_cndmask_b32 v{16+i}, 0, v29, s[{26+2*i}:{27+2*i}]")
    for i in R4: a(f"v_cndmask_b32 v{40+i}, 0, 1, s[{26+2*i}:{27+2*i}]")
    for i in R4: a(f"v_cndmask_b32 v{16+i}, v{16+i}, v30, s[{34+2*i}:{35+2*i}]")
    for i in R4: a(f"v_cndmask_b32 v{40+i}, v{40+i}, 2, s[{34+2*i}:{35+2*i}]")
    for i in R4: a(f"v_cmp_gt_u32 s[{26+2*i}:{27+2*i}], v{36+i}, v{32+i}")
    for i in R4: a(f"v_cmp_eq_u32 s[{34+2*i}:{35+2*i}], v{36+i}, v{32+i}")
    for i in R4: a(f"v_sub_u32 v{16+i}, v{4+i}, v{16+i}")
    for i in R4: a(f"v_subb_co_u32 v{36+i}, vcc, v{36+i}, 0, s[{26+2*i}:{27+2*i}]")
    for i in R4: a(f"v_or_b32 v{44+i}, 0x200, v{8+i}")
    for i in R4: a(f"v_mad_u32_u24 v{16+i}, v{36+i}, s42, v{16+i}")
    for i in R4: a(f"v_cndmask_b32 v{40+i}, v{40+i}, 0, s[{34+2*i}:{35+2*i}]")
    for i in R4: a(f"v_cndmask_b32 v{8+i}, v{8+i}, v{44+i}, s[{34+2*i}:{35+2*i}]")
    for i in R4: a(f"v_cndmask_b32 v{4+i}, v{16+i}, v{4+i}, s[{34+2*i}:{35+2*i}]")
    for i in R4: a(f"v_add_lshl_u32 v{12+i}, v{12+i}, v{40+i}, 2")
    for i in R4: a(f"ds_add_rtn_u32 v{16+i}, v{12+i}, v28")
    for i in R4: a(f"v_lshl_or_b32 v{4+i}, v{8+i}, 16, v{4+i}")
    a(f"""s_waitcnt lgkmcnt(0)
      s_barrier
      s_cmp_lg_u32 s3, 0
      s_cbranch_scc1 K1_P_SKIPSCAN
      v_lshlrev_b32 v20, 4, v2
      ds_read_b128 v[24:27], v20
      s_mul_i32 s11, s2, {NBIN*4}
      s_add_u32 s44, s8, {OFF_OFFS:#x}
      s_addc_u32 s45, s9, 0
      s_add_u32 s44, s44, s11
      s_addc_u32 s45, s45, 0
      s_mov_b32 s46, {NBIN*4}
      s_mov_b32 s47, 0x20000
      s_waitcnt lgkmcnt(0)
      v_add_u32 v21, v24, v25
      v_add3_u32 v21, v21, v26, v27
      v_mov_b32 v22, v21""")
    wave_scan_u32(a,22)
    a(f"""v_sub_u32 v32, v22, v21
      v_add_u32 v33, v32, v24
      v_add_u32 v34, v33, v25
      v_add_u32 v35, v34, v26
      ds_write_b128 v20, v[32:35] offset:1024
      v_lshl_or_b32 v36, v24, 16, v32
      v_lshl_or_b32 v37, v25, 16, v33
      v_lshl_or_b32 v38, v26, 16, v34
      v_lshl_or_b32 v39, v27, 16, v35
      buffer_store_dwordx4 v[36:39], v20, s[44:47], 0 offen
      s_waitcnt lgkmcnt(0)
      K1_P_SKIPSCAN:
      s_barrier""")
    for i in range(4): a(f"ds_read_b32 v{20+i}, v{12+i} offset:1024")
    a.srd(12,8,9,E*4,OFF_EDG)
    for i in range(4):
        a(f"s_waitcnt lgkmcnt({3-i})\nv_add_lshl_u32 v{20+i}, v{20+i}, v{16+i}, 2")
    for i in range(4): a(f"ds_write_b32 v{20+i}, v{4+i} offset:2048")
    a(f"""s_waitcnt lgkmcnt(0)
      s_barrier
      ds_read_b128 v[4:7], v3 offset:2048
      s_waitcnt lgkmcnt(0)
      buffer_store_dwordx4 v[4:7], v3, s[12:15], s10 offen
      s_endpgm""")
    a(f"""K1_NOTPART:
      s_cmp_ge_u32 s2, 198
      s_cbranch_scc1 K1_WEIGHTS
      s_load_dwordx2 s[4:5], s[0:1], 0
      s_load_dwordx2 s[6:7], s[0:1], 24
      s_sub_u32 s10, s2, {PW}
      s_lshl_b32 s10, s10, 4
      s_add_u32 s10, s10, s3
      s_lshr_b32 s11, s10, 2
      s_and_b32 s10, s10, 3
      s_lshl_b32 s11, s11, 6
      v_add_u32 v2, s11, v2
      s_lshl_b32 s24, s10, 6
      v_lshlrev_b32 v3, 8, v2
      v_lshlrev_b32 v4, 1, v2
      v_lshlrev_b32 v5, 3, v2
      s_waitcnt lgkmcnt(0)""")
    a.srd(12,4,5,N*256); a.srd(16,6,7,N*2); a.srd(20,8,9,TSTR)
    a("buffer_load_ushort v6, v4, s[16:19], 0 offen")
    for i in range(4): a(f"buffer_load_dwordx4 v[{8+4*i}:{11+4*i}], v3, s[12:15], s24 offen offset:{16*i}")
    a(f"""s_mul_i32 s25, s10, {8*GSTR}
      s_mov_b32 s26, 0xffff0000
      s_waitcnt vmcnt(4)
      v_lshlrev_b32 v6, 16, v6""")
    for i in range(4):
        a(f"s_waitcnt vmcnt({3-i + 2*i})")
        for j in range(4):
            r=8+4*i+j
            a(f"v_lshlrev_b32 v{24+2*j}, 16, v{r}\nv_and_b32 v{25+2*j}, s26, v{r}")
        for j in range(8): a(f"v_mul_f32 v{24+j}, v6, v{24+j}")
        for j in range(4): a(f"v_cvt_pk_bf16_f32 v{8+4*i+j}, v{24+2*j}, v{25+2*j}")
        for h in range(2):
            a(f"buffer_store_dwordx2 v[{8+4*i+2*h}:{9+4*i+2*h}], v5, s[20:23], s25 offen")
            if not (i==3 and h==1): a(f"s_add_u32 s25, s25, {GSTR}")
    a("s_endpgm")
    a(f"""K1_WEIGHTS:
      s_cmp_lg_u32 s2, 198
      s_cbranch_scc1 K1_W1
      v_mov_b32 v12, 0
      v_mov_b32 v13, 0
      v_mov_b32 v14, 0
      v_mov_b32 v15, 0
      v_lshlrev_b32 v16, 6, v0
      s_waitcnt lgkmcnt(0)""")
    a.srd(28,8,9,65536,OFF_FLAG)
    for i in range(4): a(f"buffer_store_dwordx4 v[12:15], v16, s[28:31], 0 offen offset:{16*i}")
    a(f"""
      K1_W1:
      s_cmp_lg_u32 s3, 0
      s_cbranch_scc1 K1_CP
      s_load_dwordx8 s[36:43], s[0:1], 32
      s_load_dwordx2 s[6:7], s[0:1], 64
      s_sub_u32 s4, s2, 198
      s_bfe_u32 s10, s4, 0x30001
      s_and_b32 s11, s4, 1""")
    lane_setup(a)
    a("s_waitcnt lgkmcnt(0)")
    a.srd(20,8,9,WT_SIZE,OFF_WT)
    A0=32; B0=16; ACC=96; T=32
    a("s_cmp_ge_u32 s4, 16\ns_cbranch_scc1 K1_WV")
    a.srd(24,36,37,32768); a.srd(28,38,39,32768)
    for s_ in range(4): a(f"buffer_load_dwordx4 v[{B0+4*s_}:{B0+4*s_+3}], v3, s[28:31], s17 offen offset:{64*s_}")
    a("s_branch K1_WA\nK1_WV:")
    a.srd(24,40,41,32768); a.srd(28,42,43,32768); a.srd(32,6,7,256)
    a(f"""v_lshrrev_b32 v15, 1, v8
      buffer_load_ushort v10, v15, s[32:35], 0 offen
      v_lshl_add_u32 v15, v5, 11, v15""")
    for s_ in range(4):
        a(f"s_mov_b32 s18, {8192*s_}")
        for j in range(8):
            a(f"buffer_load_ushort v{96+8*s_+j}, v15, s[28:31], s18 offen offset:{256*j}")
    a("K1_WA:")
    for i in range(4):
        so="s15" if i<2 else "s16"
        for s_ in range(4):
            a(f"buffer_load_dwordx4 v[{A0+16*i+4*s_}:{A0+16*i+4*s_+3}], v3, s[24:27], {so} offen offset:{(i&1)*1024+64*s_}")
    a(f"""s_lshl_b32 s18, s4, 12
      s_lshl_b32 s19, s4, 8
      s_add_u32 s19, s19, {WT_CS}
      v_lshlrev_b32 v13, 2, v2
      v_lshlrev_b32 v14, 6, v5
      s_waitcnt vmcnt(0)
      s_cmp_lt_u32 s4, 16
      s_cbranch_scc1 K1_WB""")
    for k in range(16): a(f"v_lshl_or_b32 v{B0+k}, v{97+2*k}, 16, v{96+2*k}")
    a("s_nop 1\nK1_WB:")
    for s_ in range(4):
        for i in range(4):
            c = "0" if s_==0 else f"v[{ACC+4*i}:{ACC+4*i+3}]"
            a(f"v_mfma_f32_16x16x32_bf16 v[{ACC+4*i}:{ACC+4*i+3}], v[{A0+16*i+4*s_}:{A0+16*i+4*s_+3}], v[{B0+4*s_}:{B0+4*s_+3}], {c}")
    a("s_nop 7")
    for i in range(4): a(f"buffer_store_dwordx4 v[{ACC+4*i}:{ACC+4*i+3}], v11, s[20:23], s18 offen offset:{1024*i}")
    a(f"v_add_f32 v12, v{ACC}, v{ACC+1}")
    for i in range(2,16): a(f"v_add_f32 v12, v12, v{ACC+i}")
    a("buffer_store_dword v12, v13, s[20:23], s19 offen")
    a("v_lshlrev_b32 v10, 16, v10")
    for i in range(16): a(f"v_mul_f32 v{64+i}, v10, v{ACC+i}")
    row16_reduce(a,ACC,T,16); row16_reduce(a,64,48,16)
    a(f"""s_add_u32 s19, s19, 8192
      s_add_u32 s18, s19, {8192-4096}
      s_mov_b32 exec_lo, 0x00010001
      s_mov_b32 exec_hi, 0x00010001""")
    for i in range(4): a(f"buffer_store_dwordx4 v[{T+4*i}:{T+4*i+3}], v14, s[20:23], s19 offen offset:{16*i}")
    a("s_cmp_lt_u32 s4, 16\ns_cbranch_scc1 K1_END")
    for i in range(4): a(f"buffer_store_dwordx4 v[{48+4*i}:{48+4*i+3}], v14, s[20:23], s18 offen offset:{16*i}")
    a("K1_END:\ns_endpgm\nK1_CP:")
    if os.environ.get("CPF","1")=="1":
        a("s_sub_u32 s3, s3, 1"); code_prefetch(a,"build_kernel","CODE_END",3,15,5)
    a("s_endpgm")
    return a.text(), desc(name,128,102 if STAMP else 64)

def lane_setup(a):
    a(f"""v_and_b32 v4, 15, v2
      v_lshrrev_b32 v5, 4, v2
      v_lshrrev_b32 v6, 2, v4
      v_and_b32 v7, 3, v4
      v_lshl_add_u32 v6, v6, 3, v7
      v_lshlrev_b32 v3, 8, v6
      v_lshl_add_u32 v3, v5, 4, v3
      s_lshr_b32 s12, s10, 1
      s_and_b32 s13, s10, 1
      s_lshl_b32 s12, s12, 5
      s_lshl_b32 s13, s13, 2
      s_add_u32 s12, s12, s13
      v_add_lshl_u32 v8, v6, s12, 2
      v_lshlrev_b32 v9, 5, v5
      s_lshl_b32 s14, s11, 8
      v_add_u32 v9, s14, v9
      v_lshlrev_b32 v11, 4, v2
      s_lshl_b32 s15, s11, 14
      s_add_u32 s16, s15, 8192
      s_lshl_b32 s17, s12, 8""")

def weights_stage2(a,first_wg):
    kappa=128**-0.5*math.log2(math.e)
    ACC=16; T=32
    a(f"""W2_START:
      s_cmp_lg_u32 s3, 0
      s_cbranch_scc1 W2_END
      s_waitcnt lgkmcnt(0)
      s_load_dwordx2 s[6:7], s[0:1], 64
      s_sub_u32 s4, s2, {first_wg}
      s_bfe_u32 s10, s4, 0x30001
      s_and_b32 s11, s4, 1""")
    lane_setup(a)
    a(f"""v_lshlrev_b32 v13, 2, v2
      v_lshlrev_b32 v14, 6, v2
      v_and_b32 v15, 3, v2
      v_lshlrev_b32 v15, 5, v15
      v_bfe_u32 v12, v2, 2, 1
      v_lshl_add_u32 v15, v12, 8, v15
      v_mov_b32 v48, 0
      v_mov_b32 v49, 0
      v_mov_b32 v50, 0
      v_mov_b32 v51, 0
      ds_write_b128 v11, v[48:51]
      ds_write_b128 v11, v[48:51] offset:1024
      s_waitcnt lgkmcnt(0)""")
    a.srd(20,8,9,WT_SIZE,OFF_WT); a.srd(24,8,9,69*1024,OFF_WF); a.srd(28,6,7,256)
    def rowsums(goff,loff,tot):
        a(f"s_mov_b32 s18, {goff}")
        for i in range(4): a(f"buffer_load_dwordx4 v[{T+4*i}:{T+4*i+3}], v14, s[20:23], s18 offen offset:{16*i}")
        a("s_waitcnt vmcnt(0)")
        for i in range(16): a(f"ds_add_f32 v15, v{T+i} offset:{loff+((i>>3)*32+((i>>2)&1)*4+(i&3))*4}")
        a(f"v_add_f32 v12, v{T}, v{T+1}")
        for i in range(2,16): a(f"v_add_f32 v12, v12, v{T+i}")
        wave_scan_f32(a,12)
        a(f"s_nop 1\nv_readlane_b32 s{tot}, v12, 63")
    a("s_cmp_eq_u32 s4, 32\ns_cbranch_scc1 W2_EXT")
    a(f"""s_lshl_b32 s18, s4, 12
      s_and_b32 s19, s4, 30
      s_lshl_b32 s19, s19, 8
      s_add_u32 s19, s19, {WT_CS}
      buffer_load_dword v52, v13, s[20:23], s19 offen
      buffer_load_dword v53, v13, s[20:23], s19 offen offset:256""")
    for i in range(4): a(f"buffer_load_dwordx4 v[{ACC+4*i}:{ACC+4*i+3}], v11, s[20:23], s18 offen offset:{1024*i}")
    a(f"""s_mov_b32 s32, 0
      s_cmp_ge_u32 s4, 16
      s_cbranch_scc1 W2_NOROW""")
    rowsums(WT_R1,0,32)
    a(f"""s_mov_b32 s33, {f2u(kappa):#x}
      s_branch W2_R2
      W2_NOROW:
      s_mov_b32 s33, 1.0
      W2_R2:
      s_waitcnt vmcnt(0) lgkmcnt(0)
      v_add_f32 v52, v52, v53
      v_xor_b32 v54, 128, v13""")
    for i in range(4): a(f"ds_read_b128 v[{T+4*i}:{T+4*i+3}], v9 offset:{((i>>1)*32+(i&1)*4)*4}")
    a(f"""ds_swizzle_b32 v53, v52 offset:0x401F
      s_waitcnt lgkmcnt(0)
      v_add_f32 v52, v52, v53
      ds_bpermute_b32 v53, v54, v52
      s_mov_b32 s34, {f2u(1/128):#x}
      s_mov_b32 s35, {f2u(-1/128):#x}
      v_mov_b32 v55, s32
      s_waitcnt lgkmcnt(0)
      v_add_f32 v52, v52, v53
      v_fma_f32 v52, v55, s34, -v52
      v_mul_f32 v52, s34, v52
      v_mul_f32 v52, s33, v52""")
    for i in range(16): a(f"v_fma_f32 v{ACC+i}, v{T+i}, s35, v{ACC+i}")
    for i in range(16): a(f"v_fma_f32 v{ACC+i}, v{ACC+i}, s33, v52")
    a("s_lshl_b32 s18, s4, 11")
    for c in range(2):
        for h in range(2):
            for p in range(2):
                a(f"v_cvt_pk_bf16_f32 v{48+4*c+2*h+p}, v{ACC+8*c+4*h+2*p}, v{ACC+8*c+4*h+2*p+1}")
        a(f"buffer_store_dwordx4 v[{48+4*c}:{51+4*c}], v11, s[24:27], s18 offen offset:{1024*c}")
    a("s_endpgm\nW2_EXT:")
    a(f"""v_lshlrev_b32 v16, 1, v2
      buffer_load_ushort v52, v16, s[28:31], 0 offen
      buffer_load_ushort v53, v16, s[28:31], 0 offen offset:128""")
    rowsums(WT_R1+4096,1024,32); rowsums(WT_R2,1536,33)
    a(f"""v_lshlrev_b32 v52, 16, v52
      v_lshlrev_b32 v53, 16, v53
      v_mov_b32 v54, 1.0
      ds_write_b32 v13, v54
      ds_write_b32 v13, v54 offset:256
      ds_write_b32 v13, v52 offset:512
      ds_write_b32 v13, v53 offset:768
      v_add_f32 v12, v52, v53
      v_mov_b32 v55, s32
      v_mov_b32 v56, s33
      v_mul_f32 v55, {f2u(-1/128):#x}, v55
      v_mul_f32 v56, {f2u(-1/128):#x}, v56
      ds_add_f32 v13, v55 offset:1024
      ds_add_f32 v13, v55 offset:1280
      ds_add_f32 v13, v56 offset:1536
      ds_add_f32 v13, v56 offset:1792""")
    wave_scan_f32(a,12)
    a(f"""s_mov_b32 s18, {68*1024}
      buffer_store_dword v12, v13, s[24:27], s18 offen
      v_lshlrev_b32 v17, 9, v7
      v_lshl_add_u32 v17, v5, 5, v17
      s_mov_b32 s18, 65536
      s_waitcnt lgkmcnt(0)""")
    for c in range(4):
        a(f"ds_read_b128 v[{T+8*c}:{T+8*c+3}], v17 offset:{128*c}\nds_read_b128 v[{T+8*c+4}:{T+8*c+7}], v17 offset:{128*c+16}")
    a("s_waitcnt lgkmcnt(0)")
    for c in range(4):
        for p in range(4): a(f"v_cvt_pk_bf16_f32 v{16+4*c+p}, v{T+8*c+2*p}, v{T+8*c+2*p+1}")
        a(f"buffer_store_dwordx4 v[{16+4*c}:{19+4*c}], v11, s[24:27], s18 offen offset:{1024*c}")
    a("W2_END:\ns_endpgm")
```

```python
N=25000; NP=25088; E=400000
GSTR=NP*8
TSTR=32*GSTR
OFF_G=0
OFF_EDG=8*TSTR
OFF_OFFS=0x3290000
OFF_BLOB=0x3A00000
OFF_SCALE=0x34B0000
OFF_HDR=0x34D0000
OFF_FLAG=0x34E0000
OFF_WF=0x34F0000
OFF_WT=0x3510000
WT_CS=131072; WT_R1=WT_CS+8192; WT_R2=WT_R1+8192; WT_SIZE=WT_R2+8192
OFF_OVF=0x4000000
OVF_SIZE=0x3400000
WS_SIZE=268435456
PW=100
PE=4000
NBIN=168
PIECE=3136
import os
SEGV=os.environ.get('SEGV','a')
SEG={'a':[0,896,2048,3136],'b':[0,1152,2144,3136]}[SEGV]
NCH={'a':(7,9,9),'b':(9,8,8)}[SEGV]
NE={'a':2,'b':3}[SEGV]
TST=1152
ZT=7*TST
TB_=(ZT+32)*8
LDS_OUT=2*TB_
ZO=PIECE
LDS_CNT=LDS_OUT+(PIECE+32)*8
BLOBSZ=20480

class Asm:
    gid=0
    def __init__(self): self.l=[]; self.uid=0
    def __call__(self,s=""):
        for ln in s.split("\n"):
            ln=ln.strip()
            if ln: self.l.append(ln if ln.endswith(":") else "    "+ln)
    def label(self,p="L"):
        Asm.gid+=1; return f"{p}_{Asm.gid}"
    def srd(self,d,lo,hi,size,off=0):
        if off:
            self(f"s_add_u32 s{d}, s{lo}, {off:#x}\ns_addc_u32 s{d+1}, s{hi}, 0")
        else:
            self(f"s_mov_b32 s{d}, s{lo}\ns_mov_b32 s{d+1}, s{hi}")
        self(f"s_mov_b32 s{d+2}, {size:#x}\ns_mov_b32 s{d+3}, 0x20000")
    def text(self): return "\n".join(self.l)+"\n"

def desc(name,vgpr,sgpr=102,accum=None):
    accum = accum or ((vgpr+3)//4*4)
    return f""".section .rodata,"a"
.p2align 6
.amdhsa_kernel {name}
  .amdhsa_next_free_vgpr {vgpr}
  .amdhsa_next_free_sgpr {sgpr}
  .amdhsa_accum_offset {accum}
  .amdhsa_group_segment_fixed_size 0
  .amdhsa_kernarg_size 96
  .amdhsa_user_sgpr_count 2
  .amdhsa_user_sgpr_kernarg_segment_ptr 1
  .amdhsa_system_sgpr_workgroup_id_x 1
  .amdhsa_float_denorm_mode_32 3
.end_amdhsa_kernel
"""
def head(name):
    return f""".text
.globl {name}
.p2align 8
.type {name},@function
{name}:
"""
def wave_scan_u32(a,v):
    for sh in (1,2,4,8):
        a(f"s_nop 1\nv_add_u32_dpp v{v}, v{v}, v{v} row_shr:{sh} row_mask:0xf bank_mask:0xf bound_ctrl:0")
    a(f"s_nop 1\nv_add_u32_dpp v{v}, v{v}, v{v} row_bcast:15 row_mask:0xa bank_mask:0xf")
    a(f"s_nop 1\nv_add_u32_dpp v{v}, v{v}, v{v} row_bcast:31 row_mask:0xc bank_mask:0xf")

import os
STAMP=os.environ.get("STAMP","")
class Stamper:
    def __init__(self,a,on): self.a=a; self.on=on; self.n=0
    def __call__(self):
        if not self.on: return
        if "fine" in os.environ.get("K3X",""):
            self.n=14; return
        self.a(f"s_memtime s[{72+2*self.n}:{73+2*self.n}]"); self.n+=1
    def dump(self,wg,wave,base=0,wavereg=3):
        if not self.on: return
        a=self.a; l=a.label("ST")
        a(f"""s_cmp_lg_u32 s{wavereg}, {wave}
          s_cbranch_scc1 {l}
          s_load_dwordx2 s[100:101], s[0:1], 88
          s_lshl_b32 vcc_lo, s2, 8
          s_add_u32 vcc_lo, vcc_lo, {OFF_ST:#x}
          s_waitcnt lgkmcnt(0)
          s_add_u32 s100, s100, vcc_lo
          s_addc_u32 s101, s101, 0
          s_mov_b64 exec, 1""")
        for i in range(self.n):
            a(f"v_mov_b32 v0, s{72+2*i}\nv_mov_b32 v1, {4*(base+i)}\nglobal_store_dword v1, v0, s[100:101]")
        a(f"s_waitcnt vmcnt(0)\n{l}:")
OFF_ST=0x7F00000

ROWS={0:[6,3,1],1:[5,4,2,0]}
if SEGV=='a':
    REGS=[{0:[6,6,6],1:[5,5,5,5]},{0:[9,4,3],1:[5,5,3,3]},{0:[12,6,6],1:[7,6,6,5]},{0:[11,5,4],1:[7,5,4,4]}]
    UNITS=[5,4,6,5]; UOFF=[0,5,9,15]
else:
    REGS=[{0:[6,6,6],1:[5,5,5,5]}]+[{0:[11,5,4],1:[7,6,4,3]}]*3
    UNITS=[5,5,5,5]; UOFF=[0,5,10,15]
E0=[0,0,1,1]
LAY=[{h:[(ROWS[h][i],sum(REGS[p][h][:i]),REGS[p][h][i]) for i in range(len(ROWS[h]))] for h in (0,1)} for p in range(4)]
SORT=os.environ.get("SORT","class")
CAPS={"class":[[3]*7,[2,2,3,3,4,4,6],[3,3,4,4,5,5,7],[3,3,4,4,5,5,7]],
      "global":[[3]*7,[1,2,2,2,3,3,6],[2,3,3,3,4,5,7],[2,3,3,3,4,4,7]]}[SORT]
if SEGV=='b': CAPS=[[3]*7,[2,3,3,4,4,5,7],[3,3,3,4,4,5,7],[3,3,3,4,4,5,7]]
if os.environ.get("CAPS"): CAPS=eval(os.environ["CAPS"])
OFF_DST=0x3540000

def code_prefetch(a,first,last,widx,nw,per,sr=40,vt=20):
    l=a.label("CP")
    a(f"""s_getpc_b64 s[{sr}:{sr+1}]
      {l}:
      s_add_u32 s{sr}, s{sr}, {first}-{l}
      s_addc_u32 s{sr+1}, s{sr+1}, 0
      s_mov_b32 s{sr+2}, {last}-{first}
      s_mov_b32 s{sr+3}, 0x20000
      v_and_b32 v{vt}, 63, v0
      v_lshlrev_b32 v{vt}, 4, v{vt}
      s_lshl_b32 s{sr+4}, s{widx}, 10""")
    for i in range(per):
        a(f"buffer_load_dwordx4 v[{vt+4}:{vt+7}], v{vt}, s[{sr}:{sr+3}], s{sr+4} offen\ns_add_u32 s{sr+4}, s{sr+4}, {nw*1024}")
```

```python
from common import *
import math
TJ=int(os.environ.get('TJ',13)); NTW=-(-1568//TJ)
def wave_scan_f32(a,v):
    for sh in (1,2,4,8):
        a(f"s_nop 1\nv_add_f32_dpp v{v}, v{v}, v{v} row_shr:{sh} row_mask:0xf bank_mask:0xf bound_ctrl:0")
    a(f"s_nop 1\nv_add_f32_dpp v{v}, v{v}, v{v} row_bcast:15 row_mask:0xa bank_mask:0xf")
    a(f"s_nop 1\nv_add_f32_dpp v{v}, v{v}, v{v} row_bcast:31 row_mask:0xc bank_mask:0xf")
def f2u(x):
    import struct; return struct.unpack("<I",struct.pack("<f",x))[0]

def row16_reduce(a,src,dst,n):
    for i in range(n): a(f"v_add_f32_dpp v{dst+i}, v{src+i}, v{src+i} row_ror:8 row_mask:0xf bank_mask:0xf")
    for sh in (4,2,1):
        for i in range(n): a(f"v_add_f32_dpp v{dst+i}, v{dst+i}, v{dst+i} row_ror:{sh} row_mask:0xf bank_mask:0xf")

def gen_k1(name):
    a=Asm(); a.l.append(head(name))
    st=Stamper(a,"k1" in STAMP)
    st()
    a(f"""s_cmp_ge_u32 s2, {PW+32+NTW}
      s_cbranch_scc1 K1_END
      s_load_dwordx2 s[8:9], s[0:1], 88
      v_lshrrev_b32 v1, 6, v0
      v_and_b32 v2, 63, v0
      s_cmp_ge_u32 s2, {PW}
      v_readfirstlane_b32 s3, v1
      s_cbranch_scc1 K1_NOTPART""")
    a(f"""s_load_dwordx4 s[4:7], s[0:1], 8
      v_lshlrev_b32 v3, 2, v0
      v_mov_b32 v4, 0
      ds_write_b32 v3, v4
      v_lshlrev_b32 v3, 4, v0
      s_mul_i32 s10, s2, {PE*4}
      s_waitcnt lgkmcnt(0)""")
    a.srd(12,4,5,E*4); a.srd(16,6,7,E*4)
    a(f"""v_cmp_gt_u32 vcc, {PE//4}, v0
      s_and_saveexec_b64 s[20:21], vcc
      buffer_load_dwordx4 v[8:11], v3, s[16:19], s10 offen
      buffer_load_dwordx4 v[4:7], v3, s[12:15], s10 offen
      s_movk_i32 s22, {SEG[1]}
      s_movk_i32 s23, {SEG[2]}
      s_movk_i32 s24, -448
      s_movk_i32 s25, {-PIECE}
      s_movk_i32 s42, {TST}
      v_mov_b32 v28, 1
      v_mov_b32 v29, {SEG[1]}
      v_mov_b32 v30, {SEG[2]}
      s_barrier
      s_waitcnt vmcnt(1)""")
    R4=range(4)
    for i in R4: a(f"v_lshrrev_b32 v{12+i}, 6, v{8+i}")
    for i in R4: a(f"v_mul_u32_u24 v{32+i}, 1338, v{12+i}")
    for i in R4: a(f"v_mul_u32_u24 v{12+i}, 9363, v{12+i}")
    for i in R4: a(f"v_lshrrev_b32 v{32+i}, 16, v{32+i}")
    for i in R4: a(f"v_lshrrev_b32 v{12+i}, 16, v{12+i}")
    for i in R4: a(f"v_mad_i32_i24 v{8+i}, v{12+i}, s24, v{8+i}")
    for i in R4: a(f"v_lshl_add_u32 v{12+i}, v{12+i}, 1, v{12+i}")
    a("s_waitcnt vmcnt(0)")
    for i in R4: a(f"v_lshrrev_b32 v{36+i}, 6, v{4+i}")
    for i in R4: a(f"v_mul_u32_u24 v{36+i}, 1338, v{36+i}")
    for i in R4: a(f"v_lshrrev_b32 v{36+i}, 16, v{36+i}")
    for i in R4: a(f"v_mad_i32_i24 v{4+i}, v{36+i}, s25, v{4+i}")
    for i in R4: a(f"v_cmp_le_u32 s[{26+2*i}:{27+2*i}], s22, v{4+i}")
    for i in R4: a(f"v_cmp_le_u32 s[{34+2*i}:{35+2*i}], s23, v{4+i}")
    for i in R4: a(f"v_cndmask_b32 v{16+i}, 0, v29, s[{26+2*i}:{27+2*i}]")
    for i in R4: a(f"v_cndmask_b32 v{40+i}, 0, 1, s[{26+2*i}:{27+2*i}]")
    for i in R4: a(f"v_cndmask_b32 v{16+i}, v{16+i}, v30, s[{34+2*i}:{35+2*i}]")
    for i in R4: a(f"v_cndmask_b32 v{40+i}, v{40+i}, 2, s[{34+2*i}:{35+2*i}]")
    for i in R4: a(f"v_cmp_gt_u32 s[{26+2*i}:{27+2*i}], v{36+i}, v{32+i}")
    for i in R4: a(f"v_cmp_eq_u32 s[{34+2*i}:{35+2*i}], v{36+i}, v{32+i}")
    for i in R4: a(f"v_sub_u32 v{16+i}, v{4+i}, v{16+i}")
    for i in R4: a(f"v_subb_co_u32 v{36+i}, vcc, v{36+i}, 0, s[{26+2*i}:{27+2*i}]")
    for i in R4: a(f"v_or_b32 v{44+i}, 0x200, v{8+i}")
    for i in R4: a(f"v_mad_u32_u24 v{16+i}, v{36+i}, s42, v{16+i}")
    for i in R4: a(f"v_cndmask_b32 v{40+i}, v{40+i}, 0, s[{34+2*i}:{35+2*i}]")
    for i in R4: a(f"v_cndmask_b32 v{8+i}, v{8+i}, v{44+i}, s[{34+2*i}:{35+2*i}]")
    for i in R4: a(f"v_cndmask_b32 v{4+i}, v{16+i}, v{4+i}, s[{34+2*i}:{35+2*i}]")
    for i in R4: a(f"v_add_lshl_u32 v{12+i}, v{12+i}, v{40+i}, 2")
    for i in R4: a(f"ds_add_rtn_u32 v{16+i}, v{12+i}, v28")
    for i in R4: a(f"v_lshl_or_b32 v{4+i}, v{8+i}, 16, v{4+i}")
    a(f"""s_waitcnt lgkmcnt(0)
      s_barrier
      s_cmp_lg_u32 s3, 0
      s_cbranch_scc1 K1_P_SKIPSCAN
      v_lshlrev_b32 v20, 4, v2
      ds_read_b128 v[24:27], v20
      s_mul_i32 s11, s2, {NBIN*4}
      s_add_u32 s44, s8, {OFF_OFFS:#x}
      s_addc_u32 s45, s9, 0
      s_add_u32 s44, s44, s11
      s_addc_u32 s45, s45, 0
      s_mov_b32 s46, {NBIN*4}
      s_mov_b32 s47, 0x20000
      s_waitcnt lgkmcnt(0)
      v_add_u32 v21, v24, v25
      v_add3_u32 v21, v21, v26, v27
      v_mov_b32 v22, v21""")
    wave_scan_u32(a,22)
    a(f"""v_sub_u32 v32, v22, v21
      v_add_u32 v33, v32, v24
      v_add_u32 v34, v33, v25
      v_add_u32 v35, v34, v26
      ds_write_b128 v20, v[32:35] offset:1024
      v_lshl_or_b32 v36, v24, 16, v32
      v_lshl_or_b32 v37, v25, 16, v33
      v_lshl_or_b32 v38, v26, 16, v34
      v_lshl_or_b32 v39, v27, 16, v35
      buffer_store_dwordx4 v[36:39], v20, s[44:47], 0 offen
      s_waitcnt lgkmcnt(0)
      K1_P_SKIPSCAN:
      s_barrier""")
    for i in range(4): a(f"ds_read_b32 v{20+i}, v{12+i} offset:1024")
    a.srd(12,8,9,E*4,OFF_EDG)
    for i in range(4):
        a(f"s_waitcnt lgkmcnt({3-i})\nv_add_lshl_u32 v{20+i}, v{20+i}, v{16+i}, 2")
    for i in range(4): a(f"ds_write_b32 v{20+i}, v{4+i} offset:2048")
    a(f"""s_waitcnt lgkmcnt(0)
      s_barrier
      ds_read_b128 v[4:7], v3 offset:2048
      s_waitcnt lgkmcnt(0)
      buffer_store_dwordx4 v[4:7], v3, s[12:15], s10 offen
      s_endpgm""")
    a("K1_NOTPART:")
    a(f"""K1_WEIGHTS:
      s_cmp_lg_u32 s2, {PW}
      s_cbranch_scc1 K1_W1
      v_mov_b32 v12, 0
      v_mov_b32 v13, 0
      v_mov_b32 v14, 0
      v_mov_b32 v15, 0
      v_lshlrev_b32 v16, 6, v0
      s_waitcnt lgkmcnt(0)""")
    a.srd(28,8,9,65536,OFF_FLAG)
    for i in range(4): a(f"buffer_store_dwordx4 v[12:15], v16, s[28:31], 0 offen offset:{16*i}")
    a(f"""
      K1_W1:
      s_cmp_ge_u32 s2, {PW+32}
      s_cbranch_scc1 TR_START
      s_cmp_lg_u32 s3, 0
      s_cbranch_scc1 K1_CP
      s_load_dwordx8 s[36:43], s[0:1], 32
      s_load_dwordx2 s[6:7], s[0:1], 64
      s_sub_u32 s4, s2, {PW}
      s_bfe_u32 s10, s4, 0x30001
      s_and_b32 s11, s4, 1""")
    lane_setup(a)
    a("s_waitcnt lgkmcnt(0)")
    a.srd(20,8,9,WT_SIZE,OFF_WT)
    A0=32; B0=16; ACC=96; T=32
    a("s_cmp_ge_u32 s4, 16\ns_cbranch_scc1 K1_WV")
    a.srd(24,36,37,32768); a.srd(28,38,39,32768)
    for s_ in range(4): a(f"buffer_load_dwordx4 v[{B0+4*s_}:{B0+4*s_+3}], v3, s[28:31], s17 offen offset:{64*s_}")
    a("s_branch K1_WA\nK1_WV:")
    a.srd(24,40,41,32768); a.srd(28,42,43,32768); a.srd(32,6,7,256)
    a(f"""v_lshrrev_b32 v15, 1, v8
      buffer_load_ushort v10, v15, s[32:35], 0 offen
      v_lshl_add_u32 v15, v5, 11, v15""")
    for s_ in range(4):
        a(f"s_mov_b32 s18, {8192*s_}")
        for j in range(8):
            a(f"buffer_load_ushort v{96+8*s_+j}, v15, s[28:31], s18 offen offset:{256*j}")
    a("K1_WA:")
    for i in range(4):
        so="s15" if i<2 else "s16"
        for s_ in range(4):
            a(f"buffer_load_dwordx4 v[{A0+16*i+4*s_}:{A0+16*i+4*s_+3}], v3, s[24:27], {so} offen offset:{(i&1)*1024+64*s_}")
    a(f"""s_lshl_b32 s18, s4, 12
      s_lshl_b32 s19, s4, 8
      s_add_u32 s19, s19, {WT_CS}
      v_lshlrev_b32 v13, 2, v2
      v_lshlrev_b32 v14, 6, v5
      s_waitcnt vmcnt(0)
      s_cmp_lt_u32 s4, 16
      s_cbranch_scc1 K1_WB""")
    for k in range(16): a(f"v_lshl_or_b32 v{B0+k}, v{97+2*k}, 16, v{96+2*k}")
    a("s_nop 1\nK1_WB:")
    for s_ in range(4):
        for i in range(4):
            c = "0" if s_==0 else f"v[{ACC+4*i}:{ACC+4*i+3}]"
            a(f"v_mfma_f32_16x16x32_bf16 v[{ACC+4*i}:{ACC+4*i+3}], v[{A0+16*i+4*s_}:{A0+16*i+4*s_+3}], v[{B0+4*s_}:{B0+4*s_+3}], {c}")
    a("s_nop 7")
    for i in range(4): a(f"buffer_store_dwordx4 v[{ACC+4*i}:{ACC+4*i+3}], v11, s[20:23], s18 offen offset:{1024*i}")
    a(f"v_add_f32 v12, v{ACC}, v{ACC+1}")
    for i in range(2,16): a(f"v_add_f32 v12, v12, v{ACC+i}")
    a("buffer_store_dword v12, v13, s[20:23], s19 offen")
    a("v_lshlrev_b32 v10, 16, v10")
    for i in range(16): a(f"v_mul_f32 v{64+i}, v10, v{ACC+i}")
    row16_reduce(a,ACC,T,16); row16_reduce(a,64,48,16)
    a(f"""s_add_u32 s19, s19, 8192
      s_add_u32 s18, s19, {8192-4096}
      s_mov_b32 exec_lo, 0x00010001
      s_mov_b32 exec_hi, 0x00010001""")
    for i in range(4): a(f"buffer_store_dwordx4 v[{T+4*i}:{T+4*i+3}], v14, s[20:23], s19 offen offset:{16*i}")
    a("s_cmp_lt_u32 s4, 16\ns_cbranch_scc1 K1_END")
    for i in range(4): a(f"buffer_store_dwordx4 v[{48+4*i}:{48+4*i+3}], v14, s[20:23], s18 offen offset:{16*i}")
    a("K1_END:\ns_endpgm\nK1_CP:")
    if os.environ.get("CPF","1")=="1":
        a("s_sub_u32 s3, s3, 1"); code_prefetch(a,"build_kernel","CODE_END",3,15,4)
    a("s_endpgm")
    transpose(a,PW+32)
    return a.text(), desc(name,128,102 if STAMP else 64)

def lane_setup(a):
    a(f"""v_and_b32 v4, 15, v2
      v_lshrrev_b32 v5, 4, v2
      v_lshrrev_b32 v6, 2, v4
      v_and_b32 v7, 3, v4
      v_lshl_add_u32 v6, v6, 3, v7
      v_lshlrev_b32 v3, 8, v6
      v_lshl_add_u32 v3, v5, 4, v3
      s_lshr_b32 s12, s10, 1
      s_and_b32 s13, s10, 1
      s_lshl_b32 s12, s12, 5
      s_lshl_b32 s13, s13, 2
      s_add_u32 s12, s12, s13
      v_add_lshl_u32 v8, v6, s12, 2
      v_lshlrev_b32 v9, 5, v5
      s_lshl_b32 s14, s11, 8
      v_add_u32 v9, s14, v9
      v_lshlrev_b32 v11, 4, v2
      s_lshl_b32 s15, s11, 14
      s_add_u32 s16, s15, 8192
      s_lshl_b32 s17, s12, 8""")

def weights_stage2(a,first_wg):
    kappa=128**-0.5*math.log2(math.e)
    ACC=16; T=32
    a(f"""W2_START:
      s_cmp_lg_u32 s3, 0
      s_cbranch_scc1 W2_END
      s_waitcnt lgkmcnt(0)
      s_load_dwordx2 s[6:7], s[0:1], 64
      s_sub_u32 s4, s2, {first_wg}
      s_bfe_u32 s10, s4, 0x30001
      s_and_b32 s11, s4, 1""")
    lane_setup(a)
    a(f"""v_lshlrev_b32 v13, 2, v2
      v_lshlrev_b32 v14, 6, v2
      v_and_b32 v15, 3, v2
      v_lshlrev_b32 v15, 5, v15
      v_bfe_u32 v12, v2, 2, 1
      v_lshl_add_u32 v15, v12, 8, v15
      v_mov_b32 v48, 0
      v_mov_b32 v49, 0
      v_mov_b32 v50, 0
      v_mov_b32 v51, 0
      ds_write_b128 v11, v[48:51]
      ds_write_b128 v11, v[48:51] offset:1024
      s_waitcnt lgkmcnt(0)""")
    a.srd(20,8,9,WT_SIZE,OFF_WT); a.srd(24,8,9,69*1024,OFF_WF); a.srd(28,6,7,256)
    def rowsums(goff,loff,tot):
        a(f"s_mov_b32 s18, {goff}")
        for i in range(4): a(f"buffer_load_dwordx4 v[{T+4*i}:{T+4*i+3}], v14, s[20:23], s18 offen offset:{16*i}")
        a("s_waitcnt vmcnt(0)")
        for i in range(16): a(f"ds_add_f32 v15, v{T+i} offset:{loff+((i>>3)*32+((i>>2)&1)*4+(i&3))*4}")
        a(f"v_add_f32 v12, v{T}, v{T+1}")
        for i in range(2,16): a(f"v_add_f32 v12, v12, v{T+i}")
        wave_scan_f32(a,12)
        a(f"s_nop 1\nv_readlane_b32 s{tot}, v12, 63")
    a("s_cmp_eq_u32 s4, 32\ns_cbranch_scc1 W2_EXT")
    a(f"""s_lshl_b32 s18, s4, 12
      s_and_b32 s19, s4, 30
      s_lshl_b32 s19, s19, 8
      s_add_u32 s19, s19, {WT_CS}
      buffer_load_dword v52, v13, s[20:23], s19 offen
      buffer_load_dword v53, v13, s[20:23], s19 offen offset:256""")
    for i in range(4): a(f"buffer_load_dwordx4 v[{ACC+4*i}:{ACC+4*i+3}], v11, s[20:23], s18 offen offset:{1024*i}")
    a(f"""s_mov_b32 s32, 0
      s_cmp_ge_u32 s4, 16
      s_cbranch_scc1 W2_NOROW""")
    rowsums(WT_R1,0,32)
    a(f"""s_mov_b32 s33, {f2u(kappa):#x}
      s_branch W2_R2
      W2_NOROW:
      s_mov_b32 s33, 1.0
      W2_R2:
      s_waitcnt vmcnt(0) lgkmcnt(0)
      v_add_f32 v52, v52, v53
      v_xor_b32 v54, 128, v13""")
    for i in range(4): a(f"ds_read_b128 v[{T+4*i}:{T+4*i+3}], v9 offset:{((i>>1)*32+(i&1)*4)*4}")
    a(f"""ds_swizzle_b32 v53, v52 offset:0x401F
      s_waitcnt lgkmcnt(0)
      v_add_f32 v52, v52, v53
      ds_bpermute_b32 v53, v54, v52
      s_mov_b32 s34, {f2u(1/128):#x}
      s_mov_b32 s35, {f2u(-1/128):#x}
      v_mov_b32 v55, s32
      s_waitcnt lgkmcnt(0)
      v_add_f32 v52, v52, v53
      v_fma_f32 v52, v55, s34, -v52
      v_mul_f32 v52, s34, v52
      v_mul_f32 v52, s33, v52""")
    for i in range(16): a(f"v_fma_f32 v{ACC+i}, v{T+i}, s35, v{ACC+i}")
    for i in range(16): a(f"v_fma_f32 v{ACC+i}, v{ACC+i}, s33, v52")
    a("s_lshl_b32 s18, s4, 11")
    for c in range(2):
        for h in range(2):
            for p in range(2):
                a(f"v_cvt_pk_bf16_f32 v{48+4*c+2*h+p}, v{ACC+8*c+4*h+2*p}, v{ACC+8*c+4*h+2*p+1}")
        a(f"buffer_store_dwordx4 v[{48+4*c}:{51+4*c}], v11, s[24:27], s18 offen offset:{1024*c}")
    a("s_endpgm\nW2_EXT:")
    a(f"""v_lshlrev_b32 v16, 1, v2
      buffer_load_ushort v52, v16, s[28:31], 0 offen
      buffer_load_ushort v53, v16, s[28:31], 0 offen offset:128""")
    rowsums(WT_R1+4096,1024,32); rowsums(WT_R2,1536,33)
    a(f"""v_lshlrev_b32 v52, 16, v52
      v_lshlrev_b32 v53, 16, v53
      v_mov_b32 v54, 1.0
      ds_write_b32 v13, v54
      ds_write_b32 v13, v54 offset:256
      ds_write_b32 v13, v52 offset:512
      ds_write_b32 v13, v53 offset:768
      v_add_f32 v12, v52, v53
      v_mov_b32 v55, s32
      v_mov_b32 v56, s33
      v_mul_f32 v55, {f2u(-1/128):#x}, v55
      v_mul_f32 v56, {f2u(-1/128):#x}, v56
      ds_add_f32 v13, v55 offset:1024
      ds_add_f32 v13, v55 offset:1280
      ds_add_f32 v13, v56 offset:1536
      ds_add_f32 v13, v56 offset:1792""")
    wave_scan_f32(a,12)
    a(f"""s_mov_b32 s18, {68*1024}
      buffer_store_dword v12, v13, s[24:27], s18 offen
      v_lshlrev_b32 v17, 9, v7
      v_lshl_add_u32 v17, v5, 5, v17
      s_mov_b32 s18, 65536
      s_waitcnt lgkmcnt(0)""")
    for c in range(4):
        a(f"ds_read_b128 v[{T+8*c}:{T+8*c+3}], v17 offset:{128*c}\nds_read_b128 v[{T+8*c+4}:{T+8*c+7}], v17 offset:{128*c+16}")
    a("s_waitcnt lgkmcnt(0)")
    for c in range(4):
        for p in range(4): a(f"v_cvt_pk_bf16_f32 v{16+4*c+p}, v{T+8*c+2*p}, v{T+8*c+2*p+1}")
        a(f"buffer_store_dwordx4 v[{16+4*c}:{19+4*c}], v11, s[24:27], s18 offen offset:{1024*c}")
    a("W2_END:\ns_endpgm")

def transpose(a,first_wg):
    a(f"""TR_START:
      s_waitcnt lgkmcnt(0)
      s_load_dwordx2 s[4:5], s[0:1], 0
      s_load_dwordx2 s[6:7], s[0:1], 24
      s_sub_u32 s10, s2, {first_wg}
      s_mul_i32 s10, s10, {TJ}
      s_add_u32 s10, s10, s3
      s_cmp_ge_u32 s3, {TJ}
      s_cbranch_scc1 K1_END
      s_cmp_ge_u32 s10, 1568
      s_cbranch_scc1 K1_END
      v_lshlrev_b32 v3, 4, v2
      v_lshrrev_b32 v4, 4, v2
      v_lshlrev_b32 v5, 1, v4
      s_lshl_b32 s24, s10, 12
      s_lshl_b32 s25, s10, 5
      s_lshl_b32 s27, s10, 7
      s_lshl_b32 s11, s3, 12
      s_waitcnt lgkmcnt(0)""")
    a.srd(12,4,5,N*256); a.srd(16,6,7,N*2); a.srd(20,8,9,TSTR)
    for i in range(4): a(f"buffer_load_dwordx4 v[{8+4*i}:{11+4*i}], v3, s[12:15], s24 offen offset:{1024*i}")
    for i in range(4): a(f"buffer_load_ushort v{32+i}, v5, s[16:19], s25 offen offset:{8*i}")
    a(f"""v_and_b32 v6, 15, v2
      v_and_b32 v7, 7, v2
      v_lshrrev_b32 v36, 1, v4
      v_xor_b32 v36, v36, v7
      v_and_b32 v37, 1, v4
      v_lshlrev_b32 v6, 8, v6
      v_lshl_add_u32 v6, v37, 3, v6
      v_add_u32 v6, s11, v6
      v_lshrrev_b32 v38, 3, v2
      v_lshrrev_b32 v39, 1, v38
      v_xor_b32 v39, v39, v7
      s_mov_b32 s26, {GSTR}
      v_mul_u32_u24 v38, s26, v38
      v_lshl_add_u32 v40, v39, 4, v38
      v_xor_b32 v41, 64, v40
      v_add_u32 v42, s11, v3
      s_mov_b32 s26, 0xffff0000""")
    for i in range(4):
        a(f"s_waitcnt vmcnt({3-i})\nv_lshlrev_b32 v{32+i}, 16, v{32+i}\nv_xor_b32 v37, {2*i}, v36\nv_lshl_add_u32 v37, v37, 4, v6")
        for j in range(4):
            r=8+4*i+j
            a(f"v_lshlrev_b32 v{24+2*j}, 16, v{r}\nv_and_b32 v{25+2*j}, s26, v{r}")
        for j in range(8): a(f"v_mul_f32 v{24+j}, v{32+i}, v{24+j}")
        for j in range(4): a(f"v_cvt_pk_bf16_f32 v{8+4*i+j}, v{24+2*j}, v{25+2*j}")
        a(f"ds_write2_b64 v37, v[{8+4*i}:{9+4*i}], v[{10+4*i}:{11+4*i}] offset1:16")
    a("s_waitcnt lgkmcnt(0)")
    for i in range(4): a(f"ds_read_b128 v[{8+4*i}:{11+4*i}], v42 offset:{1024*i}")
    for i in range(4):
        a(f"s_waitcnt lgkmcnt({3-i})\nbuffer_store_dwordx4 v[{8+4*i}:{11+4*i}], v{41 if i&1 else 40}, s[20:23], s27 offen"+os.environ.get('TRS',''))
        if i<3: a(f"s_add_u32 s27, s27, {8*GSTR}")
    a("s_endpgm")
```

```python
from common import *
L_CNT=0
L_CNT2=4096
L_CUR2=8192
L_HIST=12288
L_RMAX=12544
L_OVF=12608
L_INFO=12800
L_STG=16896
L_NM=L_STG+24576
L_BM=L_NM+4096
L_LIST=L_BM+4096
L_LM=L_OVF+80
L_LC=L_OVF+72
K2_LDS=L_LIST+25600
GREEDY=os.environ.get('GREEDY','1')=='1'
SENT_T=ZT|(ZT<<16); SENT_O=ZO|(ZO<<16)
def lut(f,bits): return sum(f(r)<<(bits*r) for r in range(7))
def rowinfo(p):
    d={}
    for h,l in LAY[p].items():
        for s_,(r,pb,n) in enumerate(l): d[r]=(h,s_,pb,n)
    return d
RI=[rowinfo(p) for p in range(4)]
HS=lut(lambda r:RI[0][r][0]*4+RI[0][r][1],4)|(3<<28)
PB8=[lut(lambda r:RI[p][r][2]+24*RI[p][r][0],8) for p in range(4)]
CP4=[lut(lambda r:CAPS[p][r],4) for p in range(4)]
NR4=[lut(lambda r:RI[p][r][3],4) for p in range(4)]

def gen_k2(name):
    a=Asm(); a.l.append(head(name))
    a(f"""s_cmp_ge_u32 s2, {NBIN+33}
      s_cbranch_scc1 K2_END
      s_load_dwordx2 s[8:9], s[0:1], 88
      s_load_dwordx2 s[4:5], s[0:1], 24
      s_load_dwordx2 s[6:7], s[0:1], 80
      v_lshrrev_b32 v1, 6, v0
      v_and_b32 v2, 63, v0
      v_lshrrev_b32 v3, 5, v0
      v_readfirstlane_b32 s3, v1
      v_and_b32 v4, 31, v0
      s_cmp_ge_u32 s2, {NBIN}
      s_cbranch_scc1 W2_START
      s_mul_i32 s10, s2, 21846
      s_lshr_b32 s10, s10, 16
      s_mul_i32 s11, s10, 3
      s_sub_u32 s11, s2, s11
      v_mul_u32_u24 v5, {NBIN*4}, v3
      s_lshl_b32 s12, s2, 2
      v_lshlrev_b32 v7, 4, v0
      v_mov_b32 v8, 0
      v_mov_b32 v9, 0
      v_mov_b32 v10, 0
      v_mov_b32 v11, 0
      ds_write_b128 v7, v[8:11]
      s_and_b32 s13, s3, 3
      s_mul_i32 s13, s13, 0x80008
      s_add_u32 s14, s13, {SENT_O+0x10000:#x}
      s_add_u32 s13, s13, {SENT_T+0x10000:#x}
      v_mov_b32 v8, s13
      v_add_u32 v9, 0x20002, v8
      v_add_u32 v10, 0x40004, v8
      v_add_u32 v11, 0x60006, v8
      v_mov_b32 v20, s14
      v_add_u32 v21, 0x20002, v20
      v_add_u32 v22, 0x40004, v20
      v_add_u32 v23, 0x60006, v20
      s_min_u32 s64, s11, 1
      s_waitcnt lgkmcnt(0)""")
    a.srd(16,8,9,PW*NBIN*4,OFF_OFFS); a.srd(20,8,9,E*4,OFF_EDG); a.srd(24,4,5,N*2)
    for k in range(4):
        a(f"s_add_u32 s13, s12, {32*k*NBIN*4}\nbuffer_load_dword v{12+k}, v5, s[16:19], s13 offen")
    a(f"""s_mul_i32 s13, s10, 896
      v_lshl_add_u32 v16, v0, 1, s13
      buffer_load_ushort v16, v16, s[24:27], 0 offen
      s_cmp_ge_u32 s3, 12
      s_cbranch_scc1 K2_NOSTG
      ds_write_b128 v7, v[8:11] offset:{L_STG}
      ds_write_b128 v7, v[20:23] offset:{L_STG+12288}
      K2_NOSTG:
      v_mul_u32_u24 v17, {PE*4}, v3
      v_lshl_add_u32 v17, v4, 2, v17
      v_mov_b32 v18, 1
      v_add_u32 v19, 32, v4
      s_mov_b32 s14, 0xffff""")
    for reg,vals in ((66,[x&0xffffffff for x in PB8]),(67,[x>>32 for x in PB8]),(68,NR4),(69,UNITS),(70,UOFF),(71,CP4)):
        a(f"s_mov_b32 s{reg}, {vals[1]:#x}\ns_cmp_eq_u32 s11, 1\ns_cselect_b32 s{reg}, {vals[2]:#x}, s{reg}\ns_cmp_eq_u32 s11, 2\ns_cselect_b32 s{reg}, {vals[3]:#x}, s{reg}")
    a(f"""s_mov_b32 s48, {PB8[0]&0xffffffff:#x}
      s_mov_b32 s49, {PB8[0]>>32:#x}
      s_cmp_lt_u32 s3, 8
      s_cselect_b32 s48, s66, s48
      s_cselect_b32 s49, s67, s49
      s_cselect_b32 s50, s64, 0
      s_and_b32 s51, s3, 7
      s_lshl_b32 s51, s51, 3
      s_lshr_b64 s[48:49], s[48:49], s51
      s_lshl_b32 s48, s48, 1
      v_subrev_u32 v6, s48, v4
      v_lshlrev_b32 v6, v6, v18
      v_or_b32 v6, s50, v6
      v_mov_b32 v61, s50
      v_lshlrev_b32 v62, 2, v0
      v_add_u32 v62, {L_NM}, v62
      ds_write2st64_b32 v62, v61, v6 offset1:16""")
    for k in range(4):
        a(f"""s_waitcnt vmcnt({4-k+2*k})
          v_and_b32 v{20+k}, s14, v{12+k}
          v_lshrrev_b32 v{24+k}, 16, v{12+k}
          v_lshl_add_u32 v{20+k}, v{20+k}, 2, v17
          v_cmp_lt_u32 s[{30+2*k}:{31+2*k}], v4, v{24+k}
          v_cmp_lt_u32 s[{38+2*k}:{39+2*k}], v19, v{24+k}
          s_mov_b32 s13, {32*k*PE*4}
          buffer_load_dword v{28+k}, v{20+k}, s[20:23], s13 offen
          buffer_load_dword v{32+k}, v{20+k}, s[20:23], s13 offen offset:128""")
    a(f"""v_max_u32 v36, v24, v25
      v_max3_u32 v36, v36, v26, v27
      v_cmp_lt_u32 vcc, 64, v36
      s_waitcnt lgkmcnt(0)
      s_barrier
      s_mov_b64 s[46:47], vcc""")
    order=[0,4,1,5,2,6,3,7]
    for n,j in enumerate(order):
        a(f"""s_waitcnt vmcnt({7-n})
          s_mov_b64 exec, s[{30+2*j}:{31+2*j}]
          v_lshrrev_b32 v{36+j}, 14, v{28+j}
          v_and_b32 v{36+j}, 0xffc, v{36+j}
          ds_add_rtn_u32 v{44+j}, v{36+j}, v18""")
    a("s_mov_b64 exec, -1")
    a(f"""s_cmp_eq_u64 s[46:47], 0
      s_cbranch_scc1 K2_NOSLOWA
      ds_write_b32 v18, v18 offset:{L_HIST-1}""")
    for k in range(4):
        a(f"""v_add_u32 v52, 64, v4
          v_add_u32 v53, 256, v{20+k}
          s_mov_b32 s13, {32*k*PE*4}
          K2_SA{k}:
          v_cmp_lt_u32 vcc, v52, v{24+k}
          s_and_saveexec_b64 s[48:49], vcc
          s_cbranch_execz K2_SA{k}_E
          buffer_load_dword v54, v53, s[20:23], s13 offen
          s_waitcnt vmcnt(0)
          v_lshrrev_b32 v54, 14, v54
          v_and_b32 v54, 0xffc, v54
          ds_add_u32 v54, v18 offset:{L_CNT2}
          s_mov_b64 exec, s[48:49]
          v_add_u32 v52, 32, v52
          v_add_u32 v53, 128, v53
          s_branch K2_SA{k}
          K2_SA{k}_E:
          s_mov_b64 exec, s[48:49]""")
    a(f"""K2_NOSLOWA:
      s_waitcnt lgkmcnt(0)
      s_barrier
      s_mul_i32 s50, s10, 9363
      s_lshr_b32 s50, s50, 16
      s_mul_i32 s50, s50, 7
      s_sub_u32 s50, s10, s50
      s_mul_i32 s50, s50, 448
      v_lshlrev_b32 v52, 2, v0
      v_add_u32 v60, s50, v0""")
    if SORT=="class":
        a(f"""s_cmp_ge_u32 s3, 7
          s_cbranch_scc1 K2_SKIP2
          v_lshlrev_b32 v1, 2, v4
          v_add_u32 v5, 1024, v1
          ds_read2st64_b32 v[54:55], v52 offset0:0 offset1:{L_CNT2//256}
          ds_read2st64_b32 v[56:57], v52 offset0:8 offset1:{8+L_CNT2//256}
          ds_read_b32 v17, v18 offset:{L_HIST-1}""")
        CP=[8,10,12,14,58,62,56]
        for m in range(6): a(f"ds_read2_b32 v[{CP[m]}:{CP[m]+1}], v{1 if m<4 else 5} offset0:{64*(m&3)} offset1:{64*(m&3)+32}")
        a(f"""s_waitcnt lgkmcnt(6)
          v_add_u32 v53, v54, v55
          v_add_u32 v6, v56, v57
          v_readfirstlane_b32 s13, v17
          ds_read2_b32 v[56:57], v5 offset0:128 offset1:160
          v_lshl_add_u32 v54, v53, 4, v3
          v_mov_b32 v55, 0
          s_cmp_eq_u32 s13, 0
          s_waitcnt lgkmcnt(0)
          s_cbranch_scc1 K2_NOC2""")
        for m in range(14):
            a(f"ds_read_b32 v17, v1 offset:{L_CNT2+128*m}\ns_waitcnt lgkmcnt(0)\nv_add_u32 v{CP[m>>1]+(m&1)}, v{CP[m>>1]+(m&1)}, v17")
        a("K2_NOC2:")
        for m in range(14): a(f"v_lshl_add_u32 v{CP[m>>1]+(m&1)}, v{CP[m>>1]+(m&1)}, 4, {m}")
        for m in range(7):
            a(f"v_cmp_lt_u32 vcc, v{CP[m]}, v54\nv_cmp_lt_u32 s[48:49], v{CP[m]+1}, v54\ns_nop 0\nv_addc_co_u32 v55, vcc, 0, v55, vcc\nv_addc_co_u32 v55, vcc, 0, v55, s[48:49]")
        a("v_mov_b32 v57, v55")
        a(f"""v_lshrrev_b32 v58, 1, v57
          v_and_b32 v57, 1, v57
          v_lshl_add_u32 v57, v57, 5, v4""")
    else:
        a(f"""s_cmp_ge_u32 s3, 7
          s_cbranch_scc1 K2_SKIP1
          ds_read2st64_b32 v[54:55], v52 offset0:0 offset1:{L_CNT2//256}
          ds_read2st64_b32 v[56:57], v52 offset0:8 offset1:{8+L_CNT2//256}
          s_waitcnt lgkmcnt(0)
          v_add_u32 v53, v54, v55
          v_add_u32 v6, v56, v57
          v_min_u32 v54, 63, v53
          v_lshlrev_b32 v54, 2, v54
          ds_add_rtn_u32 v55, v54, v18 offset:{L_HIST}
          s_waitcnt lgkmcnt(0)
          K2_SKIP1:
          s_barrier
          s_cmp_ge_u32 s3, 7
          s_cbranch_scc1 K2_SKIP2
          v_lshlrev_b32 v56, 2, v2
          ds_read_b32 v56, v56 offset:{L_HIST}
          s_waitcnt lgkmcnt(0)
          v_mov_b32 v57, v56""")
        wave_scan_u32(a,57)
        a(f"""v_sub_u32 v57, v57, v56
          ds_bpermute_b32 v57, v54, v57
          s_waitcnt lgkmcnt(0)
          v_add_u32 v57, v57, v55
          v_lshrrev_b32 v58, 6, v57
          v_and_b32 v57, 63, v57""")
    a(f"""v_lshlrev_b32 v59, 2, v58
      ds_max_u32 v59, v53 offset:{L_RMAX}
      ds_max_u32 v59, v6 offset:{L_RMAX+32}
      s_mov_b32 s48, {PB8[0]&0xffffffff:#x}
      s_mov_b32 s49, {PB8[0]>>32:#x}
      s_mov_b32 s13, {NR4[0]:#x}
      s_mov_b32 s15, {HS:#x}
      v_lshlrev_b32 v61, 1, v59
      v_lshrrev_b64 v[62:63], v61, s[66:67]
      v_lshrrev_b64 v[54:55], v61, s[48:49]
      v_lshrrev_b32 v61, v59, s68
      v_lshrrev_b32 v56, v59, s13
      v_lshlrev_b32 v63, 8, v57
      v_lshl_or_b32 v63, v58, 24, v63
      v_and_b32 v62, 0xff, v62
      v_and_b32 v54, 0xff, v54
      v_and_b32 v61, 15, v61
      v_and_b32 v56, 15, v56
      v_lshl_or_b32 v62, v62, 1, v63
      v_lshl_or_b32 v61, v61, 17, v62
      v_lshl_add_u32 v54, v54, 1, v63
      v_lshl_or_b32 v54, v56, 17, v54
      v_add_u32 v54, {96+(8<<24):#x}, v54
      ds_write2st64_b32 v52, v61, v54 offset0:{L_INFO//256} offset1:{L_INFO//256+8}
      v_lshrrev_b32 v62, v59, s15
      s_cmp_eq_u32 s11, 1
      s_cbranch_scc1 K2_NOSCALE
      s_cmp_eq_u32 s11, 0
      s_cbranch_scc1 K2_DST""")
    a.srd(52,8,9,56*2048,OFF_SCALE)
    a(f"""v_and_b32 v62, 15, v62
      v_lshlrev_b32 v62, 8, v62
      v_lshl_add_u32 v62, v57, 2, v62
      s_lshl_b32 s51, s10, 11
      v_lshlrev_b32 v16, 16, v16
      v_mul_f32 v16, v16, v16
      buffer_store_dword v16, v62, s[52:55], s51 offen
      s_branch K2_NOSCALE
      K2_DST:""")
    a.srd(52,8,9,56*1024,OFF_DST)
    a(f"""v_and_b32 v63, 3, v62
      v_bfe_u32 v62, v62, 2, 1
      v_lshlrev_b32 v62, 9, v62
      v_lshl_add_u32 v62, v57, 3, v62
      v_lshl_add_u32 v62, v63, 1, v62
      s_lshl_b32 s51, s10, 10
      buffer_store_short v60, v62, s[52:55], s51 offen
      K2_NOSCALE:
      s_waitcnt lgkmcnt(0)
      K2_SKIP2:
      s_barrier""")
    a(f"""v_and_b32 v52, 15, v2
      v_lshlrev_b32 v52, 2, v52
      ds_read_b32 v53, v52 offset:{L_RMAX}""")
    for j in range(8):
        a(f"s_mov_b64 exec, s[{30+2*j}:{31+2*j}]\nds_read_b32 v{36+j}, v{36+j} offset:{L_INFO}")
    a(f"""s_mov_b64 exec, -1
      s_mov_b32 s48, s68
      s_mov_b32 s49, {NR4[0]:#x}
      v_lshrrev_b64 v[54:55], v52, s[48:49]
      v_and_b32 v55, 15, v54
      v_mov_b32 v56, s64
      v_cmp_gt_u32 vcc, 32, v52
      s_nop 1
      v_cndmask_b32 v56, 0, v56, vcc
      s_waitcnt lgkmcnt(0)
      v_add3_u32 v53, v53, v56, 1
      v_lshrrev_b32 v53, 1, v53
      v_cmp_ne_u32 vcc, 0, v55
      s_nop 1
      v_cndmask_b32 v53, 0, v53, vcc
      v_sub_u32 v54, v53, v55
      v_max_i32 v54, 0, v54
      v_cmp_ne_u32 vcc, 0, v54
      s_mov_b32 s48, s71
      s_mov_b32 s49, {CP4[0]:#x}
      v_lshrrev_b64 v[56:57], v52, s[48:49]
      v_and_b32 v56, 15, v56
      v_max_u32 v56, v56, v53
      v_lshlrev_b32 v56, 1, v56
      v_bfm_b32 v56, v56, 0
      ds_write_b32 v52, v56 offset:{L_LM}
      ds_read_b32 v57, v18 offset:{L_HIST-1}
      v_mov_b32 v56, 0
      s_waitcnt lgkmcnt(0)
      v_readfirstlane_b32 s72, v57""")
    a.srd(56,8,9,OVF_SIZE,OFF_OVF)
    a(f"""s_cbranch_vccz K2_NOOVF
      s_mov_b32 s72, 1
      v_mov_b32 v57, v54""")
    for sh in (1,2,4,8): a(f"s_nop 1\nv_add_u32_dpp v57, v57, v57 row_shr:{sh} row_mask:0xf bank_mask:0xf bound_ctrl:0")
    a(f"""s_nop 1
      v_readlane_b32 s60, v57, 15
      v_readlane_b32 s65, v57, 7
      v_sub_u32 v57, v57, v54
      s_lshl_b32 s60, s60, 8
      s_lshl_b32 s65, s65, 8
      s_cmp_lg_u32 s3, 0
      s_cbranch_scc1 K2_OV1
      s_mov_b64 exec, 1
      v_mov_b32 v58, s60
      v_mov_b32 v59, 0
      global_atomic_add v58, v59, v58, s[6:7] sc0 sc1
      s_waitcnt vmcnt(0)
      ds_write_b32 v59, v58 offset:{L_OVF+64}
      s_waitcnt lgkmcnt(0)
      s_mov_b64 exec, -1
      K2_OV1:
      s_barrier
      v_mov_b32 v59, 0
      ds_read_b32 v58, v59 offset:{L_OVF+64}
      s_waitcnt lgkmcnt(0)
      s_nop 0
      v_readfirstlane_b32 s61, v58
      v_lshl_add_u32 v56, v57, 8, v58
      ds_write_b32 v52, v56 offset:{L_OVF}
      v_lshlrev_b32 v59, 2, v0
      v_mov_b32 v62, {SENT_T:#x}
      v_mov_b32 v63, {SENT_O:#x}
      K2_OVF_FILL:
      v_cmp_gt_u32 s[48:49], s65, v59
      v_cmp_gt_u32 vcc, s60, v59
      s_nop 0
      v_cndmask_b32 v58, v63, v62, s[48:49]
      s_and_saveexec_b64 s[48:49], vcc
      s_cbranch_execz K2_OVF_FILL_E
      buffer_store_dword v58, v59, s[56:59], s61 offen
      s_mov_b64 exec, s[48:49]
      s_nop 0
      v_add_u32 v59, 4096, v59
      s_branch K2_OVF_FILL
      K2_OVF_FILL_E:
      s_mov_b64 exec, s[48:49]
      s_waitcnt vmcnt(0) lgkmcnt(0)
      s_barrier
      K2_NOOVF:
      s_cmp_lg_u32 s3, 8
      s_cbranch_scc1 K2_NOHDR""")
    a.srd(52,8,9,112*128,OFF_HDR)
    a(f"""s_mov_b32 s15, {HS:#x}
      v_and_b32 v57, 28, v52
      v_lshrrev_b32 v57, v57, s15
      v_and_b32 v58, 3, v57
      v_bfe_u32 v57, v57, 2, 1
      v_lshlrev_b32 v57, 7, v57
      v_lshl_add_u32 v57, v58, 2, v57
      s_lshl_b32 s62, s11, 4
      s_add_u32 s62, s62, 16
      v_mov_b32 v58, s62
      v_cmp_gt_u32 vcc, 32, v52
      s_lshl_b32 s51, s10, 8
      s_movk_i32 s62, 0xff
      s_cmp_eq_u32 s11, 0
      v_cndmask_b32 v58, 0, v58, vcc
      s_cselect_b32 s62, 0xffff, s62
      v_add_u32 v57, v57, v58
      s_mov_b32 exec_lo, s62
      s_mov_b32 exec_hi, 0
      buffer_store_dword v53, v57, s[52:55], s51 offen
      buffer_store_dword v56, v57, s[52:55], s51 offen offset:64
      s_mov_b64 exec, -1
      K2_NOHDR:""")
    def place(ent,info,rank,t0,t1,t2,tag,ovf=True):
        if not ovf:
            a(f"""v_and_b32 v{t0}, 0xff, v{info}
              v_bfe_u32 v{t2}, v{info}, 8, 6
              v_add_u32 v{t0}, v{t0}, v{rank}
              v_lshlrev_b32 v{t2}, 4, v{t2}
              v_lshrrev_b32 v{t1}, 3, v{t0}
              v_and_b32 v{t0}, 7, v{t0}
              v_lshl_add_u32 v{t2}, v{t1}, 10, v{t2}
              v_lshl_add_u32 v{t0}, v{t0}, 1, v{t2}
              ds_write_b16 v{t0}, v{ent} offset:{L_STG}
              K2_PL_{tag}:""")
            return
        a(f"""v_and_b32 v{t0}, 0xff, v{info}
          v_bfe_u32 v{t2}, v{info}, 16, 6
          v_add_u32 v{t0}, v{t0}, v{rank}
          v_cmp_lt_u32 vcc, v{rank}, v{t2}
          v_lshrrev_b32 v{t1}, 3, v{t0}
          v_and_b32 v{t0}, 7, v{t0}
          v_lshlrev_b32 v{t0}, 1, v{t0}
          v_lshl_add_u32 v{t0}, v{t1}, 10, v{t0}
          v_bfe_u32 v{t1}, v{info}, 8, 6
          v_lshl_add_u32 v{t0}, v{t1}, 4, v{t0}
          s_and_saveexec_b64 s[48:49], vcc
          ds_write_b16 v{t0}, v{ent} offset:{L_STG}
          s_andn2_b64 exec, s[48:49], exec
          s_cbranch_execz K2_PL_{tag}
          v_lshrrev_b32 v{t0}, 22, v{info}
          v_and_b32 v{t0}, 0x3c, v{t0}
          ds_read_b32 v{t0}, v{t0} offset:{L_OVF}
          v_sub_u32 v{rank}, v{rank}, v{t2}
          v_lshrrev_b32 v{t2}, 1, v{rank}
          v_and_b32 v{rank}, 1, v{rank}
          s_waitcnt lgkmcnt(0)
          v_lshl_add_u32 v{t0}, v{t2}, 8, v{t0}
          v_lshl_add_u32 v{t0}, v{t1}, 2, v{t0}
          v_lshl_add_u32 v{t0}, v{rank}, 1, v{t0}
          buffer_store_short v{ent}, v{t0}, s[56:59], 0 offen
          K2_PL_{tag}:""")
    a(f"""s_cmp_ge_u32 s3, 7
      s_cbranch_scc1 K2_PL_N
      s_cmp_eq_u32 s11, 0
      s_cbranch_scc1 K2_PL_N
      v_mov_b32 v55, 0""")
    place(60,61,55,57,58,59,"N")
    a("s_mov_b64 exec, -1")
    if GREEDY:
        a("s_cmp_lg_u32 s72, 0\ns_cbranch_scc1 K2_SIMPLE")
        BT=[12,13,14,15,8,9,10,11]; OD=[52,53,54,55,5,6,17,19]
        for j in range(8):
            a(f"s_mov_b64 exec, s[{30+2*j}:{31+2*j}]")
            if j>=4: a(f"s_cbranch_execz K2_G1_{j}")
            a(f"""v_add_u32 v{44+j}, s64, v{44+j}
              v_lshrrev_b32 v57, 16, v{36+j}
              v_lshrrev_b32 v58, 6, v{36+j}
              v_and_b32 v59, 31, v{28+j}
              v_and_b32 v57, 0xf00, v57
              v_and_b32 v58, 0x80, v58
              v_lshl_or_b32 v57, v59, 2, v57
              v_lshlrev_b32 v{BT[j]}, v{44+j}, v18
              v_or_b32 v57, v57, v58
              ds_or_rtn_b32 v{OD[j]}, v57, v{BT[j]} offset:{L_BM}
              K2_G1_{j}:""")
        a("s_mov_b32 s73, 0\ns_waitcnt lgkmcnt(0)")
        for j in range(8):
            a(f"s_mov_b64 exec, s[{30+2*j}:{31+2*j}]")
            if j>=4: a(f"s_cbranch_execz K2_PL_G{j}")
            a(f"""v_and_b32 v57, v{OD[j]}, v{BT[j]}
              v_lshrrev_b32 v58, 14, v{28+j}
              v_cmp_ne_u32 vcc, 0, v57
              v_and_b32 v58, 0xffc, v58
              s_mov_b64 s[{30+2*j}:{31+2*j}], vcc
              s_bcnt1_i32_b64 s13, vcc
              s_andn2_b64 exec, exec, vcc
              s_add_u32 s73, s73, s13
              ds_or_b32 v58, v{BT[j]} offset:{L_NM}""")
            place(28+j,36+j,44+j,57,58,59,f"G{j}",False)
        a(f"""s_mov_b64 exec, 1
          v_mov_b32 v57, s73
          ds_add_rtn_u32 v57, v18, v57 offset:{L_LC-1}
          s_mov_b64 exec, -1
          s_waitcnt lgkmcnt(0)
          v_readfirstlane_b32 s73, v57""")
        for j in range(8):
            a(f"""s_mov_b64 exec, s[{30+2*j}:{31+2*j}]
              s_cbranch_execz K2_G3_{j}
              v_mbcnt_lo_u32_b32 v57, exec_lo, 0
              v_mbcnt_hi_u32_b32 v57, exec_hi, v57
              s_bcnt1_i32_b64 s13, exec
              v_add_lshl_u32 v57, v57, s73, 2
              s_add_u32 s73, s73, s13
              ds_write_b32 v57, v{28+j} offset:{L_LIST}
              K2_G3_{j}:""")
        a(f"""s_mov_b64 exec, -1
          s_waitcnt lgkmcnt(0)
          s_barrier
          ds_read_b32 v20, v18 offset:{L_LC-1}
          v_lshlrev_b32 v21, 2, v0
          s_waitcnt lgkmcnt(0)
          v_lshlrev_b32 v20, 2, v20
          K2_GL:
          v_cmp_lt_u32 vcc, v21, v20
          s_and_saveexec_b64 s[62:63], vcc
          s_cbranch_execz K2_GE
          ds_read_b32 v28, v21 offset:{L_LIST}
          s_mov_b32 s73, 0
          s_waitcnt lgkmcnt(0)
          v_lshrrev_b32 v22, 14, v28
          v_and_b32 v22, 0xffc, v22
          ds_read_b32 v36, v22 offset:{L_INFO}
          v_and_b32 v59, 31, v28
          s_waitcnt lgkmcnt(0)
          v_lshrrev_b32 v57, 22, v36
          v_and_b32 v57, 0x3c, v57
          ds_read_b32 v24, v57 offset:{L_LM}
          v_lshrrev_b32 v58, 6, v36
          v_lshlrev_b32 v57, 6, v57
          v_and_b32 v58, 0x80, v58
          v_lshl_or_b32 v57, v59, 2, v57
          v_or_b32 v23, v57, v58
          s_mov_b64 s[30:31], exec
          K2_GR:
          ds_read_b32 v25, v22 offset:{L_NM}
          ds_read_b32 v26, v23 offset:{L_BM}
          s_cmp_ge_u32 s73, 2
          s_cselect_b64 s[32:33], -1, 0
          s_add_u32 s73, s73, 1
          s_waitcnt lgkmcnt(0)
          v_bfi_b32 v25, v25, 0, v24
          v_bfi_b32 v26, v26, 0, v25
          v_cmp_eq_u32 vcc, 0, v26
          s_nop 1
          v_cndmask_b32 v26, v26, v25, vcc
          s_or_b64 s[32:33], s[32:33], vcc
          v_cmp_ne_u32 vcc, 0, v26
          v_ffbl_b32 v44, v26
          s_and_b64 exec, exec, vcc
          v_lshlrev_b32 v27, v44, v18
          ds_or_rtn_b32 v25, v22, v27 offset:{L_NM}
          ds_or_rtn_b32 v26, v23, v27 offset:{L_BM}
          s_waitcnt lgkmcnt(0)
          v_and_b32 v25, v25, v27
          v_and_b32 v26, v26, v27
          v_cmp_eq_u32 s[34:35], 0, v25
          v_cmp_eq_u32 s[36:37], 0, v26
          s_mov_b64 s[38:39], exec
          s_or_b64 s[32:33], s[32:33], s[36:37]
          s_and_b64 s[40:41], s[34:35], s[32:33]
          s_andn2_b64 s[30:31], s[30:31], s[40:41]
          s_andn2_b64 exec, s[34:35], s[32:33]
          ds_xor_b32 v22, v27 offset:{L_NM}
          s_andn2_b64 exec, s[36:37], s[34:35]
          ds_xor_b32 v23, v27 offset:{L_BM}
          s_mov_b64 exec, s[30:31]
          s_cbranch_execnz K2_GR
          s_and_b64 exec, s[62:63], s[62:63]
          v_cmp_lt_u32 vcc, v21, v20
          s_nop 0
          s_and_b64 exec, exec, vcc""")
        place(28,36,44,57,58,59,"GG",False)
        a(f"""s_mov_b64 exec, s[62:63]
          v_add_u32 v21, 4096, v21
          s_branch K2_GL
          K2_GE:
          s_mov_b64 exec, s[62:63]
          s_branch K2_NOSLOWB
          K2_SIMPLE:""")
    for j in range(8):
        a(f"s_mov_b64 exec, s[{30+2*j}:{31+2*j}]")
        if j>=4: a(f"s_cbranch_execz K2_PL_{j}")
        a(f"v_add_u32 v{44+j}, s64, v{44+j}")
        place(28+j,36+j,44+j,57,58,59,str(j))
    a(f"""s_mov_b64 exec, -1
      s_cmp_eq_u64 s[46:47], 0
      s_cbranch_scc1 K2_NOSLOWB""")
    for k in range(4):
        a(f"""v_add_u32 v52, 64, v4
          v_add_u32 v53, 256, v{20+k}
          s_mov_b32 s13, {32*k*PE*4}
          K2_SB{k}:
          v_cmp_lt_u32 vcc, v52, v{24+k}
          s_and_saveexec_b64 s[62:63], vcc
          s_cbranch_execz K2_SB{k}_E
          buffer_load_dword v28, v53, s[20:23], s13 offen
          s_waitcnt vmcnt(0)
          v_lshrrev_b32 v54, 14, v28
          v_and_b32 v54, 0xffc, v54
          ds_add_rtn_u32 v44, v54, v18 offset:{L_CUR2}
          ds_read_b32 v45, v54
          ds_read_b32 v36, v54 offset:{L_INFO}
          s_waitcnt lgkmcnt(0)
          v_add3_u32 v44, v44, v45, s64""")
        place(28,36,44,57,58,59,f"S{k}")
        a(f"""s_mov_b64 exec, s[62:63]
          v_add_u32 v52, 32, v52
          v_add_u32 v53, 128, v53
          s_branch K2_SB{k}
          K2_SB{k}_E:
          s_mov_b64 exec, s[62:63]""")
    a(f"""K2_NOSLOWB:
      s_waitcnt lgkmcnt(0)
      s_barrier
      s_cmp_ge_u32 s3, 12
      s_cbranch_scc1 K2_END
      ds_read_b128 v[8:11], v7 offset:{L_STG}
      ds_read_b128 v[12:15], v7 offset:{L_STG+12288}
      v_lshlrev_b32 v16, 4, v2""")
    a.srd(52,8,9,112*BLOBSZ,OFF_BLOB)
    a(f"""s_cmp_ge_u32 s3, 6
      s_cselect_b32 s48, 6, 0
      s_cselect_b32 s49, {BLOBSZ}, 0
      s_sub_u32 s48, s3, s48
      s_mul_i32 s51, s10, {2*BLOBSZ}
      s_add_u32 s51, s51, s49
      s_lshl_b32 s49, s48, 10
      s_add_u32 s51, s51, s49
      s_lshl_b32 s62, s70, 10
      s_add_u32 s62, s62, s51
      s_waitcnt lgkmcnt(0)
      s_cmp_ge_u32 s48, s69
      s_cbranch_scc1 K2_NOMAIN
      buffer_store_dwordx4 v[8:11], v16, s[52:55], s62 offen
      K2_NOMAIN:
      s_cmp_lg_u32 s11, 0
      s_cbranch_scc1 K2_END
      s_cmp_ge_u32 s48, {UNITS[0]}
      s_cbranch_scc1 K2_END
      buffer_store_dwordx4 v[12:15], v16, s[52:55], s51 offen
      K2_END:
      s_endpgm""")
    import k1
    k1.weights_stage2(a,NBIN)
    return a.text(), desc(name,64,80)
```

```python
from common import *
K3_LDS=LDS_CNT+128
NHOP=7
DPT=int(os.environ.get("DPT",2))
V_T0=0; V_T1=1
V_DP=2
V_IDX=4
V_SC=84
V_D=88
V_ACC=92
V_A=108
V_PK=112
V_L16=114
V_B=116
NV3=V_B+4*(DPT+1)
assert NV3<=128
S_TAB=12
S_OUT=16
S_BLOB=28
S_OVF=24
S_FLAG=28
S_HDR=32
S_HOP=20; S_B0=21; S_B1=22; S_OB=23; S_T=64
SCD=os.environ.get('SCD',' sc1')
SCL=os.environ.get('SCL',' sc1')
SCF='' if 'pf' in os.environ.get('PLAIN','') else ' sc1'
PLD=os.environ.get('PLD','sc1')
SPIN=2000000
SLP=int(os.environ.get('SLP',2))
C_DA,C_DB,C_DC,C_L,C_PC,C_PB,G_S0,G_S1,G_S2,C_0,C_1,C_4,C_P,C_E2=0,4,8,12,16,20,24,28,32,36,40,44,48,80
NM_=3
S_PEND=7
S_PC=11

def gen_k3(name,nhop=NHOP):
    global S_PEND
    S_PEND=7
    a=Asm(); a.l.append(head(name))
    X=os.environ.get("K3X","")
    STH=int(os.environ.get("STH",5))
    if "k3" in STAMP: a("s_memtime s[98:99]")
    a(f"""s_cmp_ge_u32 s2, 256
      s_cbranch_scc1 K3_END
      s_load_dwordx2 s[8:9], s[0:1], 88
      v_lshrrev_b32 v1, 6, v0
      v_and_b32 v2, 63, v0
      s_and_b32 s4, s2, 7
      v_readfirstlane_b32 s3, v1
      s_lshr_b32 s5, s2, 6
      s_lshl_b32 s5, s5, 3
      s_add_u32 s4, s4, s5
      s_bfe_u32 s5, s2, 0x30003
      v_lshlrev_b32 v{V_L16}, 4, v2
      s_mul_i32 s6, s4, {GSTR}
      s_mul_i32 s7, s5, 25088
      s_mov_b32 s{S_B0}, 0
      s_mov_b32 s{S_B1}, {TB_}
      s_mov_b32 s{S_OB}, {LDS_OUT}
      s_mov_b32 s{S_HOP}, 0
      s_waitcnt lgkmcnt(0)
      s_add_u32 s{S_TAB}, s8, s6
      s_addc_u32 s{S_TAB+1}, s9, 0
      s_mov_b32 s{S_TAB+2}, {GSTR}
      s_mov_b32 s{S_TAB+3}, 0x20000""")
    def dma(off=0): a(f"buffer_load_dwordx4 v{V_L16}, s[{S_TAB}:{S_TAB+3}], s{S_T} offen"+(f" offset:{off}" if off else "")+SCL+" lds")
    def seg_fill(rreg,seg,base,i0,n):
        a(f"""s_cmp_ge_u32 s{rreg}, s5
          s_addc_u32 s{S_T}, s{rreg}, 0
          s_mul_i32 s{S_T}, s{S_T}, 25088
          s_add_u32 s{S_T}, s{S_T}, {SEG[seg]*8+i0*1024}
          s_mul_i32 s{S_T+1}, s{rreg}, {TST*8}
          s_add_u32 s{S_T+1}, s{S_T+1}, s{base}""")
        if i0: a(f"s_add_u32 s{S_T+1}, s{S_T+1}, {i0*1024}")
        for i in range(n):
            if i%4==0:
                if i: a(f"s_add_u32 s{S_T}, s{S_T}, 4096\ns_add_u32 s{S_T+1}, s{S_T+1}, 4096")
                a(f"s_mov_b32 m0, s{S_T+1}\ns_nop 0")
            dma(1024*(i%4))
    a(f"""s_lshl_b32 s{S_T+1}, s3, 10
      s_add_u32 s{S_T}, s7, s{S_T+1}
      s_add_u32 s{S_T+1}, s{S_T+1}, {LDS_OUT}
      s_mov_b32 m0, s{S_T+1}
      s_nop 0"""); dma()
    a(f"""s_cmp_ge_u32 s3, 9
      s_cbranch_scc1 K3_I1
      s_add_u32 s{S_T}, s{S_T}, 16384
      s_add_u32 m0, s{S_T+1}, 16384
      s_cmp_lg_u32 s3, 8
      s_cbranch_scc1 K3_I0
      s_mov_b32 exec_hi, 0
      K3_I0:"""); dma()
    a(f"""s_mov_b64 exec, -1
      K3_I1:
""")
    a(f"""K3_I3:
      s_add_u32 s{S_OUT}, s{S_TAB}, s7
      s_addc_u32 s{S_OUT+1}, s{S_TAB+1}, 0
      s_add_u32 s{S_OUT}, s{S_OUT}, {TSTR}
      s_addc_u32 s{S_OUT+1}, s{S_OUT+1}, 0
      s_mov_b32 s{S_OUT+2}, 25088
      s_mov_b32 s{S_OUT+3}, 0x20000
      s_cmp_ge_u32 s3, 14
      s_cbranch_scc1 K3_HELPER""")
    def flag_srd():
        a(f"""s_and_b32 s10, s2, 7
          s_lshr_b32 s11, s2, 6
          s_lshl_b32 s11, s11, 3
          s_add_u32 s10, s10, s11
          s_lshl_b32 s10, s10, 11
          s_add_u32 s{S_FLAG}, s8, s10
          s_addc_u32 s{S_FLAG+1}, s9, 0
          s_add_u32 s{S_FLAG}, s{S_FLAG}, {OFF_FLAG:#x}
          s_addc_u32 s{S_FLAG+1}, s{S_FLAG+1}, 0
          s_mov_b32 s{S_FLAG+2}, 2048
          s_mov_b32 s{S_FLAG+3}, 0x20000
          s_lshl_b32 s7, s5, 7""")
    def arrive_flag(c,mult,off,fadd):
        l=a.label("AF")
        a(f"""v_mov_b32 v{V_T0}, {LDS_CNT}
          v_mov_b32 v{V_T1}, 1
          s_add_u32 s{S_T+2}, s{S_HOP}, {fadd}
          s_mul_i32 s{S_T+3}, s{S_HOP}, {mult}
          s_mov_b64 exec, 1
          ds_add_rtn_u32 v{V_T1}, v{V_T0}, v{V_T1} offset:{c}
          s_add_u32 s{S_T+3}, s{S_T+3}, {mult-1}
          s_waitcnt lgkmcnt(0)
          v_cmp_eq_u32 vcc, s{S_T+3}, v{V_T1}
          v_mov_b32 v{V_T1}, s{S_T+2}
          s_cbranch_vccz {l}
          buffer_store_dword v{V_T1}, off, s[{S_FLAG}:{S_FLAG+3}], s7 offset:{off}{SCF}
          {l}:
          s_mov_b64 exec, -1""")
    def poll(off,vi,vv,vr,hopadd):
        l=a.label("PO")
        ld=lambda r: a(f"buffer_load_dword v{r}, v{vi}, s[{S_FLAG}:{S_FLAG+3}], 0 offen offset:{off} {PLD}")
        a(f"""s_add_u32 s{S_T}, s{S_HOP}, {hopadd}
          v_mov_b32 v{vv}, s{S_T}
          s_mov_b32 s{S_T}, {SPIN}""")
        if os.environ.get("P1","1")=="1":
            a(f"{l}:"); ld(vr)
            a(f"""s_waitcnt vmcnt(0)
              v_cmp_gt_u32 vcc, v{vv}, v{vr}
              s_sub_u32 s{S_T}, s{S_T}, 1
              s_cbranch_vccz {l}_X
              s_cmp_gt_i32 s{S_T}, 0
              s_cbranch_scc1 {l}
              {l}_X:""")
            return
        ld(vr)
        a(f"s_sleep {SLP}\n{l}:")
        for k in range(2):
            ld(vr+1-k)
            a(f"""s_waitcnt vmcnt(1)
              v_cmp_gt_u32 vcc, v{vv}, v{vr+k}
              s_sub_u32 s{S_T}, s{S_T}, 1
              s_cbranch_vccz {l}_X""")
        a(f"""s_cmp_gt_i32 s{S_T}, 0
          s_cbranch_scc1 {l}
          {l}_X:""")
    def arrive(c):
        a(f"""v_mov_b32 v{V_T0}, {LDS_CNT}
          v_mov_b32 v{V_T1}, 1
          s_mov_b64 exec, 1
          ds_add_u32 v{V_T0}, v{V_T1} offset:{c}
          s_mov_b64 exec, -1""")
    def spin(c,mult,hadd=1):
        l=a.label("SP")
        a(f"""v_mov_b32 v{V_T0}, {LDS_CNT}
          s_add_u32 s{S_T+2}, s{S_HOP}, {hadd}
          s_mul_i32 s{S_T+2}, s{S_T+2}, {mult}
          {l}:
          ds_read_b32 v{V_T1}, v{V_T0} offset:{c}
          s_waitcnt lgkmcnt(0)
          v_readfirstlane_b32 s{S_T+3}, v{V_T1}
          s_cmp_ge_u32 s{S_T+3}, s{S_T+2}
          s_cbranch_scc1 {l}_E
          s_sleep 1
          s_branch {l}
          {l}_E:""")
    def tickets():
        l=a.label("TK")
        a(f"""s_lshl_b32 s10, s{S_HOP}, 2
          s_add_u32 s10, s10, {LDS_CNT+C_TK}
          v_mov_b32 v{V_T0}, s10
          {l}:
          v_mov_b32 v{V_T1}, 1
          s_mov_b64 exec, 1
          ds_add_rtn_u32 v{V_T1}, v{V_T0}, v{V_T1}
          s_mov_b64 exec, -1
          s_waitcnt lgkmcnt(0)
          v_readfirstlane_b32 s10, v{V_T1}
          s_cmp_ge_u32 s10, 7
          s_cbranch_scc1 {l}_E""")
        seg_fill(10,0,S_B1,0,NCH[0])
        a(f"s_add_u32 s{S_PEND}, s{S_PEND}, 1\ns_branch {l}\n{l}_E:")
    def landed():
        l=a.label("LD")
        a(f"""s_cmp_eq_u32 s{S_PEND}, 0
          s_cbranch_scc1 {l}
          v_mov_b32 v{V_T0}, {LDS_CNT}
          v_mov_b32 v{V_T1}, s{S_PEND}
          s_mov_b32 s{S_PEND}, 0
          s_waitcnt vmcnt(0)
          s_mov_b64 exec, 1
          ds_add_u32 v{V_T0}, v{V_T1} offset:{G_S0}
          s_mov_b64 exec, -1
          {l}:""")
    def handover(call,gate,k):
        l=a.label("HO")
        a(f"""v_mov_b32 v{V_T0}, s{S_PC}
          v_writelane_b32 v{V_T0}, s{S_T+4+k}, 1
          v_mov_b32 v{V_T1}, 1
          s_mul_i32 s{S_T+2}, s{S_HOP}, 4
          s_add_u32 s{S_T+2}, s{S_T+2}, {2*(k+1)}
          s_add_u32 s{S_T+3}, s{S_HOP}, 1
          s_lshl_b32 s{S_T+3}, s{S_T+3}, 1
          s_mov_b64 exec, 3
          s_waitcnt lgkmcnt(0)
          ds_add_u32 v{V_T0}, v{V_T1}
          v_mov_b32 v{V_PK}, s{S_T+2}
          v_writelane_b32 v{V_PK}, s{S_T+3}, 1
          v_writelane_b32 v{V_T0}, s{S_T+6+k}, 1
          {l}:
          ds_read_b32 v{V_T1}, v{V_T0}
          s_waitcnt lgkmcnt(0)
          v_cmp_gt_u32 vcc, v{V_PK}, v{V_T1}
          s_nop 0
          s_cbranch_vccz {l}_E
          s_sleep 1
          s_branch {l}
          {l}_E:
          s_mov_b64 exec, -1""")
    m={0:0,1:8,2:3,3:9,4:2,5:10,6:5,7:11,8:4,9:12,10:7,11:13,12:6,13:1}
    lo=sum(m[w]<<(4*w) for w in range(8)); hi=sum(m[w]<<(4*(w-8)) for w in range(8,14))
    a(f"""s_mov_b32 s10, {lo:#x}
      s_mov_b32 s11, {hi:#x}
      s_lshl_b32 s6, s3, 2
      s_lshr_b64 s[10:11], s[10:11], s6
      s_and_b32 s4, s10, 15
      s_mul_i32 s6, s5, 14
      s_add_u32 s6, s6, s4
      s_lshl_b32 s7, s6, 7
      s_add_u32 s10, s8, s7
      s_addc_u32 s11, s9, 0
      s_add_u32 s10, s10, {OFF_HDR:#x}
      s_addc_u32 s11, s11, 0
      s_load_dwordx16 s[{S_HDR}:{S_HDR+15}], s[10:11], 0
      s_load_dwordx16 s[{S_HDR+16}:{S_HDR+31}], s[10:11], 64
      s_mul_i32 s7, s6, {BLOBSZ}
      s_add_u32 s{S_BLOB}, s8, s7
      s_addc_u32 s{S_BLOB+1}, s9, 0
      s_add_u32 s{S_BLOB}, s{S_BLOB}, {OFF_BLOB:#x}
      s_addc_u32 s{S_BLOB+1}, s{S_BLOB+1}, 0
      s_mov_b32 s{S_BLOB+2}, {BLOBSZ}
      s_mov_b32 s{S_BLOB+3}, 0x20000""")
    def load_blob(u0,u1):
        for u in range(u0,u1):
            r=V_IDX+4*u
            if u%4==0 or u==u0: a(f"s_mov_b32 s{S_T}, {(u//4)*4096}")
            a(f"buffer_load_dwordx4 v[{r}:{r+3}], v{V_L16}, s[{S_BLOB}:{S_BLOB+3}], s{S_T} offen offset:{(u%4)*1024}")
    load_blob(0,UOFF[1])
    a(f"""s_lshl_b32 s7, s6, 9
      s_add_u32 s{S_OVF}, s8, s7
      s_addc_u32 s{S_OVF+1}, s9, 0
      s_add_u32 s{S_OVF}, s{S_OVF}, {OFF_DST:#x}
      s_addc_u32 s{S_OVF+1}, s{S_OVF+1}, 0
      s_mov_b32 s{S_OVF+2}, 512
      s_mov_b32 s{S_OVF+3}, 0x20000
      v_lshlrev_b32 v0, 3, v2
      v_and_b32 v{V_PK}, 15, v2
      v_lshrrev_b32 v1, 4, v2
      v_lshlrev_b32 v{V_PK+1}, 2, v2
      buffer_load_dwordx2 v[{V_DP}:{V_DP+1}], v0, s[{S_OVF}:{S_OVF+3}], 0 offen""")
    a.srd(S_OVF,8,9,OVF_SIZE,OFF_OVF)
    a(f"""v_lshlrev_b32 v1, 2, v1
      v_sub_u32 v{V_PK}, v{V_PK}, v1
      v_mov_b32 v0, 0x3f80
      v_mov_b32 v1, 0x3f800000
      v_cmp_eq_u32 s[64:65], 0, v{V_PK}
      v_cmp_eq_u32 s[66:67], 1, v{V_PK}
      v_cmp_eq_u32 s[10:11], 2, v{V_PK}
      v_cmp_eq_u32 vcc, 3, v{V_PK}
      v_cndmask_b32 v{V_A}, 0, v0, s[64:65]
      v_cndmask_b32 v{V_A+1}, 0, v0, s[10:11]
      v_cndmask_b32 v{V_A}, v{V_A}, v1, s[66:67]
      v_cndmask_b32 v{V_A+1}, v{V_A+1}, v1, vcc
      v_mov_b32 v{V_A+2}, v{V_A}
      v_mov_b32 v{V_A+3}, v{V_A+1}
      s_waitcnt vmcnt(0) lgkmcnt(0)
      s_barrier""")
    if "k3" in STAMP: a("s_memtime s[96:97]")
    load_blob(UOFF[1],UOFF[2])
    def late_loads(k):
        l=a.label("LL")
        a(f"s_waitcnt vmcnt(0)\ns_cmp_lg_u32 s{S_HOP}, 0\ns_cbranch_scc1 {l}")
        load_blob(UOFF[k],UOFF[k]+UNITS[k])
        if k==3:
            a(f"""s_lshl_b32 s10, s6, 10
              s_add_u32 s{S_BLOB}, s8, s10
              s_addc_u32 s{S_BLOB+1}, s9, 0
              s_add_u32 s{S_BLOB}, s{S_BLOB}, {OFF_SCALE:#x}
              s_addc_u32 s{S_BLOB+1}, s{S_BLOB+1}, 0
              s_mov_b32 s{S_BLOB+2}, 1024
              v_lshrrev_b32 v{V_T0}, 2, v{V_L16}""")
            for s_ in range(4): a(f"buffer_load_dword v{V_SC+s_}, v{V_T0}, s[{S_BLOB}:{S_BLOB+3}], 0 offen offset:{256*s_}")
        a(f"{l}:")
    a(f"""s_lshr_b32 s{S_PC}, s4, 1
      s_lshl_b32 s{S_PC}, s{S_PC}, 2
      s_add_u32 s{S_PC}, s{S_PC}, {LDS_CNT+C_P}
      s_mov_b32 s{S_PEND}, 0
      s_mov_b32 s{S_T+4}, {LDS_CNT+C_0}
      s_mov_b32 s{S_T+5}, {LDS_CNT+C_1}
      s_mov_b32 s{S_T+6}, {LDS_CNT+G_S1}
      s_mov_b32 s{S_T+7}, {LDS_CNT+G_S2}
      s_add_u32 s{S_TAB}, s{S_TAB}, {TSTR}
      s_addc_u32 s{S_TAB+1}, s{S_TAB+1}, 0""")
    NB=DPT+1
    def mf(acc,b,first):
        c="0" if first else f"v[{acc}:{acc+3}]"
        a(f"v_mfma_f32_16x16x32_bf16 v[{acc}:{acc+3}], v[{V_A}:{V_A+3}], v[{b}:{b+3}], {c}")
    def ad(d,ireg,w,base): a(f"v_mad_u32_u16 v{d}, v{ireg}, 8, s{base}"+(" op_sel:[1,0,0,0]" if w else ""))
    def issue(ireg,b,base,lo=None):
        if lo is None: ad(b,ireg,0,base)
        else: ad(lo,ireg,0,S_OB)
        ad(b+2,ireg,1,base)
        if "lin" in X: a(f"ds_read_b64 v[{b}:{b+1}], v{V_L16}\nds_read_b64 v[{b+2}:{b+3}], v{V_L16}"); return
        a(f"ds_read_b64 v[{b}:{b+1}], v{b if lo is None else lo}\nds_read_b64 v[{b+2}:{b+3}], v{b+2}")
    def accq(p,slot): return V_ACC+4*(slot if p<2 else slot&1)
    def flush(p,slot):
        acc=accq(p,slot); d=V_D+slot
        if p==1: ad(d,V_DP+(slot>>1),slot&1,S_OB)
        if p==3:
            for i in range(4): a(f"v_mul_f32 v{acc+i}, v{V_SC+slot}, v{acc+i}")
        a(f"""v_cvt_pk_bf16_f32 v{V_PK}, v{acc}, v{acc+1}
          v_cvt_pk_bf16_f32 v{V_PK+1}, v{acc+2}, v{acc+3}
          ds_write_b64 v{d}, v[{V_PK}:{V_PK+1}]""")
    PR=int(os.environ.get("PRIO","4"))
    LLO=int(os.environ.get("LLO",1)); LSW=float(os.environ.get("LSW",0.5)); LHI=int(os.environ.get("LHI",4)); LE=int(os.environ.get("LE",4))
    def phase(h,p,side,early=None):
        H=S_HDR+4*p; I=V_IDX+4*UOFF[p]; base=[S_OB,S_B0,S_B1,S_B0][p]
        RB=[V_B+4*k for k in range(NB)]+([V_ACC+8,V_ACC+12] if p>=2 else [])
        seq=[]
        for slot,(r,pb,n) in enumerate(LAY[p][h]):
            cap=CAPS[p][r]; assert cap<=n
            for k in range(cap): seq.append((I+pb+k,slot,k==0,k==cap-1))
        n=len(seq)
        if p<2: L=lambda i:DPT; prios={0:2,n//3+1:1,2*(n//3+1):0}
        elif early: L=lambda i:LE; prios={0:2}
        else: L=lambda i:(LLO if i<LSW*n else LHI); prios={0:1,n//2:0} if p==2 else {0:"m"}
        q=[]; ip=0; pend=None; mark=0
        for i,(ireg,slot,first,last) in enumerate(seq):
            if PR and i in prios:
                if prios[i]=="m":
                    l=a.label("PM"); a(f"s_setprio 1\ns_cmp_lt_u32 s4, {2*(NE+NM_)}\ns_cbranch_scc1 {l}\ns_setprio 0\n{l}:")
                else: a(f"s_setprio {prios[i]}")
            while ip<min(n,i+1+L(i)):
                r_,s_,f_,_=seq[ip]
                issue(r_,RB[ip%len(RB)],base,V_D+s_ if (f_ and p>1) else None); q.extend([ip,ip]); ip+=1
            if i in q:
                k=max(x for x,t in enumerate(q) if t==i); a(f"s_waitcnt lgkmcnt({len(q)-1-k})"); del q[:k+1]
            mf(accq(p,slot),RB[i%len(RB)],first and p!=1)
            if pend is not None:
                nb=len([x for x in a.l[mark:] if not x.endswith(":")])
                if p==1 and pend==0: spin(C_L,14); q.clear()
                elif nb<8: a(f"s_nop {8-nb-1}")
                flush(p,pend); q.append("w"); pend=None
            if last:
                r,pb,nr=LAY[p][h][slot]; cap=CAPS[p][r]; tag=f"{h}{p}{slot}{'e' if early else ''}"
                mark=len(a.l)
                a(f"s_cmp_gt_u32 s{H+slot}, {cap}\ns_cbranch_scc1 K3_X{tag}\nK3_R{tag}:")
                side.append((tag,H+slot,I+pb,cap,nr,accq(p,slot),RB[i%len(RB)],base))
                if p>0: pend=slot
        if p>0: a("s_nop 5"); flush(p,pend)
    def sidepath(tag,np_,I,cap,n,acc,b,base):
        a(f"K3_X{tag}:")
        for k in range(cap,n):
            issue(I+k,b,base); a("s_waitcnt lgkmcnt(0)"); mf(acc,b,False)
            a(f"s_cmp_le_u32 s{np_}, {k+1}\ns_cbranch_scc1 K3_Y{tag}")
        a(f"""s_mov_b32 s{S_T}, s{np_+16}
          s_sub_u32 s{S_T+1}, s{np_}, {n}
          v_lshrrev_b32 v{V_T0}, 2, v{V_L16}
          K3_O{tag}:
          buffer_load_dword v{V_T1}, v{V_T0}, s[{S_OVF}:{S_OVF+3}], s{S_T} offen
          s_add_u32 s{S_T}, s{S_T}, 256
          s_waitcnt vmcnt(0)""")
        issue(V_T1,b,base); a("s_waitcnt lgkmcnt(0)"); mf(acc,b,False)
        a(f"""s_sub_u32 s{S_T+1}, s{S_T+1}, 1
          s_cmp_lg_u32 s{S_T+1}, 0
          s_cbranch_scc1 K3_O{tag}
          K3_Y{tag}:
          s_branch K3_R{tag}""")
    def readout(c0reg,two,climit):
        l=a.label("RO")
        a(f"""s_lshl_b32 s{S_T}, s{c0reg}, 10
          v_add_u32 v{V_T0}, s{S_T}, v{V_L16}
          v_add_u32 v{V_T1}, {LDS_OUT}, v{V_T0}
          ds_read_b128 v[{V_B}:{V_B+3}], v{V_T1}
          s_cmp_ge_u32 s{c0reg}, {climit-two}
          s_cbranch_scc1 {l}
          ds_read_b128 v[{V_B+4}:{V_B+7}], v{V_T1} offset:{two*1024}
          s_mov_b32 s{S_T+1}, {two*1024}
          s_waitcnt lgkmcnt(0)
          buffer_store_dwordx4 v[{V_B+4}:{V_B+7}], v{V_T0}, s[{S_OUT}:{S_OUT+3}], s{S_T+1} offen{SCD}
          {l}:
          s_waitcnt lgkmcnt(0)
          buffer_store_dwordx4 v[{V_B}:{V_B+3}], v{V_T0}, s[{S_OUT}:{S_OUT+3}], 0 offen{SCD}""")
    side=[]
    st=Stamper(a,"k3" in STAMP)
    a("K3_GOWN:\ns_bitcmp1_b32 s4, 0\ns_cbranch_scc1 K3_GB")
    for h in range(2):
        if h==1: a("K3_GB:")
        st.n=0
        phase(h,0,side)
        st()
        arrive(C_L)
        a(f"s_cmp_eq_u32 s{S_PEND}, 0\ns_cbranch_scc1 K3_NP{h}\ns_mov_b32 s{S_PEND}, 0\ns_waitcnt vmcnt(0)"); arrive(C_DC); a(f"K3_NP{h}:")
        spin(G_S0,1); late_loads(2); st()
        phase(h,1,side); st(); handover(None,None,0); late_loads(3); st()
        a(f"s_cmp_lt_u32 s4, {2*NE}\ns_cbranch_scc1 K3_EA{h}")
        for e in (0,1):
            if e: a(f"K3_EA{h}:"); st.n=4
            phase(h,2,side,e); st(); handover(None,None,1); a("s_waitcnt vmcnt(0)"); st()
            phase(h,3,side,e)
            a(f"s_waitcnt lgkmcnt(0)"); st()
            if not (h==1 and e==1): a("s_branch K3_GE")
    a("K3_GE:")
    arrive(C_4)
    a(f"""s_setprio 3
      s_lshr_b32 s10, s4, 1
      s_lshl_b32 s{S_T}, s10, 2
      s_add_u32 s{S_T}, s{S_T}, {LDS_CNT+C_E2}
      v_mov_b32 v{V_T0}, s{S_T}
      s_mov_b64 exec, 1
      ds_add_rtn_u32 v{V_T1}, v{V_T0}, v{V_T1}
      s_mov_b64 exec, -1
      s_mul_i32 s{S_T}, s10, 3584
      v_add_u32 v{V_B+8}, s{S_T}, v{V_L16}
      v_add_u32 v{V_B+9}, {LDS_OUT}, v{V_B+8}
      s_waitcnt lgkmcnt(0)
      v_readfirstlane_b32 s{S_T+1}, v{V_T1}
      s_bitcmp1_b32 s{S_T+1}, 0
      s_cbranch_scc0 K3_E2""")
    for k in range(4): a(f"ds_read_b128 v[{V_ACC+4*k}:{V_ACC+4*k+3}], v{V_B+9} offset:{1024*k}")
    for k in range(4):
        a(f"s_waitcnt lgkmcnt({3-k})")
        if k==3: a("s_mov_b32 exec_hi, 0")
        a(f"buffer_store_dwordx4 v[{V_ACC+4*k}:{V_ACC+4*k+3}], v{V_B+8}, s[{S_OUT}:{S_OUT+3}], 0 offen offset:{1024*k}{SCD}")
    a(f"""s_mov_b64 exec, -1
      s_mov_b32 s{S_PEND}, 1
      s_cmp_ge_u32 s4, {2*(NE+NM_)}
      s_cbranch_scc1 K3_E2
      s_mov_b32 s{S_PEND}, 0
      s_cmp_ge_u32 s4, {2*NE}
      s_cselect_b32 s{S_T}, {C_DB}, {C_DA}
      s_add_u32 s{S_T}, s{S_T}, {LDS_CNT}
      v_mov_b32 v{V_T0}, s{S_T}
      v_mov_b32 v{V_T1}, 1
      s_waitcnt vmcnt(0)
      s_mov_b64 exec, 1
      ds_add_u32 v{V_T0}, v{V_T1}
      s_mov_b64 exec, -1
      K3_E2:
      s_setprio 0"""); st()
    a(f"s_cmp_eq_u32 s{S_HOP}, {nhop-1}\ns_cbranch_scc1 K3_END")
    spin(C_4,14); st()
    a(f"""s_add_u32 s{S_HOP}, s{S_HOP}, 1
      s_add_u32 s{S_OUT}, s{S_OUT}, {TSTR}
      s_addc_u32 s{S_OUT+1}, s{S_OUT+1}, 0
      s_add_u32 s{S_TAB}, s{S_TAB}, {TSTR}
      s_addc_u32 s{S_TAB+1}, s{S_TAB+1}, 0
      s_mov_b32 s10, s{S_B0}
      s_mov_b32 s{S_B0}, s{S_B1}
      s_mov_b32 s{S_B1}, s10"""); st()
    if st.on:
        a(f"s_cmp_lg_u32 s{S_HOP}, {STH}\ns_cbranch_scc1 K3_GOWN\ns_waitcnt lgkmcnt(0)")
        a("s_mov_b32 s92, s98\ns_mov_b32 s94, s96"); st.n=12
        st.dump(77,0,0); st.dump(77,int(os.environ.get('W1',12)),16); a("s_mov_b64 exec, -1")
    a("s_branch K3_GOWN")
    for x in side: sidepath(*x)
    a("K3_HELPER:\ns_setprio 3"); flag_srd()
    a(f"""v_mov_b32 v9, 0
      v_lshlrev_b32 v10, 2, v2
      v_add_u32 v11, {ZT*8}, v10
      ds_write_b32 v11, v9
      v_add_u32 v11, {TB_+ZT*8}, v10
      ds_write_b32 v11, v9
      v_add_u32 v11, {LDS_OUT+ZO*8}, v10
      ds_write_b32 v11, v9
      v_and_b32 v11, 0x7c, v10
      v_add_u32 v11, {LDS_CNT}, v11
      ds_write_b32 v11, v9
      v_and_b32 v11, 7, v2
      v_lshlrev_b32 v11, 7, v11
      s_getreg_b32 s4, hwreg(HW_REG_XCC_ID, 0, 4)
      s_mov_b32 s6, 0
      s_add_u32 s4, s4, 1
      v_mov_b32 v12, s4
      s_cmp_lg_u32 s3, 15
      s_cbranch_scc1 K3_HI
      s_mov_b64 exec, 1
      buffer_store_dword v12, off, s[{S_FLAG}:{S_FLAG+3}], s7 offset:64 sc1
      s_mov_b64 exec, -1
      K3_HI:
      s_waitcnt vmcnt(0) lgkmcnt(0)
      s_barrier""")
    a("s_cmp_eq_u32 s3, 14\ns_cbranch_scc1 K3_H14GO\ns_branch K3_H15F")
    def fill(seg,base,ranks):
        n=NCH[seg]
        for r in ranks:
            a(f"s_mov_b32 s10, {r}"); seg_fill(10,seg,base,0,n)
    def setflag(off,hadd):
        l=a.label("SF")
        a(f"""s_add_u32 s10, s{S_HOP}, {hadd}
          v_mov_b32 v9, s10
          s_mov_b64 exec, 1
          s_cmp_eq_u32 s6, 1
          s_cbranch_scc1 {l}
          buffer_store_dword v9, off, s[{S_FLAG}:{S_FLAG+3}], s7 offset:{off} sc1
          s_branch {l}_E
          {l}:
          buffer_store_dword v9, off, s[{S_FLAG}:{S_FLAG+3}], s7 offset:{off}
          {l}_E:
          s_mov_b64 exec, -1""")
    def idcheck():
        l=a.label("ID")
        a(f"""s_cmp_lg_u32 s{S_HOP}, 0
          s_cbranch_scc1 {l}_E
          s_mov_b32 s{S_T}, {SPIN}
          {l}:
          buffer_load_dword v12, v11, s[{S_FLAG}:{S_FLAG+3}], 0 offen offset:64 sc1
          s_sub_u32 s{S_T}, s{S_T}, 1
          s_cmp_eq_u32 s{S_T}, 0
          s_waitcnt vmcnt(0)
          s_cbranch_scc1 {l}_E
          v_cmp_eq_u32 vcc, 0, v12
          s_nop 0
          s_cbranch_vccnz {l}
          v_cmp_ne_u32 vcc, s4, v12
          s_nop 0
          s_cbranch_vccnz {l}_E
          s_mov_b32 s6, {0 if os.environ.get("NOFAST") else 1}
          {l}_E:""")
    def nexthop():
        a(f"""s_add_u32 s{S_HOP}, s{S_HOP}, 1
          s_mov_b32 s10, s{S_B0}
          s_mov_b32 s{S_B0}, s{S_B1}
          s_mov_b32 s{S_B1}, s10
          s_add_u32 s{S_TAB}, s{S_TAB}, {TSTR}
          s_addc_u32 s{S_TAB+1}, s{S_TAB+1}, 0""")
    st=Stamper(a,"k3" in STAMP)
    a("K3_H14:"); spin(C_DB,NM_,0); st(); setflag(1024,0); poll(1024,11,9,12,0); st(); spin(C_4,14,0); arrive(C_PB)
    a("K3_H14GO:"); st()
    fill(1,S_B1,range(4)); st(); a("s_waitcnt vmcnt(0)"); st(); arrive(G_S1)
    spin(C_PC,1); st()
    fill(2,S_B0,range(4)); st(); a("s_waitcnt vmcnt(0)"); st(); arrive(G_S2)
    idcheck()
    nexthop()
    if st.on:
        a(f"s_cmp_lg_u32 s{S_HOP}, {STH}\ns_cbranch_scc1 K3_H14S\ns_waitcnt lgkmcnt(0)")
        st.dump(77,14,48); a(f"s_mov_b64 exec, -1\nK3_H14S:")
    a(f"s_cmp_lg_u32 s{S_HOP}, {nhop}\ns_cbranch_scc1 K3_H14\ns_endpgm")
    st=Stamper(a,"k3" in STAMP)
    a(f"K3_H15:\ns_cmp_eq_u32 s{S_HOP}, 0\ns_cbranch_scc1 K3_H15A"); spin(C_DC,7-NE-NM_,0); setflag(32,0); a("K3_H15A:"); st()
    spin(C_PB,1,0); fill(1,S_B1,range(4,7)); a("s_waitcnt vmcnt(0)"); arrive(G_S1); st()
    poll(32,11,9,12,0); st(); spin(C_0,14); arrive(C_PC); st()
    fill(2,S_B0,range(4,7)); a("s_waitcnt vmcnt(0)"); st(); arrive(G_S2)
    a(f"s_cmp_eq_u32 s{S_HOP}, {nhop-1}\ns_cbranch_scc1 K3_END")
    idcheck()
    spin(C_DA,NE); st(); setflag(0,1); poll(0,11,9,12,1); st(); spin(C_1,14)
    nexthop()
    a("K3_H15F:"); fill(0,S_B0,range(7)); st()
    a("s_waitcnt vmcnt(0)"); st(); arrive(G_S0)
    if st.on:
        a(f"s_cmp_lg_u32 s{S_HOP}, {STH}\ns_cbranch_scc1 K3_H15\ns_waitcnt lgkmcnt(0)")
        st.dump(77,15,32); a(f"s_mov_b64 exec, -1")
    a("s_branch K3_H15")
    a("K3_END:\ns_endpgm")
    return a.text(), desc(name,128,102 if STAMP else 80)
```

```python
from common import *
import math
TJ=int(os.environ.get('TJ',13)); NTW=-(-1568//TJ)
def wave_scan_f32(a,v):
    for sh in (1,2,4,8):
        a(f"s_nop 1\nv_add_f32_dpp v{v}, v{v}, v{v} row_shr:{sh} row_mask:0xf bank_mask:0xf bound_ctrl:0")
    a(f"s_nop 1\nv_add_f32_dpp v{v}, v{v}, v{v} row_bcast:15 row_mask:0xa bank_mask:0xf")
    a(f"s_nop 1\nv_add_f32_dpp v{v}, v{v}, v{v} row_bcast:31 row_mask:0xc bank_mask:0xf")
def f2u(x):
    import struct; return struct.unpack("<I",struct.pack("<f",x))[0]

def row16_reduce(a,src,dst,n):
    for i in range(n): a(f"v_add_f32_dpp v{dst+i}, v{src+i}, v{src+i} row_ror:8 row_mask:0xf bank_mask:0xf")
    for sh in (4,2,1):
        for i in range(n): a(f"v_add_f32_dpp v{dst+i}, v{dst+i}, v{dst+i} row_ror:{sh} row_mask:0xf bank_mask:0xf")

def gen_k1(name):
    a=Asm(); a.l.append(head(name))
    st=Stamper(a,"k1" in STAMP)
    st()
    a(f"""s_cmp_ge_u32 s2, {PW+32+NTW}
      s_cbranch_scc1 K1_END
      s_load_dwordx2 s[8:9], s[0:1], 88
      v_lshrrev_b32 v1, 6, v0
      v_and_b32 v2, 63, v0
      s_cmp_ge_u32 s2, {PW}
      v_readfirstlane_b32 s3, v1
      s_cbranch_scc1 K1_NOTPART""")
    a(f"""s_load_dwordx4 s[4:7], s[0:1], 8
      v_lshlrev_b32 v3, 2, v0
      v_mov_b32 v4, 0
      ds_write_b32 v3, v4
      v_lshlrev_b32 v3, 4, v0
      s_mul_i32 s10, s2, {PE*4}
      s_waitcnt lgkmcnt(0)""")
    a.srd(12,4,5,E*4); a.srd(16,6,7,E*4)
    a(f"""v_cmp_gt_u32 vcc, {PE//4}, v0
      s_and_saveexec_b64 s[20:21], vcc
      buffer_load_dwordx4 v[8:11], v3, s[16:19], s10 offen
      buffer_load_dwordx4 v[4:7], v3, s[12:15], s10 offen
      s_movk_i32 s22, {SEG[1]}
      s_movk_i32 s23, {SEG[2]}
      s_movk_i32 s24, -448
      s_movk_i32 s25, {-PIECE}
      s_movk_i32 s42, {TST}
      v_mov_b32 v28, 1
      v_mov_b32 v29, {SEG[1]}
      v_mov_b32 v30, {SEG[2]}
      s_barrier"""); st()
    a("s_waitcnt vmcnt(1)"); st()
    R4=range(4)
    for i in R4: a(f"v_lshrrev_b32 v{12+i}, 6, v{8+i}")
    for i in R4: a(f"v_mul_u32_u24 v{32+i}, 1338, v{12+i}")
    for i in R4: a(f"v_mul_u32_u24 v{12+i}, 9363, v{12+i}")
    for i in R4: a(f"v_lshrrev_b32 v{32+i}, 16, v{32+i}")
    for i in R4: a(f"v_lshrrev_b32 v{12+i}, 16, v{12+i}")
    for i in R4: a(f"v_mad_i32_i24 v{8+i}, v{12+i}, s24, v{8+i}")
    for i in R4: a(f"v_lshl_add_u32 v{12+i}, v{12+i}, 1, v{12+i}")
    a("s_waitcnt vmcnt(0)")
    for i in R4: a(f"v_lshrrev_b32 v{36+i}, 6, v{4+i}")
    for i in R4: a(f"v_mul_u32_u24 v{36+i}, 1338, v{36+i}")
    for i in R4: a(f"v_lshrrev_b32 v{36+i}, 16, v{36+i}")
    for i in R4: a(f"v_mad_i32_i24 v{4+i}, v{36+i}, s25, v{4+i}")
    for i in R4: a(f"v_cmp_le_u32 s[{26+2*i}:{27+2*i}], s22, v{4+i}")
    for i in R4: a(f"v_cmp_le_u32 s[{34+2*i}:{35+2*i}], s23, v{4+i}")
    for i in R4: a(f"v_cndmask_b32 v{16+i}, 0, v29, s[{26+2*i}:{27+2*i}]")
    for i in R4: a(f"v_cndmask_b32 v{40+i}, 0, 1, s[{26+2*i}:{27+2*i}]")
    for i in R4: a(f"v_cndmask_b32 v{16+i}, v{16+i}, v30, s[{34+2*i}:{35+2*i}]")
    for i in R4: a(f"v_cndmask_b32 v{40+i}, v{40+i}, 2, s[{34+2*i}:{35+2*i}]")
    for i in R4: a(f"v_cmp_gt_u32 s[{26+2*i}:{27+2*i}], v{36+i}, v{32+i}")
    for i in R4: a(f"v_cmp_eq_u32 s[{34+2*i}:{35+2*i}], v{36+i}, v{32+i}")
    for i in R4: a(f"v_sub_u32 v{16+i}, v{4+i}, v{16+i}")
    for i in R4: a(f"v_subb_co_u32 v{36+i}, vcc, v{36+i}, 0, s[{26+2*i}:{27+2*i}]")
    for i in R4: a(f"v_or_b32 v{44+i}, 0x200, v{8+i}")
    for i in R4: a(f"v_mad_u32_u24 v{16+i}, v{36+i}, s42, v{16+i}")
    for i in R4: a(f"v_cndmask_b32 v{40+i}, v{40+i}, 0, s[{34+2*i}:{35+2*i}]")
    for i in R4: a(f"v_cndmask_b32 v{8+i}, v{8+i}, v{44+i}, s[{34+2*i}:{35+2*i}]")
    for i in R4: a(f"v_cndmask_b32 v{4+i}, v{16+i}, v{4+i}, s[{34+2*i}:{35+2*i}]")
    for i in R4: a(f"v_add_lshl_u32 v{12+i}, v{12+i}, v{40+i}, 2")
    for i in R4: a(f"ds_add_rtn_u32 v{16+i}, v{12+i}, v28")
    for i in R4: a(f"v_lshl_or_b32 v{4+i}, v{8+i}, 16, v{4+i}")
    st()
    a(f"""s_waitcnt lgkmcnt(0)
      s_barrier"""); st()
    a(f"""s_cmp_lg_u32 s3, 0
      s_cbranch_scc1 K1_P_SKIPSCAN
      v_lshlrev_b32 v20, 4, v2
      ds_read_b128 v[24:27], v20
      s_lshl_b32 s11, s2, 2
      s_add_u32 s44, s8, {OFF_OFFS:#x}
      s_addc_u32 s45, s9, 0
      s_mov_b32 s46, {NBIN*512}
      s_mov_b32 s47, 0x20000
      v_lshlrev_b32 v23, 11, v2
      s_waitcnt lgkmcnt(0)
      v_add_u32 v21, v24, v25
      v_add3_u32 v21, v21, v26, v27
      v_mov_b32 v22, v21""")
    wave_scan_u32(a,22)
    a(f"""v_sub_u32 v32, v22, v21
      v_add_u32 v33, v32, v24
      v_add_u32 v34, v33, v25
      v_add_u32 v35, v34, v26
      ds_write_b128 v20, v[32:35] offset:1024
      v_lshl_or_b32 v36, v24, 16, v32
      v_lshl_or_b32 v37, v25, 16, v33
      v_lshl_or_b32 v38, v26, 16, v34
      v_lshl_or_b32 v39, v27, 16, v35
      buffer_store_dword v36, v23, s[44:47], s11 offen sc1
      buffer_store_dword v37, v23, s[44:47], s11 offen offset:512 sc1
      buffer_store_dword v38, v23, s[44:47], s11 offen offset:1024 sc1
      buffer_store_dword v39, v23, s[44:47], s11 offen offset:1536 sc1
      s_waitcnt lgkmcnt(0)
      K1_P_SKIPSCAN:
      s_barrier"""); st()
    for i in range(4): a(f"ds_read_b32 v{20+i}, v{12+i} offset:1024")
    a.srd(12,8,9,E*4,OFF_EDG)
    for i in range(4):
        a(f"s_waitcnt lgkmcnt({3-i})\nv_add_lshl_u32 v{20+i}, v{20+i}, v{16+i}, 2")
    for i in range(4): a(f"ds_write_b32 v{20+i}, v{4+i} offset:2048")
    a(f"""s_waitcnt lgkmcnt(0)
      s_barrier
      ds_read_b128 v[4:7], v3 offset:2048
      s_waitcnt lgkmcnt(0)
      buffer_store_dwordx4 v[4:7], v3, s[12:15], s10 offen"""); st()
    if st.on: a("s_waitcnt vmcnt(0)"); st(); a("s_waitcnt lgkmcnt(0)"); st.dump(0,0,0)
    a("s_endpgm")
    a("K1_NOTPART:")
    a(f"""K1_WEIGHTS:
      s_cmp_lg_u32 s2, {PW}
      s_cbranch_scc1 K1_W1
      v_mov_b32 v12, 0
      v_mov_b32 v13, 0
      v_mov_b32 v14, 0
      v_mov_b32 v15, 0
      v_lshlrev_b32 v16, 6, v0
      s_waitcnt lgkmcnt(0)""")
    a.srd(28,8,9,65536,OFF_FLAG)
    for i in range(4): a(f"buffer_store_dwordx4 v[12:15], v16, s[28:31], 0 offen offset:{16*i}")
    a(f"""
      K1_W1:
      s_cmp_ge_u32 s2, {PW+32}
      s_cbranch_scc1 TR_START
      s_cmp_lg_u32 s3, 0
      s_cbranch_scc1 K1_CP
      s_load_dwordx8 s[36:43], s[0:1], 32
      s_load_dwordx2 s[6:7], s[0:1], 64
      s_sub_u32 s4, s2, {PW}
      s_bfe_u32 s10, s4, 0x30001
      s_and_b32 s11, s4, 1""")
    lane_setup(a)
    a("s_waitcnt lgkmcnt(0)")
    a.srd(20,8,9,WT_SIZE,OFF_WT)
    A0=32; B0=16; ACC=96; T=32
    a("s_cmp_ge_u32 s4, 16\ns_cbranch_scc1 K1_WV")
    a.srd(24,36,37,32768); a.srd(28,38,39,32768)
    for s_ in range(4): a(f"buffer_load_dwordx4 v[{B0+4*s_}:{B0+4*s_+3}], v3, s[28:31], s17 offen offset:{64*s_}")
    a("s_branch K1_WA\nK1_WV:")
    a.srd(24,40,41,32768); a.srd(28,42,43,32768); a.srd(32,6,7,256)
    a(f"""v_lshrrev_b32 v15, 1, v8
      buffer_load_ushort v10, v15, s[32:35], 0 offen
      v_lshl_add_u32 v15, v5, 11, v15""")
    for s_ in range(4):
        a(f"s_mov_b32 s18, {8192*s_}")
        for j in range(8):
            a(f"buffer_load_ushort v{96+8*s_+j}, v15, s[28:31], s18 offen offset:{256*j}")
    a("K1_WA:")
    for i in range(4):
        so="s15" if i<2 else "s16"
        for s_ in range(4):
            a(f"buffer_load_dwordx4 v[{A0+16*i+4*s_}:{A0+16*i+4*s_+3}], v3, s[24:27], {so} offen offset:{(i&1)*1024+64*s_}")
    a(f"""s_lshl_b32 s18, s4, 12
      s_lshl_b32 s19, s4, 8
      s_add_u32 s19, s19, {WT_CS}
      v_lshlrev_b32 v13, 2, v2
      v_lshlrev_b32 v14, 6, v5
      s_waitcnt vmcnt(0)
      s_cmp_lt_u32 s4, 16
      s_cbranch_scc1 K1_WB""")
    for k in range(16): a(f"v_lshl_or_b32 v{B0+k}, v{97+2*k}, 16, v{96+2*k}")
    a("s_nop 1\nK1_WB:")
    for s_ in range(4):
        for i in range(4):
            c = "0" if s_==0 else f"v[{ACC+4*i}:{ACC+4*i+3}]"
            a(f"v_mfma_f32_16x16x32_bf16 v[{ACC+4*i}:{ACC+4*i+3}], v[{A0+16*i+4*s_}:{A0+16*i+4*s_+3}], v[{B0+4*s_}:{B0+4*s_+3}], {c}")
    a("s_nop 7")
    for i in range(4): a(f"buffer_store_dwordx4 v[{ACC+4*i}:{ACC+4*i+3}], v11, s[20:23], s18 offen offset:{1024*i}")
    a(f"v_add_f32 v12, v{ACC}, v{ACC+1}")
    for i in range(2,16): a(f"v_add_f32 v12, v12, v{ACC+i}")
    a("buffer_store_dword v12, v13, s[20:23], s19 offen")
    a("v_lshlrev_b32 v10, 16, v10")
    for i in range(16): a(f"v_mul_f32 v{64+i}, v10, v{ACC+i}")
    row16_reduce(a,ACC,T,16); row16_reduce(a,64,48,16)
    a(f"""s_add_u32 s19, s19, 8192
      s_add_u32 s18, s19, {8192-4096}
      s_mov_b32 exec_lo, 0x00010001
      s_mov_b32 exec_hi, 0x00010001""")
    for i in range(4): a(f"buffer_store_dwordx4 v[{T+4*i}:{T+4*i+3}], v14, s[20:23], s19 offen offset:{16*i}")
    a("s_cmp_lt_u32 s4, 16\ns_cbranch_scc1 K1_END")
    for i in range(4): a(f"buffer_store_dwordx4 v[{48+4*i}:{48+4*i+3}], v14, s[20:23], s18 offen offset:{16*i}")
    a("K1_END:\ns_endpgm\nK1_CP:")
    if os.environ.get("CPF","1")=="1":
        a("s_sub_u32 s3, s3, 1"); code_prefetch(a,"build_kernel","CODE_END",3,15,4)
    a("s_endpgm")
    transpose(a,PW+32)
    return a.text(), desc(name,128,102 if STAMP else 64)

def lane_setup(a):
    a(f"""v_and_b32 v4, 15, v2
      v_lshrrev_b32 v5, 4, v2
      v_lshrrev_b32 v6, 2, v4
      v_and_b32 v7, 3, v4
      v_lshl_add_u32 v6, v6, 3, v7
      v_lshlrev_b32 v3, 8, v6
      v_lshl_add_u32 v3, v5, 4, v3
      s_lshr_b32 s12, s10, 1
      s_and_b32 s13, s10, 1
      s_lshl_b32 s12, s12, 5
      s_lshl_b32 s13, s13, 2
      s_add_u32 s12, s12, s13
      v_add_lshl_u32 v8, v6, s12, 2
      v_lshlrev_b32 v9, 5, v5
      s_lshl_b32 s14, s11, 8
      v_add_u32 v9, s14, v9
      v_lshlrev_b32 v11, 4, v2
      s_lshl_b32 s15, s11, 14
      s_add_u32 s16, s15, 8192
      s_lshl_b32 s17, s12, 8""")

def weights_stage2(a,first_wg):
    kappa=128**-0.5*math.log2(math.e)
    ACC=16; T=32
    a(f"""W2_START:
      s_cmp_lg_u32 s3, 0
      s_cbranch_scc1 W2_END
      s_waitcnt lgkmcnt(0)
      s_load_dwordx2 s[6:7], s[0:1], 64
      s_sub_u32 s4, s2, {first_wg}
      s_bfe_u32 s10, s4, 0x30001
      s_and_b32 s11, s4, 1""")
    lane_setup(a)
    a(f"""v_lshlrev_b32 v13, 2, v2
      v_lshlrev_b32 v14, 6, v2
      v_and_b32 v15, 3, v2
      v_lshlrev_b32 v15, 5, v15
      v_bfe_u32 v12, v2, 2, 1
      v_lshl_add_u32 v15, v12, 8, v15
      v_mov_b32 v48, 0
      v_mov_b32 v49, 0
      v_mov_b32 v50, 0
      v_mov_b32 v51, 0
      ds_write_b128 v11, v[48:51]
      ds_write_b128 v11, v[48:51] offset:1024
      s_waitcnt lgkmcnt(0)""")
    a.srd(20,8,9,WT_SIZE,OFF_WT); a.srd(24,8,9,69*1024,OFF_WF); a.srd(28,6,7,256)
    def rowsums(goff,loff,tot):
        a(f"s_mov_b32 s18, {goff}")
        for i in range(4): a(f"buffer_load_dwordx4 v[{T+4*i}:{T+4*i+3}], v14, s[20:23], s18 offen offset:{16*i}")
        a("s_waitcnt vmcnt(0)")
        for i in range(16): a(f"ds_add_f32 v15, v{T+i} offset:{loff+((i>>3)*32+((i>>2)&1)*4+(i&3))*4}")
        a(f"v_add_f32 v12, v{T}, v{T+1}")
        for i in range(2,16): a(f"v_add_f32 v12, v12, v{T+i}")
        wave_scan_f32(a,12)
        a(f"s_nop 1\nv_readlane_b32 s{tot}, v12, 63")
    a("s_cmp_eq_u32 s4, 32\ns_cbranch_scc1 W2_EXT")
    a(f"""s_lshl_b32 s18, s4, 12
      s_and_b32 s19, s4, 30
      s_lshl_b32 s19, s19, 8
      s_add_u32 s19, s19, {WT_CS}
      buffer_load_dword v52, v13, s[20:23], s19 offen
      buffer_load_dword v53, v13, s[20:23], s19 offen offset:256""")
    for i in range(4): a(f"buffer_load_dwordx4 v[{ACC+4*i}:{ACC+4*i+3}], v11, s[20:23], s18 offen offset:{1024*i}")
    a(f"""s_mov_b32 s32, 0
      s_cmp_ge_u32 s4, 16
      s_cbranch_scc1 W2_NOROW""")
    rowsums(WT_R1,0,32)
    a(f"""s_mov_b32 s33, {f2u(kappa):#x}
      s_branch W2_R2
      W2_NOROW:
      s_mov_b32 s33, 1.0
      W2_R2:
      s_waitcnt vmcnt(0) lgkmcnt(0)
      v_add_f32 v52, v52, v53
      v_xor_b32 v54, 128, v13""")
    for i in range(4): a(f"ds_read_b128 v[{T+4*i}:{T+4*i+3}], v9 offset:{((i>>1)*32+(i&1)*4)*4}")
    a(f"""ds_swizzle_b32 v53, v52 offset:0x401F
      s_waitcnt lgkmcnt(0)
      v_add_f32 v52, v52, v53
      ds_bpermute_b32 v53, v54, v52
      s_mov_b32 s34, {f2u(1/128):#x}
      s_mov_b32 s35, {f2u(-1/128):#x}
      v_mov_b32 v55, s32
      s_waitcnt lgkmcnt(0)
      v_add_f32 v52, v52, v53
      v_fma_f32 v52, v55, s34, -v52
      v_mul_f32 v52, s34, v52
      v_mul_f32 v52, s33, v52""")
    for i in range(16): a(f"v_fma_f32 v{ACC+i}, v{T+i}, s35, v{ACC+i}")
    for i in range(16): a(f"v_fma_f32 v{ACC+i}, v{ACC+i}, s33, v52")
    a("s_lshl_b32 s18, s4, 11")
    for c in range(2):
        for h in range(2):
            for p in range(2):
                a(f"v_cvt_pk_bf16_f32 v{48+4*c+2*h+p}, v{ACC+8*c+4*h+2*p}, v{ACC+8*c+4*h+2*p+1}")
        a(f"buffer_store_dwordx4 v[{48+4*c}:{51+4*c}], v11, s[24:27], s18 offen offset:{1024*c}")
    a("s_endpgm\nW2_EXT:")
    a(f"""v_lshlrev_b32 v16, 1, v2
      buffer_load_ushort v52, v16, s[28:31], 0 offen
      buffer_load_ushort v53, v16, s[28:31], 0 offen offset:128""")
    rowsums(WT_R1+4096,1024,32); rowsums(WT_R2,1536,33)
    a(f"""v_lshlrev_b32 v52, 16, v52
      v_lshlrev_b32 v53, 16, v53
      v_mov_b32 v54, 1.0
      ds_write_b32 v13, v54
      ds_write_b32 v13, v54 offset:256
      ds_write_b32 v13, v52 offset:512
      ds_write_b32 v13, v53 offset:768
      v_add_f32 v12, v52, v53
      v_mov_b32 v55, s32
      v_mov_b32 v56, s33
      v_mul_f32 v55, {f2u(-1/128):#x}, v55
      v_mul_f32 v56, {f2u(-1/128):#x}, v56
      ds_add_f32 v13, v55 offset:1024
      ds_add_f32 v13, v55 offset:1280
      ds_add_f32 v13, v56 offset:1536
      ds_add_f32 v13, v56 offset:1792""")
    wave_scan_f32(a,12)
    a(f"""s_mov_b32 s18, {68*1024}
      buffer_store_dword v12, v13, s[24:27], s18 offen
      v_lshlrev_b32 v17, 9, v7
      v_lshl_add_u32 v17, v5, 5, v17
      s_mov_b32 s18, 65536
      s_waitcnt lgkmcnt(0)""")
    for c in range(4):
        a(f"ds_read_b128 v[{T+8*c}:{T+8*c+3}], v17 offset:{128*c}\nds_read_b128 v[{T+8*c+4}:{T+8*c+7}], v17 offset:{128*c+16}")
    a("s_waitcnt lgkmcnt(0)")
    for c in range(4):
        for p in range(4): a(f"v_cvt_pk_bf16_f32 v{16+4*c+p}, v{T+8*c+2*p}, v{T+8*c+2*p+1}")
        a(f"buffer_store_dwordx4 v[{16+4*c}:{19+4*c}], v11, s[24:27], s18 offen offset:{1024*c}")
    a("W2_END:\ns_endpgm")

def transpose(a,first_wg):
    st=Stamper(a,'k1' in STAMP); st.n=1
    a(f"""TR_START:
      s_waitcnt lgkmcnt(0)
      s_load_dwordx2 s[4:5], s[0:1], 0
      s_load_dwordx2 s[6:7], s[0:1], 24
      s_sub_u32 s10, s2, {first_wg}
      s_mul_i32 s10, s10, {TJ}
      s_add_u32 s10, s10, s3
      s_cmp_ge_u32 s3, {TJ}
      s_cbranch_scc1 K1_END
      s_cmp_ge_u32 s10, 1568
      s_cbranch_scc1 K1_END
      v_lshlrev_b32 v3, 4, v2
      v_lshrrev_b32 v4, 4, v2
      v_lshlrev_b32 v5, 1, v4
      s_lshl_b32 s24, s10, 12
      s_lshl_b32 s25, s10, 5
      s_lshl_b32 s27, s10, 7
      s_lshl_b32 s11, s3, 12
      s_waitcnt lgkmcnt(0)""")
    a.srd(12,4,5,N*256); a.srd(16,6,7,N*2); a.srd(20,8,9,TSTR)
    for i in range(4): a(f"buffer_load_dwordx4 v[{8+4*i}:{11+4*i}], v3, s[12:15], s24 offen offset:{1024*i}")
    for i in range(4): a(f"buffer_load_ushort v{32+i}, v5, s[16:19], s25 offen offset:{8*i}")
    a(f"""v_and_b32 v6, 15, v2
      v_and_b32 v7, 7, v2
      v_lshrrev_b32 v36, 1, v4
      v_xor_b32 v36, v36, v7
      v_and_b32 v37, 1, v4
      v_lshlrev_b32 v6, 8, v6
      v_lshl_add_u32 v6, v37, 3, v6
      v_add_u32 v6, s11, v6
      v_lshrrev_b32 v38, 3, v2
      v_lshrrev_b32 v39, 1, v38
      v_xor_b32 v39, v39, v7
      s_mov_b32 s26, {GSTR}
      v_mul_u32_u24 v38, s26, v38
      v_lshl_add_u32 v40, v39, 4, v38
      v_xor_b32 v41, 64, v40
      v_add_u32 v42, s11, v3
      s_mov_b32 s26, 0xffff0000""")
    st()
    if st.on: a("s_waitcnt vmcnt(0)"); st()
    for i in range(4):
        a(f"s_waitcnt vmcnt({3-i})\nv_lshlrev_b32 v{32+i}, 16, v{32+i}\nv_xor_b32 v37, {2*i}, v36\nv_lshl_add_u32 v37, v37, 4, v6")
        for j in range(4):
            r=8+4*i+j
            a(f"v_lshlrev_b32 v{24+2*j}, 16, v{r}\nv_and_b32 v{25+2*j}, s26, v{r}")
        for j in range(8): a(f"v_mul_f32 v{24+j}, v{32+i}, v{24+j}")
        for j in range(4): a(f"v_cvt_pk_bf16_f32 v{8+4*i+j}, v{24+2*j}, v{25+2*j}")
        a(f"ds_write2_b64 v37, v[{8+4*i}:{9+4*i}], v[{10+4*i}:{11+4*i}] offset1:16")
    a("s_waitcnt lgkmcnt(0)")
    for i in range(4): a(f"ds_read_b128 v[{8+4*i}:{11+4*i}], v42 offset:{1024*i}")
    for i in range(4):
        a(f"s_waitcnt lgkmcnt({3-i})\nbuffer_store_dwordx4 v[{8+4*i}:{11+4*i}], v{41 if i&1 else 40}, s[20:23], s27 offen"+os.environ.get('TRS',''))
        if i<3: a(f"s_add_u32 s27, s27, {8*GSTR}")
    st()
    if st.on: a("s_waitcnt vmcnt(0)"); st(); a("s_waitcnt lgkmcnt(0)"); st.dump(0,0,0); st.dump(0,12,16)
    a("s_endpgm")
```

```python
from common import *
L_CNT=0
L_CNT2=4096
L_CUR2=8192
L_HIST=12288
L_RMAX=12544
L_OVF=12608
L_INFO=12800
L_STG=16896
LSTR=400
L_NM=L_STG+64*LSTR
L_BM=L_NM+4096
L_LIST=L_BM+4096
L_LM=L_OVF+80
L_LC=L_OVF+72
K2_LDS=L_LIST+25600
GREEDY=os.environ.get('GREEDY','1')=='1'
SENT_T=ZT|(ZT<<16); SENT_O=ZO|(ZO<<16)
def lut(f,bits): return sum(f(r)<<(bits*r) for r in range(7))
def rowinfo(p):
    d={}
    for h,l in LAY[p].items():
        for s_,(r,pb,n) in enumerate(l): d[r]=(h,s_,pb,n)
    return d
RI=[rowinfo(p) for p in range(4)]
HS=lut(lambda r:RI[0][r][0]*4+RI[0][r][1],4)|(3<<28)
PB8=[lut(lambda r:RI[p][r][2]+24*RI[p][r][0],8) for p in range(4)]
CP4=[lut(lambda r:CAPS[p][r],4) for p in range(4)]
NR4=[lut(lambda r:RI[p][r][3],4) for p in range(4)]

def gen_k2(name):
    a=Asm(); a.l.append(head(name))
    st=Stamper(a,"k2" in STAMP); st.off=4
    SS=lambda: a(f"s_memtime s[{76+2*st.n}:{77+2*st.n}]") or setattr(st,"n",st.n+1) if st.on else None
    SS()
    a(f"""s_cmp_ge_u32 s2, {NBIN+33+48}
      s_cbranch_scc1 K2_END
      s_load_dwordx2 s[8:9], s[0:1], 88
      s_load_dwordx2 s[4:5], s[0:1], 24
      s_load_dwordx2 s[6:7], s[0:1], 80
      v_lshrrev_b32 v1, 6, v0
      v_and_b32 v2, 63, v0
      v_lshrrev_b32 v3, 5, v0
      v_readfirstlane_b32 s3, v1
      v_and_b32 v4, 31, v0
      s_cmp_ge_u32 s2, {NBIN+33}
      s_cbranch_scc1 K2_WARM
      s_cmp_ge_u32 s2, {NBIN}
      s_cbranch_scc1 W2_START
      s_mul_i32 s10, s2, 21846
      s_lshr_b32 s10, s10, 16
      s_mul_i32 s11, s10, 3
      s_sub_u32 s11, s2, s11
      v_lshlrev_b32 v5, 2, v3
      s_lshl_b32 s12, s2, 9
      v_lshlrev_b32 v7, 4, v0
      v_mov_b32 v8, 0
      v_mov_b32 v9, 0
      v_mov_b32 v10, 0
      v_mov_b32 v11, 0
      ds_write_b128 v7, v[8:11]
      s_and_b32 s13, s3, 3
      s_mul_i32 s13, s13, 0x80008
      s_add_u32 s14, s13, {SENT_O+0x10000:#x}
      s_add_u32 s13, s13, {SENT_T+0x10000:#x}
      v_mov_b32 v8, s13
      v_add_u32 v9, 0x20002, v8
      v_add_u32 v10, 0x40004, v8
      v_add_u32 v11, 0x60006, v8
      v_mov_b32 v20, s14
      v_add_u32 v21, 0x20002, v20
      v_add_u32 v22, 0x40004, v20
      v_add_u32 v23, 0x60006, v20
      s_min_u32 s64, s11, 1
      s_waitcnt lgkmcnt(0)""")
    a(f"s_add_u32 s16, s8, s12\ns_addc_u32 s17, s9, 0\ns_add_u32 s16, s16, {OFF_OFFS:#x}\ns_addc_u32 s17, s17, 0\ns_mov_b32 s18, {PW*4}\ns_mov_b32 s19, 0x20000"); a.srd(20,8,9,E*4,OFF_EDG); a.srd(24,4,5,N*2)
    for k in range(4):
        a(f"buffer_load_dword v{12+k}, v5, s[16:19], 0 offen offset:{128*k}")
    a(f"""s_mul_i32 s13, s10, 896
      v_lshl_add_u32 v16, v0, 1, s13
      buffer_load_ushort v16, v16, s[24:27], 0 offen
      s_cmp_ge_u32 s3, 12
      s_cbranch_scc1 K2_NOSTG
      v_mul_u32_u24 v7, {LSTR}, v2
      v_lshl_add_u32 v7, v1, 4, v7
      ds_write_b128 v7, v[8:11] offset:{L_STG}
      ds_write_b128 v7, v[20:23] offset:{L_STG+192}
      K2_NOSTG:
      v_mul_u32_u24 v17, {PE*4}, v3
      v_lshl_add_u32 v17, v4, 2, v17
      v_mov_b32 v18, 1
      v_add_u32 v19, 32, v4
      s_mov_b32 s14, 0xffff""")
    for reg,vals in ((66,[x&0xffffffff for x in PB8]),(67,[x>>32 for x in PB8]),(68,NR4),(69,UNITS),(70,UOFF),(71,CP4)):
        a(f"s_mov_b32 s{reg}, {vals[1]:#x}\ns_cmp_eq_u32 s11, 1\ns_cselect_b32 s{reg}, {vals[2]:#x}, s{reg}\ns_cmp_eq_u32 s11, 2\ns_cselect_b32 s{reg}, {vals[3]:#x}, s{reg}")
    a(f"""s_mov_b32 s48, {PB8[0]&0xffffffff:#x}
      s_mov_b32 s49, {PB8[0]>>32:#x}
      s_cmp_lt_u32 s3, 8
      s_cselect_b32 s48, s66, s48
      s_cselect_b32 s49, s67, s49
      s_cselect_b32 s50, s64, 0
      s_and_b32 s51, s3, 7
      s_lshl_b32 s51, s51, 3
      s_lshr_b64 s[48:49], s[48:49], s51
      s_lshl_b32 s48, s48, 1
      v_subrev_u32 v6, s48, v4
      v_lshlrev_b32 v6, v6, v18
      v_or_b32 v6, s50, v6
      v_mov_b32 v61, s50
      v_lshlrev_b32 v62, 2, v0
      v_add_u32 v62, {L_NM}, v62
      ds_write2st64_b32 v62, v61, v6 offset1:16""")
    for k in range(4):
        a(f"""s_waitcnt vmcnt({4-k+2*k})
          v_and_b32 v{20+k}, s14, v{12+k}
          v_lshrrev_b32 v{24+k}, 16, v{12+k}
          v_lshl_add_u32 v{20+k}, v{20+k}, 2, v17
          v_cmp_lt_u32 s[{30+2*k}:{31+2*k}], v4, v{24+k}
          v_cmp_lt_u32 s[{38+2*k}:{39+2*k}], v19, v{24+k}
          s_mov_b32 s13, {32*k*PE*4}
          buffer_load_dword v{28+k}, v{20+k}, s[20:23], s13 offen
          buffer_load_dword v{32+k}, v{20+k}, s[20:23], s13 offen offset:128""")
    a(f"""v_max_u32 v36, v24, v25
      v_max3_u32 v36, v36, v26, v27
      v_cmp_lt_u32 vcc, 64, v36
      s_waitcnt lgkmcnt(0)
      s_barrier
      s_mov_b64 s[46:47], vcc""")
    SS()
    order=[0,4,1,5,2,6,3,7]
    for n,j in enumerate(order):
        a(f"""s_waitcnt vmcnt({7-n})
          s_mov_b64 exec, s[{30+2*j}:{31+2*j}]
          {"s_cbranch_execz K2_A%d"%j if j>=3 else ""}
          v_lshrrev_b32 v{36+j}, 14, v{28+j}
          v_and_b32 v{36+j}, 0xffc, v{36+j}
          ds_add_rtn_u32 v{44+j}, v{36+j}, v18
          {"K2_A%d:"%j if j>=3 else ""}""")
    a("s_mov_b64 exec, -1")
    a(f"""s_cmp_eq_u64 s[46:47], 0
      s_cbranch_scc1 K2_NOSLOWA
      ds_write_b32 v18, v18 offset:{L_HIST-1}""")
    for k in range(4):
        a(f"""v_add_u32 v52, 64, v4
          v_add_u32 v53, 256, v{20+k}
          s_mov_b32 s13, {32*k*PE*4}
          K2_SA{k}:
          v_cmp_lt_u32 vcc, v52, v{24+k}
          s_and_saveexec_b64 s[48:49], vcc
          s_cbranch_execz K2_SA{k}_E
          buffer_load_dword v54, v53, s[20:23], s13 offen
          s_waitcnt vmcnt(0)
          v_lshrrev_b32 v54, 14, v54
          v_and_b32 v54, 0xffc, v54
          ds_add_u32 v54, v18 offset:{L_CNT2}
          s_mov_b64 exec, s[48:49]
          v_add_u32 v52, 32, v52
          v_add_u32 v53, 128, v53
          s_branch K2_SA{k}
          K2_SA{k}_E:
          s_mov_b64 exec, s[48:49]""")
    a("K2_NOSLOWA:"); SS()
    a(f"""s_waitcnt lgkmcnt(0)
      s_barrier"""); SS()
    a(f"""
      s_mul_i32 s50, s10, 9363
      s_lshr_b32 s50, s50, 16
      s_mul_i32 s50, s50, 7
      s_sub_u32 s50, s10, s50
      s_mul_i32 s50, s50, 448
      v_lshlrev_b32 v52, 2, v0
      v_add_u32 v60, s50, v0""")
    if SORT=="class":
        a(f"""s_cmp_ge_u32 s3, 7
          s_cbranch_scc1 K2_SKIP2
          v_lshlrev_b32 v1, 2, v4
          v_add_u32 v5, 1024, v1
          ds_read2st64_b32 v[54:55], v52 offset0:0 offset1:{L_CNT2//256}
          ds_read2st64_b32 v[56:57], v52 offset0:8 offset1:{8+L_CNT2//256}
          ds_read_b32 v17, v18 offset:{L_HIST-1}""")
        CP=[8,10,12,14,58,62,56]
        for m in range(6): a(f"ds_read2_b32 v[{CP[m]}:{CP[m]+1}], v{1 if m<4 else 5} offset0:{64*(m&3)} offset1:{64*(m&3)+32}")
        a(f"""s_waitcnt lgkmcnt(6)
          v_add_u32 v53, v54, v55
          v_add_u32 v6, v56, v57
          v_readfirstlane_b32 s13, v17
          ds_read2_b32 v[56:57], v5 offset0:128 offset1:160
          v_lshl_add_u32 v54, v53, 4, v3
          v_mov_b32 v55, 0
          s_cmp_eq_u32 s13, 0
          s_waitcnt lgkmcnt(0)
          s_cbranch_scc1 K2_NOC2""")
        for m in range(14):
            a(f"ds_read_b32 v17, v1 offset:{L_CNT2+128*m}\ns_waitcnt lgkmcnt(0)\nv_add_u32 v{CP[m>>1]+(m&1)}, v{CP[m>>1]+(m&1)}, v17")
        a("K2_NOC2:")
        for m in range(14): a(f"v_lshl_add_u32 v{CP[m>>1]+(m&1)}, v{CP[m>>1]+(m&1)}, 4, {m}")
        for m in range(7):
            a(f"v_cmp_lt_u32 vcc, v{CP[m]}, v54\nv_cmp_lt_u32 s[48:49], v{CP[m]+1}, v54\ns_nop 0\nv_addc_co_u32 v55, vcc, 0, v55, vcc\nv_addc_co_u32 v55, vcc, 0, v55, s[48:49]")
        a("v_mov_b32 v57, v55")
        a(f"""v_lshrrev_b32 v58, 1, v57
          v_and_b32 v57, 1, v57
          v_lshl_add_u32 v57, v57, 5, v4""")
    else:
        a(f"""s_cmp_ge_u32 s3, 7
          s_cbranch_scc1 K2_SKIP1
          ds_read2st64_b32 v[54:55], v52 offset0:0 offset1:{L_CNT2//256}
          ds_read2st64_b32 v[56:57], v52 offset0:8 offset1:{8+L_CNT2//256}
          s_waitcnt lgkmcnt(0)
          v_add_u32 v53, v54, v55
          v_add_u32 v6, v56, v57
          v_min_u32 v54, 63, v53
          v_lshlrev_b32 v54, 2, v54
          ds_add_rtn_u32 v55, v54, v18 offset:{L_HIST}
          s_waitcnt lgkmcnt(0)
          K2_SKIP1:
          s_barrier
          s_cmp_ge_u32 s3, 7
          s_cbranch_scc1 K2_SKIP2
          v_lshlrev_b32 v56, 2, v2
          ds_read_b32 v56, v56 offset:{L_HIST}
          s_waitcnt lgkmcnt(0)
          v_mov_b32 v57, v56""")
        wave_scan_u32(a,57)
        a(f"""v_sub_u32 v57, v57, v56
          ds_bpermute_b32 v57, v54, v57
          s_waitcnt lgkmcnt(0)
          v_add_u32 v57, v57, v55
          v_lshrrev_b32 v58, 6, v57
          v_and_b32 v57, 63, v57""")
    a(f"""v_lshlrev_b32 v59, 2, v58
      ds_max_u32 v59, v53 offset:{L_RMAX}
      ds_max_u32 v59, v6 offset:{L_RMAX+32}
      s_mov_b32 s48, {PB8[0]&0xffffffff:#x}
      s_mov_b32 s49, {PB8[0]>>32:#x}
      s_mov_b32 s13, {NR4[0]:#x}
      s_mov_b32 s15, {HS:#x}
      v_lshlrev_b32 v61, 1, v59
      v_lshrrev_b64 v[62:63], v61, s[66:67]
      v_lshrrev_b64 v[54:55], v61, s[48:49]
      v_lshrrev_b32 v61, v59, s68
      v_lshrrev_b32 v56, v59, s13
      v_mul_u32_u24 v63, {LSTR}, v57
      v_lshl_or_b32 v63, v58, 28, v63
      v_lshrrev_b32 v55, 5, v57
      v_lshl_or_b32 v63, v55, 27, v63
      v_and_b32 v62, 0xff, v62
      v_and_b32 v54, 0xff, v54
      v_and_b32 v61, 15, v61
      v_and_b32 v56, 15, v56
      v_lshl_add_u32 v62, v62, 2, v63
      v_lshl_or_b32 v61, v61, 15, v62
      v_lshl_add_u32 v54, v54, 2, v63
      v_lshl_or_b32 v54, v56, 15, v54
      v_add_u32 v54, {192+(8<<28):#x}, v54
      ds_write2st64_b32 v52, v61, v54 offset0:{L_INFO//256} offset1:{L_INFO//256+8}
      v_lshrrev_b32 v62, v59, s15
      s_cmp_eq_u32 s11, 1
      s_cbranch_scc1 K2_NOSCALE
      s_cmp_eq_u32 s11, 0
      s_cbranch_scc1 K2_DST""")
    a.srd(52,8,9,56*2048,OFF_SCALE)
    a(f"""v_and_b32 v62, 15, v62
      v_lshlrev_b32 v62, 8, v62
      v_lshl_add_u32 v62, v57, 2, v62
      s_lshl_b32 s51, s10, 11
      v_lshlrev_b32 v16, 16, v16
      v_mul_f32 v16, v16, v16
      buffer_store_dword v16, v62, s[52:55], s51 offen
      s_branch K2_NOSCALE
      K2_DST:""")
    a.srd(52,8,9,56*1024,OFF_DST)
    a(f"""v_and_b32 v63, 3, v62
      v_bfe_u32 v62, v62, 2, 1
      v_lshlrev_b32 v62, 9, v62
      v_lshl_add_u32 v62, v57, 3, v62
      v_lshl_add_u32 v62, v63, 1, v62
      s_lshl_b32 s51, s10, 10
      buffer_store_short v60, v62, s[52:55], s51 offen
      K2_NOSCALE:
      s_waitcnt lgkmcnt(0)
      K2_SKIP2:
      s_barrier"""); SS()
    a(f"""v_and_b32 v52, 15, v2
      v_lshlrev_b32 v52, 2, v52
      ds_read_b32 v53, v52 offset:{L_RMAX}""")
    for j in range(8):
        a(f"s_mov_b64 exec, s[{30+2*j}:{31+2*j}]\nds_read_b32 v{36+j}, v{36+j} offset:{L_INFO}")
    a(f"""s_mov_b64 exec, -1
      s_mov_b32 s48, s68
      s_mov_b32 s49, {NR4[0]:#x}
      v_lshrrev_b64 v[54:55], v52, s[48:49]
      v_and_b32 v55, 15, v54
      v_mov_b32 v56, s64
      v_cmp_gt_u32 vcc, 32, v52
      s_nop 1
      v_cndmask_b32 v56, 0, v56, vcc
      s_waitcnt lgkmcnt(0)
      v_add3_u32 v53, v53, v56, 1
      v_lshrrev_b32 v53, 1, v53
      v_cmp_ne_u32 vcc, 0, v55
      s_nop 1
      v_cndmask_b32 v53, 0, v53, vcc
      v_sub_u32 v54, v53, v55
      v_max_i32 v54, 0, v54
      v_cmp_ne_u32 vcc, 0, v54
      s_mov_b32 s48, s71
      s_mov_b32 s49, {CP4[0]:#x}
      v_lshrrev_b64 v[56:57], v52, s[48:49]
      v_and_b32 v56, 15, v56
      v_max_u32 v56, v56, v53
      v_lshlrev_b32 v56, 1, v56
      v_bfm_b32 v56, v56, 0
      ds_write_b32 v52, v56 offset:{L_LM}
      ds_read_b32 v57, v18 offset:{L_HIST-1}
      v_mov_b32 v56, 0
      s_waitcnt lgkmcnt(0)
      v_readfirstlane_b32 s72, v57""")
    a.srd(56,8,9,OVF_SIZE,OFF_OVF)
    a(f"""s_cbranch_vccz K2_NOOVF
      s_mov_b32 s72, 1
      v_mov_b32 v57, v54""")
    for sh in (1,2,4,8): a(f"s_nop 1\nv_add_u32_dpp v57, v57, v57 row_shr:{sh} row_mask:0xf bank_mask:0xf bound_ctrl:0")
    a(f"""s_nop 1
      v_readlane_b32 s60, v57, 15
      v_readlane_b32 s65, v57, 7
      v_sub_u32 v57, v57, v54
      s_lshl_b32 s60, s60, 8
      s_lshl_b32 s65, s65, 8
      s_cmp_lg_u32 s3, 0
      s_cbranch_scc1 K2_OV1
      s_mov_b64 exec, 1
      v_mov_b32 v58, s60
      v_mov_b32 v59, 0
      global_atomic_add v58, v59, v58, s[6:7] sc0 sc1
      s_waitcnt vmcnt(0)
      ds_write_b32 v59, v58 offset:{L_OVF+64}
      s_waitcnt lgkmcnt(0)
      s_mov_b64 exec, -1
      K2_OV1:
      s_barrier
      v_mov_b32 v59, 0
      ds_read_b32 v58, v59 offset:{L_OVF+64}
      s_waitcnt lgkmcnt(0)
      s_nop 0
      v_readfirstlane_b32 s61, v58
      v_lshl_add_u32 v56, v57, 8, v58
      ds_write_b32 v52, v56 offset:{L_OVF}
      v_lshlrev_b32 v59, 2, v0
      v_mov_b32 v62, {SENT_T:#x}
      v_mov_b32 v63, {SENT_O:#x}
      K2_OVF_FILL:
      v_cmp_gt_u32 s[48:49], s65, v59
      v_cmp_gt_u32 vcc, s60, v59
      s_nop 0
      v_cndmask_b32 v58, v63, v62, s[48:49]
      s_and_saveexec_b64 s[48:49], vcc
      s_cbranch_execz K2_OVF_FILL_E
      buffer_store_dword v58, v59, s[56:59], s61 offen
      s_mov_b64 exec, s[48:49]
      s_nop 0
      v_add_u32 v59, 4096, v59
      s_branch K2_OVF_FILL
      K2_OVF_FILL_E:
      s_mov_b64 exec, s[48:49]
      s_waitcnt vmcnt(0) lgkmcnt(0)
      s_barrier
      K2_NOOVF:
      s_cmp_lg_u32 s3, 8
      s_cbranch_scc1 K2_NOHDR""")
    a.srd(52,8,9,112*128,OFF_HDR)
    a(f"""s_mov_b32 s15, {HS:#x}
      v_and_b32 v57, 28, v52
      v_lshrrev_b32 v57, v57, s15
      v_and_b32 v58, 3, v57
      v_bfe_u32 v57, v57, 2, 1
      v_lshlrev_b32 v57, 7, v57
      v_lshl_add_u32 v57, v58, 2, v57
      s_lshl_b32 s62, s11, 4
      s_add_u32 s62, s62, 16
      v_mov_b32 v58, s62
      v_cmp_gt_u32 vcc, 32, v52
      s_lshl_b32 s51, s10, 8
      s_movk_i32 s62, 0xff
      s_cmp_eq_u32 s11, 0
      v_cndmask_b32 v58, 0, v58, vcc
      s_cselect_b32 s62, 0xffff, s62
      v_add_u32 v57, v57, v58
      s_mov_b32 exec_lo, s62
      s_mov_b32 exec_hi, 0
      buffer_store_dword v53, v57, s[52:55], s51 offen
      buffer_store_dword v56, v57, s[52:55], s51 offen offset:64
      s_mov_b64 exec, -1
      K2_NOHDR:""")
    def place(ent,info,rank,t0,t1,t2,tag,ovf=True):
        a(f"v_and_b32 v{t0}, 0x7fff, v{info}")
        if not ovf:
            a(f"""v_lshl_add_u32 v{t0}, v{rank}, 1, v{t0}
              ds_write_b16 v{t0}, v{ent} offset:{L_STG}
              K2_PL_{tag}:""")
            return
        a(f"""v_bfe_u32 v{t2}, v{info}, 15, 5
          v_mul_u32_u24 v{t1}, 5243, v{t0}
          v_lshlrev_b32 v{t2}, 1, v{t2}
          v_lshl_add_u32 v{t0}, v{rank}, 1, v{t0}
          v_cmp_lt_u32 vcc, v{rank}, v{t2}
          v_lshrrev_b32 v{t1}, 21, v{t1}
          s_and_saveexec_b64 s[48:49], vcc
          ds_write_b16 v{t0}, v{ent} offset:{L_STG}
          s_andn2_b64 exec, s[48:49], exec
          s_cbranch_execz K2_PL_{tag}
          v_lshrrev_b32 v{t0}, 26, v{info}
          v_and_b32 v{t0}, 0x3c, v{t0}
          ds_read_b32 v{t0}, v{t0} offset:{L_OVF}
          v_sub_u32 v{rank}, v{rank}, v{t2}
          v_lshrrev_b32 v{t2}, 1, v{rank}
          v_and_b32 v{rank}, 1, v{rank}
          s_waitcnt lgkmcnt(0)
          v_lshl_add_u32 v{t0}, v{t2}, 8, v{t0}
          v_lshl_add_u32 v{t0}, v{t1}, 2, v{t0}
          v_lshl_add_u32 v{t0}, v{rank}, 1, v{t0}
          buffer_store_short v{ent}, v{t0}, s[56:59], 0 offen
          K2_PL_{tag}:""")
    a(f"""s_cmp_ge_u32 s3, 7
      s_cbranch_scc1 K2_PL_N
      s_cmp_eq_u32 s11, 0
      s_cbranch_scc1 K2_PL_N
      v_mov_b32 v55, 0""")
    place(60,61,55,57,58,59,"N")
    a("s_mov_b64 exec, -1")
    if GREEDY:
        a("s_cmp_lg_u32 s72, 0\ns_cbranch_scc1 K2_SIMPLE")
        SS()
        BT=[12,13,14,15,8,9,10,11]; OD=[52,53,54,55,5,6,17,19]
        for j in range(8):
            a(f"s_mov_b64 exec, s[{30+2*j}:{31+2*j}]")
            if j>=3: a(f"s_cbranch_execz K2_G1_{j}")
            a(f"""v_add_u32 v{44+j}, s64, v{44+j}
              v_lshrrev_b32 v57, 20, v{36+j}
              v_and_b32 v59, 31, v{28+j}
              v_lshlrev_b32 v{BT[j]}, v{44+j}, v18
              v_lshl_or_b32 v57, v59, 2, v57
              ds_or_rtn_b32 v{OD[j]}, v57, v{BT[j]} offset:{L_BM}
              K2_G1_{j}:""")
        a("s_mov_b32 s73, 0\ns_waitcnt lgkmcnt(0)")
        for j in range(8):
            a(f"s_mov_b64 exec, s[{30+2*j}:{31+2*j}]")
            if j>=3: a(f"s_cbranch_execz K2_PL_G{j}")
            a(f"""v_and_b32 v57, v{OD[j]}, v{BT[j]}
              v_lshrrev_b32 v58, 14, v{28+j}
              v_cmp_ne_u32 vcc, 0, v57
              v_and_b32 v58, 0xffc, v58
              s_mov_b64 s[{30+2*j}:{31+2*j}], vcc
              s_bcnt1_i32_b64 s13, vcc
              s_andn2_b64 exec, exec, vcc
              s_add_u32 s73, s73, s13
              ds_or_b32 v58, v{BT[j]} offset:{L_NM}""")
            place(28+j,36+j,44+j,57,58,59,f"G{j}",False)
        a(f"""s_mov_b64 exec, 1
          v_mov_b32 v57, s73
          ds_add_rtn_u32 v57, v18, v57 offset:{L_LC-1}
          s_mov_b64 exec, -1
          s_waitcnt lgkmcnt(0)
          v_readfirstlane_b32 s73, v57""")
        for j in range(8):
            a(f"""s_mov_b64 exec, s[{30+2*j}:{31+2*j}]
              s_cbranch_execz K2_G3_{j}
              v_mbcnt_lo_u32_b32 v57, exec_lo, 0
              v_mbcnt_hi_u32_b32 v57, exec_hi, v57
              s_bcnt1_i32_b64 s13, exec
              v_add_lshl_u32 v57, v57, s73, 2
              s_add_u32 s73, s73, s13
              ds_write_b32 v57, v{28+j} offset:{L_LIST}
              K2_G3_{j}:""")
        SS()
        a(f"""s_mov_b64 exec, -1
          s_waitcnt lgkmcnt(0)
          s_barrier"""); SS()
        a(f"""ds_read_b32 v20, v18 offset:{L_LC-1}
          v_lshlrev_b32 v21, 2, v0
          s_waitcnt lgkmcnt(0)
          v_lshlrev_b32 v20, 2, v20
          K2_GL:
          v_cmp_lt_u32 vcc, v21, v20
          s_and_saveexec_b64 s[62:63], vcc
          s_cbranch_execz K2_GE
          ds_read_b32 v28, v21 offset:{L_LIST}
          s_mov_b32 s73, 0
          s_waitcnt lgkmcnt(0)
          v_lshrrev_b32 v22, 14, v28
          v_and_b32 v22, 0xffc, v22
          ds_read_b32 v36, v22 offset:{L_INFO}
          v_and_b32 v59, 31, v28
          s_waitcnt lgkmcnt(0)
          v_lshrrev_b32 v57, 26, v36
          v_and_b32 v57, 0x3c, v57
          ds_read_b32 v24, v57 offset:{L_LM}
          v_lshrrev_b32 v58, 20, v36
          v_lshl_or_b32 v23, v59, 2, v58
          s_mov_b64 s[30:31], exec
          K2_GR:
          ds_read_b32 v25, v22 offset:{L_NM}
          ds_read_b32 v26, v23 offset:{L_BM}
          s_cmp_ge_u32 s73, {int(os.environ.get('GR',2))}
          s_cselect_b64 s[32:33], -1, 0
          s_add_u32 s73, s73, 1
          s_waitcnt lgkmcnt(0)
          v_bfi_b32 v25, v25, 0, v24
          v_bfi_b32 v26, v26, 0, v25
          v_cmp_eq_u32 vcc, 0, v26
          s_nop 1
          v_cndmask_b32 v26, v26, v25, vcc
          s_or_b64 s[32:33], s[32:33], vcc
          v_cmp_ne_u32 vcc, 0, v26
          v_ffbl_b32 v44, v26
          s_and_b64 exec, exec, vcc
          v_lshlrev_b32 v27, v44, v18
          ds_or_rtn_b32 v25, v22, v27 offset:{L_NM}
          ds_or_rtn_b32 v26, v23, v27 offset:{L_BM}
          s_waitcnt lgkmcnt(0)
          v_and_b32 v25, v25, v27
          v_and_b32 v26, v26, v27
          v_cmp_eq_u32 s[34:35], 0, v25
          v_cmp_eq_u32 s[36:37], 0, v26
          s_mov_b64 s[38:39], exec
          s_or_b64 s[32:33], s[32:33], s[36:37]
          s_and_b64 s[40:41], s[34:35], s[32:33]
          s_andn2_b64 s[30:31], s[30:31], s[40:41]
          s_andn2_b64 exec, s[34:35], s[32:33]
          ds_xor_b32 v22, v27 offset:{L_NM}
          s_andn2_b64 exec, s[36:37], s[34:35]
          ds_xor_b32 v23, v27 offset:{L_BM}
          s_mov_b64 exec, s[30:31]
          s_cbranch_execnz K2_GR
          s_and_b64 exec, s[62:63], s[62:63]
          v_cmp_lt_u32 vcc, v21, v20
          s_nop 0
          s_and_b64 exec, exec, vcc""")
        place(28,36,44,57,58,59,"GG",False)
        a(f"""s_mov_b64 exec, s[62:63]
          v_add_u32 v21, 4096, v21
          s_branch K2_GL
          K2_GE:
          s_mov_b64 exec, s[62:63]
          s_branch K2_NOSLOWB
          K2_SIMPLE:""")
    for j in range(8):
        a(f"s_mov_b64 exec, s[{30+2*j}:{31+2*j}]")
        if j>=4: a(f"s_cbranch_execz K2_PL_{j}")
        a(f"v_add_u32 v{44+j}, s64, v{44+j}")
        place(28+j,36+j,44+j,57,58,59,str(j))
    a(f"""s_mov_b64 exec, -1
      s_cmp_eq_u64 s[46:47], 0
      s_cbranch_scc1 K2_NOSLOWB""")
    for k in range(4):
        a(f"""v_add_u32 v52, 64, v4
          v_add_u32 v53, 256, v{20+k}
          s_mov_b32 s13, {32*k*PE*4}
          K2_SB{k}:
          v_cmp_lt_u32 vcc, v52, v{24+k}
          s_and_saveexec_b64 s[62:63], vcc
          s_cbranch_execz K2_SB{k}_E
          buffer_load_dword v28, v53, s[20:23], s13 offen
          s_waitcnt vmcnt(0)
          v_lshrrev_b32 v54, 14, v28
          v_and_b32 v54, 0xffc, v54
          ds_add_rtn_u32 v44, v54, v18 offset:{L_CUR2}
          ds_read_b32 v45, v54
          ds_read_b32 v36, v54 offset:{L_INFO}
          s_waitcnt lgkmcnt(0)
          v_add3_u32 v44, v44, v45, s64""")
        place(28,36,44,57,58,59,f"S{k}")
        a(f"""s_mov_b64 exec, s[62:63]
          v_add_u32 v52, 32, v52
          v_add_u32 v53, 128, v53
          s_branch K2_SB{k}
          K2_SB{k}_E:
          s_mov_b64 exec, s[62:63]""")
    a("K2_NOSLOWB:"); SS()
    a(f"""s_waitcnt lgkmcnt(0)
      s_barrier"""); SS()
    if st.on:
        a("s_waitcnt lgkmcnt(0)")
        for i in range(st.n): a(f"s_mov_b32 s{72+2*i}, s{76+2*i}")
        st.dump(0,0,0); st.dump(0,9,16); a("s_mov_b64 exec, -1")
    a(f"""
      s_cmp_ge_u32 s3, 12
      s_cbranch_scc1 K2_END
      ds_read_b128 v[8:11], v7 offset:{L_STG}
      ds_read_b128 v[12:15], v7 offset:{L_STG+192}
      v_lshlrev_b32 v16, 4, v2""")
    a.srd(52,8,9,112*BLOBSZ,OFF_BLOB)
    a(f"""s_cmp_ge_u32 s3, 6
      s_cselect_b32 s48, 6, 0
      s_cselect_b32 s49, {BLOBSZ}, 0
      s_sub_u32 s48, s3, s48
      s_mul_i32 s51, s10, {2*BLOBSZ}
      s_add_u32 s51, s51, s49
      s_lshl_b32 s49, s48, 10
      s_add_u32 s51, s51, s49
      s_lshl_b32 s62, s70, 10
      s_add_u32 s62, s62, s51
      s_waitcnt lgkmcnt(0)
      s_cmp_ge_u32 s48, s69
      s_cbranch_scc1 K2_NOMAIN
      buffer_store_dwordx4 v[8:11], v16, s[52:55], s62 offen
      K2_NOMAIN:
      s_cmp_lg_u32 s11, 0
      s_cbranch_scc1 K2_END
      s_cmp_ge_u32 s48, {UNITS[0]}
      s_cbranch_scc1 K2_END
      buffer_store_dwordx4 v[12:15], v16, s[52:55], s51 offen
      K2_END:
      s_endpgm""")
    a(f"""K2_WARM:
      s_and_b32 s10, s2, 7
      s_sub_u32 s11, s2, {NBIN+33}
      s_lshr_b32 s11, s11, 3
      s_lshl_b32 s11, s11, 4
      s_add_u32 s11, s11, s3
      s_lshl_b32 s11, s11, 10
      s_mul_i32 s10, s10, {GSTR}
      v_lshlrev_b32 v7, 4, v2
      s_waitcnt lgkmcnt(0)
      s_add_u32 s12, s8, s10
      s_addc_u32 s13, s9, 0
      s_mov_b32 s14, {GSTR}
      s_mov_b32 s15, 0x20000
      s_add_u32 s16, s11, {96*1024}
      s_add_u32 s17, s11, {192*1024}""")
    for j in range(4):
        for k,so in enumerate((11,16,17)):
            a(f"buffer_load_dwordx4 v[{8+4*k}:{11+4*k}], v7, s[12:15], s{so} offen")
            if k<int(os.environ.get("WSER",2)): a("s_waitcnt vmcnt(0)")
        if j<3: a(f"s_add_u32 s12, s12, {8*GSTR}\ns_addc_u32 s13, s13, 0")
    a("s_endpgm")
    import k1
    k1.weights_stage2(a,NBIN)
    return a.text(), desc(name,64,102 if STAMP else 80)
```

```python
from common import *
LDS_SCR=LDS_CNT+128
K3_LDS=LDS_SCR+4096
NHOP=7
CAPE=eval(os.environ.get('CAPE','CAPS'))
DPT=int(os.environ.get("DPT",2))
V_T0=0; V_T1=1
V_DP=2
V_IDX=4
V_SC=84
V_D=88
V_ACC=92
V_A=108
V_PK=112
V_L16=114
V_B=116
NV3=V_B+4*(DPT+1)
assert NV3<=128
S_TAB=12
S_OUT=16
S_BLOB=28
S_OVF=24
S_FLAG=28
S_HDR=32
S_HOP=20; S_B0=21; S_B1=22; S_OB=23; S_T=64
SCD=os.environ.get('SCD',' sc1')
SCL=os.environ.get('SCL',' sc1')
SCF='' if 'pf' in os.environ.get('PLAIN','') else ' sc1'
PLD=os.environ.get('PLD','sc1')
SPIN=2000000
SLP=int(os.environ.get('SLP',2))
C_DA,C_DB,C_DC,C_L,C_PC,C_PB,G_S0,G_S1,G_S2,C_0,C_1,C_4,C_P,C_E2,C_MD=0,4,8,12,16,20,24,28,32,36,40,44,48,80,112
NM_=3
S_PEND=7
S_PC=11

def gen_k3(name,nhop=NHOP):
    global S_PEND
    S_PEND=7
    a=Asm(); a.l.append(head(name))
    X=os.environ.get("K3X","")
    STH=int(os.environ.get("STH",5))
    if "k3" in STAMP: a("s_memtime s[98:99]")
    a(f"""s_cmp_ge_u32 s2, 256
      s_cbranch_scc1 K3_END
      s_load_dwordx2 s[8:9], s[0:1], 88
      v_lshrrev_b32 v1, 6, v0
      v_and_b32 v2, 63, v0
      s_and_b32 s4, s2, 7
      v_readfirstlane_b32 s3, v1
      s_lshr_b32 s5, s2, 6
      s_lshl_b32 s5, s5, 3
      s_add_u32 s4, s4, s5
      s_bfe_u32 s5, s2, 0x30003
      v_lshlrev_b32 v{V_L16}, 4, v2
      s_mul_i32 s6, s4, {GSTR}
      s_mul_i32 s7, s5, 25088
      s_mov_b32 s{S_B0}, 0
      s_mov_b32 s{S_B1}, {TB_}
      s_mov_b32 s{S_OB}, {LDS_OUT}
      s_mov_b32 s{S_HOP}, 0
      s_waitcnt lgkmcnt(0)
      {"s_memtime s[94:95]" if "k3" in STAMP else ""}
      s_add_u32 s{S_TAB}, s8, s6
      s_addc_u32 s{S_TAB+1}, s9, 0
      s_mov_b32 s{S_TAB+2}, {GSTR}
      s_mov_b32 s{S_TAB+3}, 0x20000""")
    def dma(off=0): a(f"buffer_load_dwordx4 v{V_L16}, s[{S_TAB}:{S_TAB+3}], s{S_T} offen"+(f" offset:{off}" if off else "")+SCL+" lds")
    def seg_fill(rreg,seg,base,i0,n):
        a(f"""s_cmp_ge_u32 s{rreg}, s5
          s_addc_u32 s{S_T}, s{rreg}, 0
          s_mul_i32 s{S_T}, s{S_T}, 25088
          s_add_u32 s{S_T}, s{S_T}, {SEG[seg]*8+i0*1024}
          s_mul_i32 s{S_T+1}, s{rreg}, {TST*8}
          s_add_u32 s{S_T+1}, s{S_T+1}, s{base}""")
        if i0: a(f"s_add_u32 s{S_T+1}, s{S_T+1}, {i0*1024}")
        for i in range(n):
            if i%4==0:
                if i: a(f"s_add_u32 s{S_T}, s{S_T}, 4096\ns_add_u32 s{S_T+1}, s{S_T+1}, 4096")
                a(f"s_mov_b32 m0, s{S_T+1}\ns_nop 0")
            dma(1024*(i%4))
    a(f"""s_lshl_b32 s{S_T+1}, s3, 10
      s_add_u32 s{S_T}, s7, s{S_T+1}
      s_add_u32 s{S_T+1}, s{S_T+1}, {LDS_OUT}
      s_mov_b32 m0, s{S_T+1}
      s_nop 0"""); dma()
    a(f"""s_cmp_ge_u32 s3, 9
      s_cbranch_scc1 K3_I1
      s_add_u32 s{S_T}, s{S_T}, 16384
      s_add_u32 m0, s{S_T+1}, 16384
      s_cmp_lg_u32 s3, 8
      s_cbranch_scc1 K3_I0
      s_mov_b32 exec_hi, 0
      K3_I0:"""); dma()
    a(f"""s_mov_b64 exec, -1
      K3_I1:
""")
    a(f"""K3_I3:
      s_add_u32 s{S_OUT}, s{S_TAB}, s7
      s_addc_u32 s{S_OUT+1}, s{S_TAB+1}, 0
      s_add_u32 s{S_OUT}, s{S_OUT}, {TSTR}
      s_addc_u32 s{S_OUT+1}, s{S_OUT+1}, 0
      s_mov_b32 s{S_OUT+2}, 25088
      s_mov_b32 s{S_OUT+3}, 0x20000
      s_cmp_ge_u32 s3, 14
      s_cbranch_scc1 K3_HELPER""")
    def flag_srd(gather=False):
        a(f"""s_and_b32 s10, s2, 7
          s_lshr_b32 s{S_T}, s2, 6
          s_lshl_b32 s{S_T}, s{S_T}, 3
          s_add_u32 s10, s10, s{S_T}
          s_lshl_b32 s10, s10, 11
          s_add_u32 s{S_FLAG}, s8, s10
          s_addc_u32 s{S_FLAG+1}, s9, 0
          s_add_u32 s{S_FLAG}, s{S_FLAG}, {OFF_FLAG:#x}
          s_addc_u32 s{S_FLAG+1}, s{S_FLAG+1}, 0
          s_mov_b32 s{S_FLAG+2}, 2048
          s_mov_b32 s{S_FLAG+3}, 0x20000""")
        if not gather: a("s_lshl_b32 s7, s5, 7"); return
        a(f"""s_lshr_b32 s10, s4, 1
          s_lshl_b32 s6, s10, 2
          s_cmp_ge_u32 s10, {NE}
          s_cselect_b32 s{S_T}, {1024-4*NE}, 0
          s_cmp_ge_u32 s10, {NE+NM_}
          s_cselect_b32 s{S_T}, {(32-4*(NE+NM_))&0xffffffff}, s{S_T}
          s_add_u32 s6, s6, s{S_T}
          s_lshl_b32 s10, s5, 7
          s_add_u32 s6, s6, s10""")
    def pubflag(hadd):
        a(f"""s_add_u32 s10, s{S_HOP}, {hadd}
          v_mov_b32 v{V_T1}, s10
          s_mov_b64 exec, 1
          s_waitcnt vmcnt(0)
          buffer_store_dword v{V_T1}, off, s[{S_FLAG}:{S_FLAG+3}], s6 sc1""")
    def arrive_flag(c,mult,off,fadd):
        l=a.label("AF")
        a(f"""v_mov_b32 v{V_T0}, {LDS_CNT}
          v_mov_b32 v{V_T1}, 1
          s_add_u32 s{S_T+2}, s{S_HOP}, {fadd}
          s_mul_i32 s{S_T+3}, s{S_HOP}, {mult}
          s_mov_b64 exec, 1
          ds_add_rtn_u32 v{V_T1}, v{V_T0}, v{V_T1} offset:{c}
          s_add_u32 s{S_T+3}, s{S_T+3}, {mult-1}
          s_waitcnt lgkmcnt(0)
          v_cmp_eq_u32 vcc, s{S_T+3}, v{V_T1}
          v_mov_b32 v{V_T1}, s{S_T+2}
          s_cbranch_vccz {l}
          buffer_store_dword v{V_T1}, off, s[{S_FLAG}:{S_FLAG+3}], s7 offset:{off}{SCF}
          {l}:
          s_mov_b64 exec, -1""")
    def poll(off,vi,vv,vr,hopadd):
        l=a.label("PO")
        if os.environ.get("SPOLL","1")=="1":
            nd={0:NE,1024:NM_,32:7-NE-NM_}[off]; w=2 if nd<=2 else 4
            a(f"s_add_u32 s{S_T+1}, s{S_HOP}, {hopadd}\ns_mov_b32 s{S_T}, {SPIN}\n{l}:")
            for q_ in range(8): a(f"s_load_dwordx{w} s[{32+w*q_}:{32+w*q_+w-1}], s[{S_FLAG}:{S_FLAG+1}], {off+128*q_} glc")
            a(f"s_sub_u32 s{S_T}, s{S_T}, 1\ns_cmp_eq_u32 s{S_T}, 0\ns_waitcnt lgkmcnt(0)\ns_cbranch_scc1 {l}_X")
            regs=[32+w*q_+d for q_ in range(8) for d in range(nd)]
            for r in regs[1:]: a(f"s_min_u32 s32, s32, s{r}")
            a(f"s_cmp_lt_u32 s32, s{S_T+1}\ns_cbranch_scc1 {l}\n{l}_X:")
            return
        ld=lambda r: a(f"buffer_load_dword v{r}, v{vi}, s[{S_FLAG}:{S_FLAG+3}], 0 offen offset:{off} {PLD}")
        a(f"""s_add_u32 s{S_T}, s{S_HOP}, {hopadd}
          v_mov_b32 v{vv}, s{S_T}
          s_mov_b32 s{S_T}, {SPIN}""")
        if os.environ.get("P1","1")=="1":
            a(f"{l}:"); ld(vr)
            a(f"""s_waitcnt vmcnt(0)
              v_cmp_gt_u32 vcc, v{vv}, v{vr}
              s_sub_u32 s{S_T}, s{S_T}, 1
              s_cbranch_vccz {l}_X
              s_cmp_gt_i32 s{S_T}, 0
              s_cbranch_scc1 {l}
              {l}_X:""")
            return
        ld(vr)
        a(f"s_sleep {SLP}\n{l}:")
        for k in range(2):
            ld(vr+1-k)
            a(f"""s_waitcnt vmcnt(1)
              v_cmp_gt_u32 vcc, v{vv}, v{vr+k}
              s_sub_u32 s{S_T}, s{S_T}, 1
              s_cbranch_vccz {l}_X""")
        a(f"""s_cmp_gt_i32 s{S_T}, 0
          s_cbranch_scc1 {l}
          {l}_X:""")
    def arrive(c):
        a(f"""v_mov_b32 v{V_T0}, {LDS_CNT}
          v_mov_b32 v{V_T1}, 1
          s_mov_b64 exec, 1
          ds_add_u32 v{V_T0}, v{V_T1} offset:{c}
          s_mov_b64 exec, -1""")
    def spin(c,mult,hadd=1):
        l=a.label("SP")
        a(f"""v_mov_b32 v{V_T0}, {LDS_CNT}
          s_add_u32 s{S_T+2}, s{S_HOP}, {hadd}
          s_mul_i32 s{S_T+2}, s{S_T+2}, {mult}
          {l}:
          ds_read_b32 v{V_T1}, v{V_T0} offset:{c}
          s_waitcnt lgkmcnt(0)
          v_readfirstlane_b32 s{S_T+3}, v{V_T1}
          s_cmp_ge_u32 s{S_T+3}, s{S_T+2}
          s_cbranch_scc1 {l}_E
          s_sleep 1
          s_branch {l}
          {l}_E:""")
    def rewarm(adv):
        if os.environ.get("RW","1")!="1": return
        a(f"""s_lshr_b32 s10, s4, 1
          s_mul_i32 s10, s10, 3584
          s_mov_b32 m0, {LDS_SCR}""")
        if adv: a(f"s_sub_u32 s{S_OUT}, s{S_OUT}, {TSTR}\ns_subb_u32 s{S_OUT+1}, s{S_OUT+1}, 0")
        else: a("s_nop 0")
        for k in range(4):
            if k==3: a("s_mov_b32 exec_hi, 0")
            a(f"buffer_load_dwordx4 v{V_L16}, s[{S_OUT}:{S_OUT+3}], s10 offen offset:{1024*k} sc1 lds")
        a("s_mov_b64 exec, -1")
        if adv: a(f"s_add_u32 s{S_OUT}, s{S_OUT}, {TSTR}\ns_addc_u32 s{S_OUT+1}, s{S_OUT+1}, 0")
    def tickets():
        l=a.label("TK")
        a(f"""s_lshl_b32 s10, s{S_HOP}, 2
          s_add_u32 s10, s10, {LDS_CNT+C_TK}
          v_mov_b32 v{V_T0}, s10
          {l}:
          v_mov_b32 v{V_T1}, 1
          s_mov_b64 exec, 1
          ds_add_rtn_u32 v{V_T1}, v{V_T0}, v{V_T1}
          s_mov_b64 exec, -1
          s_waitcnt lgkmcnt(0)
          v_readfirstlane_b32 s10, v{V_T1}
          s_cmp_ge_u32 s10, 7
          s_cbranch_scc1 {l}_E""")
        seg_fill(10,0,S_B1,0,NCH[0])
        a(f"s_add_u32 s{S_PEND}, s{S_PEND}, 1\ns_branch {l}\n{l}_E:")
    def landed():
        l=a.label("LD")
        a(f"""s_cmp_eq_u32 s{S_PEND}, 0
          s_cbranch_scc1 {l}
          v_mov_b32 v{V_T0}, {LDS_CNT}
          v_mov_b32 v{V_T1}, s{S_PEND}
          s_mov_b32 s{S_PEND}, 0
          s_waitcnt vmcnt(0)
          s_mov_b64 exec, 1
          ds_add_u32 v{V_T0}, v{V_T1} offset:{G_S0}
          s_mov_b64 exec, -1
          {l}:""")
    def handover(call,gate,k):
        l=a.label("HO")
        a(f"""v_mov_b32 v{V_T0}, s{S_PC}
          v_writelane_b32 v{V_T0}, s{S_T+4+k}, 1
          v_mov_b32 v{V_T1}, 1
          s_mul_i32 s{S_T+2}, s{S_HOP}, 4
          s_add_u32 s{S_T+2}, s{S_T+2}, {2*(k+1)}
          s_add_u32 s{S_T+3}, s{S_HOP}, 1
          s_lshl_b32 s{S_T+3}, s{S_T+3}, 1
          s_mov_b64 exec, 3
          s_waitcnt lgkmcnt(0)
          ds_add_u32 v{V_T0}, v{V_T1}
          v_mov_b32 v{V_PK}, s{S_T+2}
          v_writelane_b32 v{V_PK}, s{S_T+3}, 1
          v_writelane_b32 v{V_T0}, s{S_T+6+k}, 1
          {l}:
          ds_read_b32 v{V_T1}, v{V_T0}
          s_waitcnt lgkmcnt(0)
          v_cmp_gt_u32 vcc, v{V_PK}, v{V_T1}
          s_nop 0
          s_cbranch_vccz {l}_E
          s_sleep 1
          s_branch {l}
          {l}_E:
          s_mov_b64 exec, -1""")
    m={0:0,1:8,2:3,3:9,4:2,5:10,6:5,7:11,8:4,9:12,10:7,11:13,12:6,13:1}
    lo=sum(m[w]<<(4*w) for w in range(8)); hi=sum(m[w]<<(4*(w-8)) for w in range(8,14))
    a(f"""s_mov_b32 s10, {lo:#x}
      s_mov_b32 s11, {hi:#x}
      s_lshl_b32 s6, s3, 2
      s_lshr_b64 s[10:11], s[10:11], s6
      s_and_b32 s4, s10, 15
      s_mul_i32 s6, s5, 14
      s_add_u32 s6, s6, s4
      s_lshl_b32 s7, s6, 7
      s_add_u32 s10, s8, s7
      s_addc_u32 s11, s9, 0
      s_add_u32 s10, s10, {OFF_HDR:#x}
      s_addc_u32 s11, s11, 0
      s_load_dwordx16 s[{S_HDR}:{S_HDR+15}], s[10:11], 0
      s_load_dwordx16 s[{S_HDR+16}:{S_HDR+31}], s[10:11], 64
      s_mul_i32 s7, s6, {BLOBSZ}
      s_add_u32 s{S_BLOB}, s8, s7
      s_addc_u32 s{S_BLOB+1}, s9, 0
      s_add_u32 s{S_BLOB}, s{S_BLOB}, {OFF_BLOB:#x}
      s_addc_u32 s{S_BLOB+1}, s{S_BLOB+1}, 0
      s_mov_b32 s{S_BLOB+2}, {BLOBSZ}
      s_mov_b32 s{S_BLOB+3}, 0x20000""")
    def load_blob(u0,u1):
        for u in range(u0,u1):
            r=V_IDX+4*u
            if u%4==0 or u==u0: a(f"s_mov_b32 s{S_T}, {(u//4)*4096}")
            a(f"buffer_load_dwordx4 v[{r}:{r+3}], v{V_L16}, s[{S_BLOB}:{S_BLOB+3}], s{S_T} offen offset:{(u%4)*1024}")
    load_blob(0,UOFF[1])
    a(f"""s_lshl_b32 s7, s6, 9
      s_add_u32 s{S_OVF}, s8, s7
      s_addc_u32 s{S_OVF+1}, s9, 0
      s_add_u32 s{S_OVF}, s{S_OVF}, {OFF_DST:#x}
      s_addc_u32 s{S_OVF+1}, s{S_OVF+1}, 0
      s_mov_b32 s{S_OVF+2}, 512
      s_mov_b32 s{S_OVF+3}, 0x20000
      v_lshlrev_b32 v0, 3, v2
      v_and_b32 v{V_PK}, 15, v2
      v_lshrrev_b32 v1, 4, v2
      v_lshlrev_b32 v{V_PK+1}, 2, v2
      buffer_load_dwordx2 v[{V_DP}:{V_DP+1}], v0, s[{S_OVF}:{S_OVF+3}], 0 offen""")
    a.srd(S_OVF,8,9,OVF_SIZE,OFF_OVF)
    a(f"""v_lshlrev_b32 v1, 2, v1
      v_sub_u32 v{V_PK}, v{V_PK}, v1
      v_mov_b32 v0, 0x3f80
      v_mov_b32 v1, 0x3f800000
      v_cmp_eq_u32 s[64:65], 0, v{V_PK}
      v_cmp_eq_u32 s[66:67], 1, v{V_PK}
      v_cmp_eq_u32 s[10:11], 2, v{V_PK}
      v_cmp_eq_u32 vcc, 3, v{V_PK}
      v_cndmask_b32 v{V_A}, 0, v0, s[64:65]
      v_cndmask_b32 v{V_A+1}, 0, v0, s[10:11]
      v_cndmask_b32 v{V_A}, v{V_A}, v1, s[66:67]
      v_cndmask_b32 v{V_A+1}, v{V_A+1}, v1, vcc
      v_mov_b32 v{V_A+2}, v{V_A}
      v_mov_b32 v{V_A+3}, v{V_A+1}
      {"s_waitcnt lgkmcnt(0)"+chr(10)+"s_memtime s[92:93]"+chr(10)+"s_waitcnt vmcnt(6)"+chr(10)+"s_memtime s[90:91]"+chr(10)+"s_waitcnt vmcnt(0)"+chr(10)+"s_memtime s[88:89]" if "k3" in STAMP and STH==0 else ""}
      s_waitcnt vmcnt(6) lgkmcnt(0)
      s_barrier
      s_waitcnt vmcnt(0)""")
    if "k3" in STAMP: a("s_memtime s[96:97]")
    if "k3" in STAMP and STH==0:
        a("s_waitcnt lgkmcnt(0)\ns_mov_b32 s72, s98\ns_mov_b32 s74, s94\ns_mov_b32 s76, s92\ns_mov_b32 s78, s90\ns_mov_b32 s80, s88\ns_mov_b32 s82, s96")
        x=Stamper(a,True); x.n=6; x.dump(0,0,0); x.dump(0,12,16); a("s_mov_b64 exec, -1")
    load_blob(UOFF[1],UOFF[2])
    def late_loads(k):
        l=a.label("LL")
        a(f"s_cmp_lg_u32 s{S_HOP}, 0\ns_cbranch_scc1 {l}\ns_waitcnt vmcnt(0)")
        load_blob(UOFF[k],UOFF[k]+UNITS[k])
        if k==3:
            a(f"""s_lshl_b32 s10, s6, 10
              s_add_u32 s{S_BLOB}, s8, s10
              s_addc_u32 s{S_BLOB+1}, s9, 0
              s_add_u32 s{S_BLOB}, s{S_BLOB}, {OFF_SCALE:#x}
              s_addc_u32 s{S_BLOB+1}, s{S_BLOB+1}, 0
              s_mov_b32 s{S_BLOB+2}, 1024
              v_lshrrev_b32 v{V_T0}, 2, v{V_L16}""")
            for s_ in range(4): a(f"buffer_load_dword v{V_SC+s_}, v{V_T0}, s[{S_BLOB}:{S_BLOB+3}], 0 offen offset:{256*s_}")
            flag_srd(True)
        a(f"{l}:")
    a(f"""s_lshr_b32 s{S_PC}, s4, 1
      s_lshl_b32 s{S_PC}, s{S_PC}, 2
      s_add_u32 s{S_PC}, s{S_PC}, {LDS_CNT+C_P}
      s_mov_b32 s{S_PEND}, 0
      s_mov_b32 s{S_T+4}, {LDS_CNT+C_0}
      s_mov_b32 s{S_T+5}, {LDS_CNT+C_1}
      s_mov_b32 s{S_T+6}, {LDS_CNT+G_S1}
      s_mov_b32 s{S_T+7}, {LDS_CNT+G_S2}
      s_add_u32 s{S_TAB}, s{S_TAB}, {TSTR}
      s_addc_u32 s{S_TAB+1}, s{S_TAB+1}, 0""")
    NB=DPT+1
    def mf(acc,b,first):
        c="0" if first else f"v[{acc}:{acc+3}]"
        a(f"v_mfma_f32_16x16x32_bf16 v[{acc}:{acc+3}], v[{V_A}:{V_A+3}], v[{b}:{b+3}], {c}")
    def ad(d,ireg,w,base): a(f"v_mad_u32_u16 v{d}, v{ireg}, 8, s{base}"+(" op_sel:[1,0,0,0]" if w else ""))
    def issue(ireg,b,base,lo=None):
        if lo is None: ad(b,ireg,0,base)
        else: ad(lo,ireg,0,S_OB)
        ad(b+2,ireg,1,base)
        if "lin" in X: a(f"ds_read_b64 v[{b}:{b+1}], v{V_L16}\nds_read_b64 v[{b+2}:{b+3}], v{V_L16}"); return
        a(f"ds_read_b64 v[{b}:{b+1}], v{b if lo is None else lo}\nds_read_b64 v[{b+2}:{b+3}], v{b+2}")
    def accq(p,slot): return V_ACC+4*(slot if p<2 else slot&1)
    def flush(p,slot):
        acc=accq(p,slot); d=V_D+slot
        if p==1: ad(d,V_DP+(slot>>1),slot&1,S_OB)
        if p==3:
            for i in range(4): a(f"v_mul_f32 v{acc+i}, v{V_SC+slot}, v{acc+i}")
        a(f"""v_cvt_pk_bf16_f32 v{V_PK}, v{acc}, v{acc+1}
          v_cvt_pk_bf16_f32 v{V_PK+1}, v{acc+2}, v{acc+3}
          ds_write_b64 v{d}, v[{V_PK}:{V_PK+1}]""")
    PR=int(os.environ.get("PRIO","4"))
    LLO=int(os.environ.get("LLO",1)); LSW=float(os.environ.get("LSW",0.5)); LHI=int(os.environ.get("LHI",4)); LE=int(os.environ.get("LE",4))
    EP0=int(os.environ.get('EP0',0)); MIDE=int(os.environ.get('MIDE',0)); LL3=int(os.environ.get('LL3',0)); LS3=float(os.environ.get('LS3',0.6))
    def phase(h,p,side,early=None):
        H=S_HDR+4*p; I=V_IDX+4*UOFF[p]; base=[S_OB,S_B0,S_B1,S_B0][p]
        RB=[V_B+4*k for k in range(NB)]+([V_ACC+8,V_ACC+12] if p>=2 else [])
        seq=[]
        for slot,(r,pb,n) in enumerate(LAY[p][h]):
            cap=(CAPE if early else CAPS)[p][r]; assert cap<=n
            for k in range(cap): seq.append((I+pb+k,slot,k==0,k==cap-1))
        n=len(seq)
        if p==1 and EP0: L=lambda i:DPT; prios={0:"e1",n//2:"e0"}
        elif p<2: L=lambda i:DPT; prios={0:2,n//3+1:1,2*(n//3+1):0}
        elif early: L=lambda i:LE; prios={0:2}
        elif p==3 and MIDE: L=lambda i:(LL3 if i<LS3*n else LHI); prios={0:0}
        else: L=lambda i:(LLO if i<LSW*n else LHI); prios={0:1,n//2:0} if p==2 else {0:"m"}
        q=[]; ip=0; pend=None; mark=0
        for i,(ireg,slot,first,last) in enumerate(seq):
            if PR and i in prios:
                if str(prios[i])[0]=="e":
                    l=a.label("PM"); a(f"s_setprio 2\ns_cmp_lt_u32 s4, {2*NE}\ns_cbranch_scc1 {l}\ns_setprio {prios[i][1]}\n{l}:")
                elif prios[i]=="m":
                    l=a.label("PM"); a(f"s_setprio 1\ns_cmp_lt_u32 s4, {2*(NE+NM_)}\ns_cbranch_scc1 {l}\ns_setprio 0\n{l}:")
                else: a(f"s_setprio {prios[i]}")
            while ip<min(n,i+1+L(i)):
                r_,s_,f_,_=seq[ip]
                issue(r_,RB[ip%len(RB)],base,V_D+s_ if (f_ and p>1) else None); q.extend([ip,ip]); ip+=1
            if i in q:
                k=max(x for x,t in enumerate(q) if t==i); a(f"s_waitcnt lgkmcnt({len(q)-1-k})"); del q[:k+1]
            mf(accq(p,slot),RB[i%len(RB)],first and p!=1)
            if pend is not None:
                nb=len([x for x in a.l[mark:] if not x.endswith(":")])
                if p==1 and pend==0: spin(C_L,14); q.clear()
                elif nb<8: a(f"s_nop {8-nb-1}")
                flush(p,pend); q.append("w"); pend=None
            if last:
                r,pb,nr=LAY[p][h][slot]; cap=(CAPE if early else CAPS)[p][r]; tag=f"{h}{p}{slot}{'e' if early else ''}"
                mark=len(a.l)
                a(f"s_cmp_gt_u32 s{H+slot}, {cap}\ns_cbranch_scc1 K3_X{tag}\nK3_R{tag}:")
                side.append((tag,H+slot,I+pb,cap,nr,accq(p,slot),RB[i%len(RB)],base))
                if p>0: pend=slot
        if p>0: a("s_nop 5"); flush(p,pend)
    def sidepath(tag,np_,I,cap,n,acc,b,base):
        a(f"K3_X{tag}:")
        for k in range(cap,n):
            issue(I+k,b,base); a("s_waitcnt lgkmcnt(0)"); mf(acc,b,False)
            a(f"s_cmp_le_u32 s{np_}, {k+1}\ns_cbranch_scc1 K3_Y{tag}")
        a(f"""s_mov_b32 s{S_T}, s{np_+16}
          s_sub_u32 s{S_T+1}, s{np_}, {n}
          v_lshrrev_b32 v{V_T0}, 2, v{V_L16}
          K3_O{tag}:
          buffer_load_dword v{V_T1}, v{V_T0}, s[{S_OVF}:{S_OVF+3}], s{S_T} offen
          s_add_u32 s{S_T}, s{S_T}, 256
          s_waitcnt vmcnt(0)""")
        issue(V_T1,b,base); a("s_waitcnt lgkmcnt(0)"); mf(acc,b,False)
        a(f"""s_sub_u32 s{S_T+1}, s{S_T+1}, 1
          s_cmp_lg_u32 s{S_T+1}, 0
          s_cbranch_scc1 K3_O{tag}
          K3_Y{tag}:
          s_branch K3_R{tag}""")
    def readout(c0reg,two,climit):
        l=a.label("RO")
        a(f"""s_lshl_b32 s{S_T}, s{c0reg}, 10
          v_add_u32 v{V_T0}, s{S_T}, v{V_L16}
          v_add_u32 v{V_T1}, {LDS_OUT}, v{V_T0}
          ds_read_b128 v[{V_B}:{V_B+3}], v{V_T1}
          s_cmp_ge_u32 s{c0reg}, {climit-two}
          s_cbranch_scc1 {l}
          ds_read_b128 v[{V_B+4}:{V_B+7}], v{V_T1} offset:{two*1024}
          s_mov_b32 s{S_T+1}, {two*1024}
          s_waitcnt lgkmcnt(0)
          buffer_store_dwordx4 v[{V_B+4}:{V_B+7}], v{V_T0}, s[{S_OUT}:{S_OUT+3}], s{S_T+1} offen{SCD}
          {l}:
          s_waitcnt lgkmcnt(0)
          buffer_store_dwordx4 v[{V_B}:{V_B+3}], v{V_T0}, s[{S_OUT}:{S_OUT+3}], 0 offen{SCD}""")
    side=[]
    st=Stamper(a,"k3" in STAMP)
    a("K3_GOWN:\ns_bitcmp1_b32 s4, 0\ns_cbranch_scc1 K3_GB")
    for h in range(2):
        if h==1: a("K3_GB:")
        st.n=0
        phase(h,0,side)
        st()
        arrive(C_L)
        a(f"s_cmp_eq_u32 s{S_PEND}, 0\ns_cbranch_scc1 K3_NP{h}\ns_mov_b32 s{S_PEND}, 0"); pubflag(0); a("s_mov_b64 exec, -1"); ('l' in os.environ.get('RWM','')) and rewarm(True); a(f"K3_NP{h}:")
        spin(G_S0,2); late_loads(2); st()
        phase(h,1,side); st(); handover(None,None,0); late_loads(3); st()
        a(f"s_cmp_lt_u32 s4, {2*NE}\ns_cbranch_scc1 K3_EA{h}")
        for e in (0,1):
            if e: a(f"K3_EA{h}:"); st.n=4
            phase(h,2,side,e); st(); handover(None,None,1); a("s_waitcnt vmcnt(0)"); st()
            if e: a(f"K3_EB{h}:")
            elif MIDE: a(f"s_cmp_lt_u32 s4, {2*(NE+NM_)}\ns_cbranch_scc1 K3_EB{h}")
            phase(h,3,side,e)
            a(f"s_waitcnt lgkmcnt(0)"); st()
            if not (h==1 and e==1): a("s_branch K3_GE")
    a("K3_GE:")
    arrive(C_4)
    a(f"""s_setprio 3
      s_lshr_b32 s10, s4, 1
      s_lshl_b32 s{S_T}, s10, 2
      s_add_u32 s{S_T}, s{S_T}, {LDS_CNT+C_E2}
      v_mov_b32 v{V_T0}, s{S_T}
      s_mov_b64 exec, 1
      ds_add_rtn_u32 v{V_T1}, v{V_T0}, v{V_T1}
      s_mov_b64 exec, -1
      s_mul_i32 s{S_T}, s10, 3584
      v_add_u32 v{V_B+8}, s{S_T}, v{V_L16}
      v_add_u32 v{V_B+9}, {LDS_OUT}, v{V_B+8}
      s_waitcnt lgkmcnt(0)
      v_readfirstlane_b32 s{S_T+1}, v{V_T1}
      s_bitcmp1_b32 s{S_T+1}, 0
      s_cbranch_scc0 K3_E2""")
    for k in range(4): a(f"ds_read_b128 v[{V_ACC+4*k}:{V_ACC+4*k+3}], v{V_B+9} offset:{1024*k}")
    for k in range(4):
        a(f"s_waitcnt lgkmcnt({3-k})")
        if k==3: a("s_mov_b32 exec_hi, 0")
        a(f"buffer_store_dwordx4 v[{V_ACC+4*k}:{V_ACC+4*k+3}], v{V_B+8}, s[{S_OUT}:{S_OUT+3}], 0 offen offset:{1024*k}{SCD}")
    a(f"""s_mov_b64 exec, -1
      s_mov_b32 s{S_PEND}, 1
      s_cmp_ge_u32 s4, {2*(NE+NM_)}
      s_cbranch_scc1 K3_E2
      s_mov_b32 s{S_PEND}, 0""")
    pubflag(1)
    a("s_mov_b64 exec, -1")
    if 'e' in os.environ.get('RWM',''): rewarm(False)
    a("K3_E2:\ns_setprio 0"); st()
    a(f"s_cmp_eq_u32 s{S_HOP}, {nhop-1}\ns_cbranch_scc1 K3_END")
    spin(C_4,14); st()
    a(f"""s_add_u32 s{S_HOP}, s{S_HOP}, 1
      s_add_u32 s{S_OUT}, s{S_OUT}, {TSTR}
      s_addc_u32 s{S_OUT+1}, s{S_OUT+1}, 0
      s_add_u32 s{S_TAB}, s{S_TAB}, {TSTR}
      s_addc_u32 s{S_TAB+1}, s{S_TAB+1}, 0
      s_mov_b32 s10, s{S_B0}
      s_mov_b32 s{S_B0}, s{S_B1}
      s_mov_b32 s{S_B1}, s10"""); st()
    if st.on:
        a(f"s_cmp_lg_u32 s{S_HOP}, {STH}\ns_cbranch_scc1 K3_GOWN\ns_waitcnt lgkmcnt(0)")
        a("s_mov_b32 s92, s98\ns_mov_b32 s94, s96"); st.n=12
        st.dump(77,0,0); st.dump(77,int(os.environ.get('W1',12)),16); a("s_mov_b64 exec, -1")
    a("s_branch K3_GOWN")
    for x in side: sidepath(*x)
    a("K3_HELPER:\ns_setprio 3"); flag_srd()
    a(f"""v_mov_b32 v9, 0
      v_lshlrev_b32 v10, 2, v2
      v_add_u32 v11, {ZT*8}, v10
      ds_write_b32 v11, v9
      v_add_u32 v11, {TB_+ZT*8}, v10
      ds_write_b32 v11, v9
      v_add_u32 v11, {LDS_OUT+ZO*8}, v10
      ds_write_b32 v11, v9
      v_and_b32 v11, 0x7c, v10
      v_add_u32 v11, {LDS_CNT}, v11
      ds_write_b32 v11, v9
      s_sub_u32 s4, s3, 14
      s_lshl_b32 s4, s4, 2
      s_cmp_eq_u32 s3, 14
      s_cselect_b32 s6, 15, 7""")
    for k in range(4):
        a(f"s_add_u32 s10, s4, {k}\ns_cmp_ge_u32 s10, s5\ns_addc_u32 s10, s10, 0\ns_and_b32 s10, s10, 7\ns_lshl_b32 s{56+k}, s10, 7")
    a("s_waitcnt vmcnt(0) lgkmcnt(0)\ns_barrier\ns_branch K3_HF0")
    def pissue(off,nd):
        w=2 if nd<=2 else 4
        for k in range(4): a(f"s_load_dwordx{w} s[{32+4*k}:{32+4*k+w-1}], s[60:61], s{56+k} glc")
    def pstart(off,nd):
        a(f"s_add_u32 s60, s{S_FLAG}, {off}\ns_addc_u32 s61, s{S_FLAG+1}, 0"); pissue(off,nd)
    def pfill(seg,base,off,nd,dofill=True):
        l=a.label("PL")
        a(f"""s_mov_b32 s62, s{S_HOP}
          s_mov_b32 s7, s6
          s_mov_b32 s63, {SPIN}
          s_branch {l}_W
          {l}:""")
        pissue(off,nd)
        a(f"{l}_W:\ns_sub_u32 s63, s63, 1\ns_cmp_eq_u32 s63, 0\ns_cselect_b32 s62, 0, s62\ns_waitcnt lgkmcnt(0)")
        for k in range(4):
            for d in range(1,nd): a(f"s_min_u32 s{32+4*k}, s{32+4*k}, s{32+4*k+d}")
            a(f"""s_bitcmp0_b32 s7, {k}
              s_cbranch_scc1 {l}_{k}
              s_cmp_lt_u32 s{32+4*k}, s62
              s_cbranch_scc1 {l}_{k}
              s_bitset0_b32 s7, {k}""")
            if dofill: a(f"s_add_u32 s10, s4, {k}"); seg_fill(10,seg,base,0,NCH[seg])
            a(f"{l}_{k}:")
        a(f"s_cmp_lg_u32 s7, 0\ns_cbranch_scc1 {l}")
    st=Stamper(a,"k3" in STAMP)
    NC=7-NE-NM_
    a("K3_HL:"); spin(C_4,14,0); st()
    pfill(1,S_B1,1024,NM_); st(); pstart(32,NC); a("s_waitcnt vmcnt(0)"); st(); arrive(G_S1)
    pfill(2,S_B0,32,NC,False)
    spin(C_0,14); st()
    for k in range(4):
        if k==3: a("s_cmp_eq_u32 s3, 15\ns_cbranch_scc1 K3_H3")
        a(f"s_add_u32 s10, s4, {k}"); seg_fill(10,2,S_B0,0,NCH[2])
    a("K3_H3:"); st(); a("s_waitcnt vmcnt(0)"); st(); arrive(G_S2)
    a(f"s_cmp_eq_u32 s{S_HOP}, {nhop-1}\ns_cbranch_scc1 K3_WARM")
    spin(C_1,14); st()
    a(f"""s_add_u32 s{S_HOP}, s{S_HOP}, 1
      s_mov_b32 s10, s{S_B0}
      s_mov_b32 s{S_B0}, s{S_B1}
      s_mov_b32 s{S_B1}, s10
      s_add_u32 s{S_TAB}, s{S_TAB}, {TSTR}
      s_addc_u32 s{S_TAB+1}, s{S_TAB+1}, 0
      K3_HF0:""")
    pstart(0,NE); pfill(0,S_B0,0,NE); st(); pstart(1024,NM_); a("s_waitcnt vmcnt(0)"); st(); arrive(G_S0)
    if st.on:
        a(f"s_cmp_lg_u32 s{S_HOP}, {STH}\ns_cbranch_scc1 K3_HL\ns_waitcnt lgkmcnt(0)")
        st.dump(77,15,32); st.dump(77,14,48); a(f"s_mov_b64 exec, -1")
    a("s_branch K3_HL")
    a("K3_WARM:")
    if os.environ.get("W4","1")=="1":
        a(f"""s_cmp_ge_u32 s2, 64
          s_cbranch_scc1 K3_END
          s_cmp_eq_u32 s3, 14
          s_cbranch_scc1 K3_END
          s_mov_b32 v0_dummy, 0""".replace("s_mov_b32 v0_dummy, 0",f"v_lshrrev_b32 v0, 4, v{V_L16}"))
        code_prefetch(a,"attn_kernel","CODE_END",5,8,2,40,20)
        a.srd(40,8,9,69*1024,OFF_WF)
        a("s_lshl_b32 s44, s5, 10")
        for i in range(9): a(f"buffer_load_dwordx4 v[24:27], v20, s[40:43], s44 offen\ns_add_u32 s44, s44, 8192")
    a("K3_END:\ns_endpgm")
    return a.text(), desc(name,128,102 if STAMP else 80)
```

```python
from common import *
from sched import *
from k1 import f2u
import math
TOK=69632
CNT=TOK+65536
K4_LDS=CNT+64
NRING=int(os.environ.get("NRING",6))
GP=[0,26]; VX=[52,92]; UP=[132,148]; ACC=[164,172]
EPQ=[180,184]
O2=[188,189]
AL=192
GO=[192,172]
Y,GW,AK,D,DE,T0,T1,T2,T3=196,197,198,199,200,201,202,203,204
vW,vW2=205,206; TB=[207,208]; TR=[209,210]; vBP,vALM,vXS,vVM,vDMA,vXG,vXL,vDI,vOUT,vDG,DN=211,212,213,214,215,216,217,218,219,220,221
X4=222
vBP1=226; vPF=227
WR=228
NV=WR+4*NRING
S_G=12; S_X=16; S_D=20; S_O=24; S_WF=28
S_N0=32
S_MA=44; S_MC=46; S_C128=48; S_EPS=49; S_L2E=50; S_WS=51; S_CNT=52
LOC=os.environ.get('LOCAL','')=='1'
GS4,TS4,NSH=(128,4096,11) if LOC else (GSTR,TSTR,3)
def chunk(t,c): return GP[t]+2+6*c
def Pc(t,i): return GP[t]+6*i
def gE(t,b): return VX[t]+10*(b>>1)+(0 if b%2==0 else 8)
def VP(t,b): return VX[t]+10*(b>>1)+(2 if b%2==0 else 6)
def SEL(t,q): return VX[t]+10*q+4
ID="quad_perm:[0,1,2,3]"

def body(NT,hook=None,hook2=None):
    B=Block(); T=range(NT)
    A0=lambda t:ACC[t]; A1=lambda t:ACC[t]+4
    nfr=[0]; OFM=os.environ.get('OFM','0')=='1'
    def frag(f):
        r=WR+4*(nfr[0]%NRING); nfr[0]+=1
        if f<64: B.add(f"ds_read_b128 v[{r}:{r+3}], v{vW} offset:{f*1024}","ds",R(vW),R(r,4))
        else: B.add(f"ds_read_b128 v[{r}:{r+3}], v{vW2} offset:{(f-64)*1024}","ds",R(vW2),R(r,4))
        return r
    def v(text,wr,rd,kind="valu",dpp=()): B.v(text,[f"v{x}" for x in wr],[f"v{x}" for x in rd],kind,[f"v{x}" for x in dpp])
    def op2(op,d,a,b): v(f"{op} v{d}, v{a}, v{b}",[d],[a,b]+([d] if "fmac" in op else []))
    def ops(op,d,sr,b): v(f"{op} v{d}, s{sr}, v{b}",[d],[b]+([d] if "fmac" in op else []))
    def cvt(d,a,b): v(f"v_cvt_pk_bf16_f32 v{d}, v{a}, v{b}",[d],[a,b])
    def tr(op,d,s): v(f"{op} v{d}, v{s}",[d],[s],"trans")
    def mov(d,s): v(f"v_mov_b32 v{d}, v{s}",[d],[s])
    def swap(n,a,b): v(f"v_permlane{n}_swap_b32 v{a}, v{b}",[a,b],[a,b],"perml")
    def swz16(d,s): B.add(f"ds_swizzle_b32 v{d}, v{s} offset:0x401F","ds",R(s),R(d))
    def bperm(d,a,s,off=0): B.add(f"ds_bpermute_b32 v{d}, v{a}, v{s}"+(f" offset:{off}" if off else ""),"ds",R(a)+R(s),R(d))
    def dpp(op,d,s0,s1,ctl,rm=0xf,bm=0xf):
        part=[d] if (rm,bm)!=(0xf,0xf) else []
        if s1 is None: v(f"{op}_dpp v{d}, v{s0} {ctl} row_mask:{rm:#x} bank_mask:{bm:#x}",[d],[s0]+part,"dpp",[s0])
        else: v(f"{op}_dpp v{d}, v{s0}, v{s1} {ctl} row_mask:{rm:#x} bank_mask:{bm:#x}",[d],[s0,s1]+part,"dpp",[s0])
    def merge(op,d,s0,s1=None):
        dpp(op,d,s0,s1,"row_ror:8",0x3,0xc); dpp(op,d,s0,s1,"row_ror:8",0xc,0x3)
    def cnd(d,a,b,m): B.v(f"v_cndmask_b32 v{d}, v{a}, v{b}, s[{m}:{m+1}]",[f"v{d}"],[f"v{a}",f"v{b}"])
    tok=[]
    for c in range(4):
        for t in T:
            r=chunk(t,c)
            if os.environ.get("RD2","0")=="1": B.add(f"ds_read2st64_b64 v[{r}:{r+3}], v{TB[t]} offset0:{2*c} offset1:{2*c+1}","ds",R(TB[t]),R(r,4))
            else:
                for h in range(2): B.add(f"ds_read_b64 v[{r+2*h}:{r+2*h+1}], v{TB[t]} offset:{c*1024+h*512}","ds",R(TB[t]),R(r+2*h,2))
            tok+=R(r,4)
    PACE=int(os.environ.get("PACE",2))
    trl=[(t,b) for b in range(8) for t in T]
    def trread(dep=()):
        t,b=trl.pop(0); r=gE(t,b); B.add(f"ds_read_b64_tr_b16 v[{r}:{r+1}], v{TR[t]} offset:{b*512}","ds",R(TR[t])+list(dep),R(r,2)); tok.extend(R(r,2))
        if not trl and hook: hook(B,tok)
    if not PACE:
        while trl: trread()
    if os.environ.get('NOBODY'): B.cut=B.cut0=0; return B
    for c in range(4):
        r=frag(64+c)
        for t in T: B.mfma(A0(t),chunk(t,c),chunk(t,c),None if c==0 else A0(t))
        for t in T: B.mfma(A1(t),chunk(t,c),r,None if c==0 else A1(t))
    for t in T:
        x=A0(t); cnd(x,x,x+1,S_MA); cnd(x+2,x+2,x+3,S_MA); cnd(x,x,x+2,S_MC)
        bperm(O2[t],vDG,x)
    for t in T:
        x=A1(t); cvt(EPQ[t],x,x+1); cvt(EPQ[t]+1,x+2,x+3)
        for q in range(1,4): dpp("v_mov_b32",x,x+q,None,ID,0xf,1<<q)
    if NT==2:
        dpp("v_mov_b32",A1(1)+1,A1(1),None,"quad_perm:[0,1,0,1]"); cnd(A1(0),A1(0),A1(1)+1,S_MC)
        merge("v_mov_b32",O2[0],O2[1])
    bperm(Y,vXS,A1(0)); bperm(GW,vXS,A1(0),4)
    s2=O2[0]
    ops("v_mul_f32",T0,S_C128,Y); op2("v_mul_f32",DE,D,D); ops("v_mul_f32",DE,S_EPS,DE)
    v(f"v_fma_f32 v{T1}, -v{T0}, v{T0}, v{DE}",[T1],[T0,DE]); ops("v_fmac_f32",T1,S_C128,s2); op2("v_max_f32",T1,T1,DE)
    tr("v_rsq_f32",T1,T1)
    v(f"v_and_b32 v{T0}, 0x80000000, v{D}",[T0],[D]); op2("v_or_b32",AK,T1,T0)
    for r in range(4): bperm(AL+r,vALM,AK,4*r)
    for b in range(8):
        for c in range(4):
            r=frag(b*4+c)
            for t in T:
                a=ACC[t]+4*(b&1); o=B.mfma(a,r,chunk(t,c),None if c==0 else a)
            if trl and (b*4+c)%PACE==PACE-1:
                o.wr=set(o.wr); tag=f"pace{b}_{c}"; B.ops[-1].tagw=tag; trread([tag])
        for t in T:
            a=ACC[t]+4*(b&1); u=UP[t]+2*b; cvt(u,a,a+1); cvt(u+1,a+2,a+3)
    for c in range(4):
        for t in T: B.mfma(A0(t),chunk(t,c),UP[t]+4*c,None if c==0 else A0(t))
    S=A0(0); W=A1(0); m=T0; m2=T1
    if NT==2:
        for r in range(4): merge("v_mov_b32",S+r,A0(1)+r)
    for r in range(4): op2("v_mul_f32",W+r,AK,AL+r)
    for r in range(4): op2("v_mul_f32",S+r,S+r,W+r)
    v(f"v_max3_f32 v{m}, v{S}, v{S+1}, v{S+2}",[m],[S,S+1,S+2]); op2("v_max_f32",m,m,S+3)
    swz16(m2,m); op2("v_max_f32",m,m,m2)
    for r in range(4): op2("v_sub_f32",S+r,S+r,m)
    for r in range(4): tr("v_exp_f32",S+r,S+r)
    op2("v_add_f32",m,S,S+1); op2("v_add_f32",m2,S+2,S+3); op2("v_add_f32",m,m,m2)
    swz16(m2,m); op2("v_add_f32",m,m,m2); tr("v_rcp_f32",m,m); op2("v_mul_f32",m,m,D)
    for r in range(4): op2("v_mul_f32",W+r,m,AL+r)
    for r in range(4): op2("v_mul_f32",S+r,S+r,W+r)
    cvt(W,S,S+1); cvt(W+1,S+2,S+3)
    for t in T:
        for h in range(2):
            if t==0: op2("v_and_b32",Pc(0,0)+h,W+h,vVM)
            else: dpp("v_and_b32",Pc(1,0)+h,W+h,vVM,"row_ror:8")
        for i in range(1,5):
            for h in range(2): v(f"v_mov_b32 v{Pc(t,i)+h}, v{Pc(t,0)+h}",[Pc(t,i)+h],[Pc(t,0)+h])
    for b in range(8):
        for c in range(4):
            r=frag(32+b*4+c)
            for t in T:
                a=UP[t]+4*(b&3); B.mfma(a,chunk(t,c),r,None if c==0 else a)
        for t in T:
            a=UP[t]+4*(b&3); u=VP(t,b); cvt(u,a,a+1); cvt(u+1,a+2,a+3)
    B.cut=len(B.ops)
    for t in T: B.mfma(A1(t),EPQ[t],Pc(t,0),None)
    for b in range(8):
        for t in T:
            a=UP[t]+4*(b&3)
            if b%2==0: B.mfma(a,VP(t,b),Pc(t,b>>1),None)
            else: B.mfma(a,SEL(t,b>>1),chunk(t,b>>1)+2,None)
        if OFM:
            for t in T:
                a=UP[t]+4*(b&3); o=GO[t]
                for e in range(4): op2("v_mul_f32" if (b==0 and e<2) else "v_fmac_f32",o+(e&1),a+e,a+e)
            continue
        for t in T:
            a=UP[t]+4*(b&3); u=chunk(t,b>>1)+2*(b&1); cvt(u,a,a+1); cvt(u+1,a+2,a+3)
        if b&1:
            for t in T: B.mfma(GO[t],chunk(t,b>>1),chunk(t,b>>1),None if b==1 else GO[t])
    if hook2: hook2(B,R(GP[0]+2) if not OFM else R(UP[0]+12))
    if OFM:
        o0,o1=GO
        for t in T: op2("v_add_f32",GO[t],GO[t],GO[t]+1)
        if NT==2:
            swap(32,o0,o1); op2("v_add_f32",o0,o0,o1)
            mov(o1,o0); swap(16,o0,o1); op2("v_add_f32",o0,o0,o1)
            mov(o1,o0); swap(32,o0,o1); merge("v_mov_b32",o0,o1)
        else:
            for n in (16,32): mov(o1,o0); swap(n,o0,o1); op2("v_add_f32",o0,o0,o1)
    else:
        for t in T:
            x=GO[t]; cnd(x,x,x+1,S_MA); cnd(x+2,x+2,x+3,S_MA); cnd(x,x,x+2,S_MC)
            bperm(O2[t],vDG,x)
        if NT==2: merge("v_mov_b32",O2[0],O2[1])
        o0=O2[0]
    mu=T0; lg=T1; o=o0
    op2("v_add_f32",mu,A1(0)+2,Y); op2("v_add_f32",lg,A1(0)+3,GW)
    if NT==2: merge("v_add_f32",mu,A1(1)+2,Y); merge("v_add_f32",lg,A1(1)+3,GW)
    ops("v_mul_f32",mu,S_C128,mu)
    v(f"v_fma_f32 v{lg}, -v{mu}, s{S_WS}, v{lg}",[lg],[mu,lg])
    v(f"v_fma_f32 v{T2}, -v{mu}, v{mu}, v{DE}",[T2],[mu,DE])
    tr("v_rcp_f32",T3,D); ops("v_mul_f32",lg,S_L2E,lg)
    v(f"v_and_b32 v{mu}, 0x80000000, v{D}",[mu],[D]); op2("v_xor_b32",lg,lg,mu)
    ops("v_fmac_f32",T2,S_C128,o); op2("v_max_f32",T2,T2,DE); tr("v_rsq_f32",T2,T2)
    op2("v_mul_f32",lg,lg,T2)
    Q=("quad_perm:[1,0,3,2]","quad_perm:[2,3,0,1]","row_half_mirror")
    dpp("v_max_f32",T2,lg,lg,Q[0]); dpp("v_max_f32",T2,T2,T2,Q[1]); dpp("v_max_f32",T2,T2,T2,Q[2])
    op2("v_sub_f32",lg,lg,T2); tr("v_exp_f32",lg,lg)
    dpp("v_add_f32",T2,lg,lg,Q[0]); dpp("v_add_f32",T2,T2,T2,Q[1]); dpp("v_add_f32",T2,T2,T2,Q[2])
    tr("v_rcp_f32",T2,T2); op2("v_mul_f32",lg,lg,T3); op2("v_mul_f32",lg,lg,T2)
    dpp("v_mov_b32",T2,lg,None,Q[0]); cvt(T2,lg,T2)
    for t in T:
        BG=UP[t]+8; bperm(BG+4,(vBP,vBP1)[t],T2); bperm(BG+5,(vBP,vBP1)[t],T2,8)
    for r in range(4): op2("v_mul_f32",S+r,S+r,lg)
    for ctl in Q:
        for r in range(4): dpp("v_add_f32",S+r,S+r,S+r,ctl)
    cvt(S,S,S+1); cvt(S+1,S+2,S+3)
    for t in T:
        BG=UP[t]+8
        for h in range(2):
            if t==0: op2("v_and_b32",BG+2+h,S+h,vVM)
            else: dpp("v_and_b32",BG+2+h,S+h,vVM,"row_ror:8")
        for h in range(2): op2("v_and_b32",BG+h,BG+4+h,vVM)
        for h in range(2): op2("v_and_b32",BG+4+h,BG+4+h,vVM)
    for b in range(8):
        for t in T:
            BG=UP[t]+8; f=[UP[t],UP[t]+4,A0(t),A1(t)][b&3]
            if b%2==0: B.mfma(f,gE(t,b),BG,None)
            else: B.mfma(f,VP(t,b),BG+2,None)
        for t in T:
            f=[UP[t],UP[t]+4,A0(t),A1(t)][b&3]; u=chunk(t,b>>1)+2*(b&1)
            cvt(u,f,f+1); cvt(u+1,f+2,f+3)
            if b&1:
                c=chunk(t,b>>1)
                B.add(f"buffer_store_dwordx4 v[{c}:{c+3}], v{vOUT}, s[{S_O}:{S_O+3}], s36 offen offset:{512*t+64*(b>>1)}"+os.environ.get("OST",""),"vst",R(c,4)+R(vOUT),[])
    return B

def emit_body(a,NT,hook=None,hook2=None):
    SCH=os.environ.get("NOSCHED","")==""
    B=body(NT,hook,hook2); ops=B.schedule(SCH); lines,dsq,vmq=finalize(ops)
    pr=os.environ.get("K4PRIO","0")
    if pr!="0": lines=add_prio(lines,*map(int,pr.split("_")))+["s_setprio 0"]
    print(f"K4 body({NT}): ops",len(ops),"est",getattr(B,"est",None),"mfma",sum(o.kind=="mfma" for o in ops),"valu",sum(o.kind in VAL for o in ops),"ds",sum(o.kind=="ds" for o in ops),"nops",sum(l.startswith("s_nop") for l in lines),"waits",sum(l.startswith("s_waitcnt") for l in lines))
    for l in lines: a(l)

def gen_k4(name):
    a=Asm(); a.l.append(head(name))
    st=Stamper(a,"k4" in STAMP); st()
    if st.on: a("s_memrealtime s[66:67]")
    a(f"""s_cmp_ge_u32 s2, 256
      s_cbranch_scc1 K4_END
      s_load_dwordx2 s[8:9], s[0:1], 88
      s_load_dwordx2 s[40:41], s[0:1], 0
      s_load_dwordx2 s[42:43], s[0:1], 24
      s_load_dwordx2 s[10:11], s[0:1], 72
      v_lshrrev_b32 v1, 6, v0
      v_and_b32 v2, 63, v0
      v_lshrrev_b32 v3, 4, v2
      v_readfirstlane_b32 s3, v1
      v_and_b32 v4, 15, v2
      v_lshlrev_b32 v{vW}, 4, v2
      v_lshrrev_b32 v5, 3, v2
      v_and_b32 v6, 7, v2
      s_and_b32 s4, s3, 3
      s_lshr_b32 s5, s3, 2
      s_mul_i32 s{S_N0}, s2, 96
      s_lshl_b32 s7, s5, 4
      s_add_u32 s{S_N0}, s{S_N0}, s7
      s_lshl_b32 s7, s5, 15
      s_add_u32 s7, s7, {TOK}
      s_add_u32 s33, s4, 1
      v_subrev_u32 v6, s33, v6
      v_and_b32 v6, 7, v6
      v_lshlrev_b32 v6, 4, v6
      v_and_b32 v7, 3, v5
      v_lshrrev_b32 v8, 2, v5
      v_lshl_or_b32 v7, v7, 1, v8
      s_mov_b32 s33, {GS4}
      v_mad_u32_u24 v{vDMA}, v7, s33, v6
      s_lshl_b32 s33, s4, 10
      v_lshl_add_u32 v{vXG}, v3, 8, s33
      v_lshl_add_u32 v{vXG}, v4, 4, v{vXG}
      v_lshrrev_b32 v7, 3, v4
      v_and_b32 v8, 7, v4
      v_lshrrev_b32 v5, 1, v3
      s_lshl_b32 s33, s4, 2
      v_xor_b32 v17, v5, v7
      v_lshl_add_u32 v9, v17, 1, v5
      v_add_lshl_u32 v9, v9, s33, 1
      v_mov_b32 v10, 0x40000000
      v_cmp_eq_u32 vcc, 0, v8
      s_waitcnt lgkmcnt(0)
      v_cndmask_b32 v{vDI}, v9, v10, vcc
      v_add_lshl_u32 v9, v7, s33, 8
      v_lshl_add_u32 v9, v3, 4, v9
      v_cndmask_b32 v{vOUT}, v10, v9, vcc""")
    a.srd(S_G,8,9,8*TSTR); a.srd(S_X,40,41,N*256); a.srd(S_D,42,43,N*2); a.srd(S_O,10,11,N*256); a.srd(S_WF,8,9,69*1024,OFF_WF)
    def prefetch(a):
        l=a.label("PF")
        a(f"""s_add_u32 s34, s4, 1
          s_mul_i32 s33, s34, {TS4}
          s_lshl_b32 s37, s{S_N0}, {NSH}
          s_add_u32 s33, s33, s37
          s_lshl_b32 s34, s34, 12
          s_add_u32 s34, s34, s7
          v_xor_b32 v{vPF}, 64, v{vDMA}""")
        for half in range(2):
            if half==1: a(f"s_cmp_eq_u32 s4, 3\ns_cbranch_scc1 {l}\ns_add_u32 s33, s33, {4*TS4-24*GS4}\ns_add_u32 s34, s34, {3*4096}")
            for i in range(4):
                if os.environ.get("NOLOAD"): continue
                a(f"s_mov_b32 m0, s34\ns_add_u32 s34, s34, 1024\nbuffer_load_dwordx4 v{vPF if half else vDMA}, s[{S_G}:{S_G+3}], s33 offen lds")
                if i<3: a(f"s_add_u32 s33, s33, {8*GS4}")
        a(f"""{l}:
          s_lshl_b32 s33, s{S_N0}, 8
          s_lshl_b32 s34, s{S_N0}, 1
          buffer_load_dwordx4 v[{X4}:{X4+3}], v{vXG}, s[{S_X}:{S_X+3}], s33 offen
          buffer_load_ushort v{DN}, v{vDI}, s[{S_D}:{S_D+3}], s34 offen""")
    def weights():
        l=a.label("WD")
        a(f"s_lshl_b32 s33, s3, 10")
        for i in range(9):
            if i==8: a(f"s_cmp_ge_u32 s3, 4\ns_cbranch_scc1 {l}")
            a(f"s_mov_b32 m0, s33\ns_nop 0\nbuffer_load_dwordx4 v{vW}, s[{S_WF}:{S_WF+3}], s33 offen lds\ns_add_u32 s33, s33, 8192")
        a(f"{l}:")
    a(f"s_load_dword s{S_WS}, s[{S_WF}:{S_WF+1}], {68*1024+252}\ns_cmp_eq_u32 s5, 0\ns_cbranch_scc0 K4_WB")
    prefetch(a); weights()
    a("s_branch K4_WC\nK4_WB:")
    weights()
    BD=os.environ.get("BDELAY","1")=="1"
    if not BD: prefetch(a)
    a(f"""K4_WC:
      v_add_u32 v{vW2}, 0x10000, v{vW}
      s_mov_b32 s{S_C128}, {f2u(1/128):#x}
      s_mov_b32 s{S_EPS}, {f2u(1e-5):#x}
      s_mov_b32 s{S_L2E}, {f2u(math.log2(math.e)):#x}
      v_cmp_eq_u32 vcc, v5, v7
      v_and_b32 v10, 1, v3
      s_lshl_b32 s33, s4, 1
      v_lshlrev_b32 v11, 7, v5
      v_lshl_add_u32 v{vBP}, v3, 4, v11
      v_xor_b32 v{vBP1}, 32, v{vBP}
      v_cndmask_b32 v{vVM}, 0, -1, vcc
      v_cndmask_b32 v{vALM}, v{vBP1}, v{vBP}, vcc
      v_lshrrev_b32 v14, 2, v4
      v_and_b32 v15, 3, v4
      v_lshlrev_b32 v11, 6, v14
      v_lshl_add_u32 v{vDG}, v4, 2, v11
      v_lshlrev_b32 v12, 7, v17
      v_xor_b32 v11, v11, v12
      v_lshl_add_u32 v{vXS}, v15, 4, v11
      v_lshl_add_u32 v{vXS}, v17, 3, v{vXS}
      s_lshl_b32 s{S_CNT}, s5, 3
      s_add_u32 s{S_CNT}, s{S_CNT}, {CNT}
      v_mov_b32 v11, s{S_CNT}
      v_mov_b32 v12, 0
      v_mov_b32 v13, 0
      ds_write_b64 v11, v[12:13]""")
    a(f"""v_lshlrev_b32 v11, 12, v8
      v_lshl_add_u32 v11, v3, 7, v11
      v_lshl_add_u32 v11, v7, 3, v11
      v_add_u32 v11, s7, v11
      v_add_u32 v12, s33, v8""")
    for t in range(2):
        a(f"v_add_u32 v13, {t}, v12\nv_and_b32 v13, 7, v13\nv_lshl_add_u32 v{TB[t]}, v13, 4, v11")
    a(f"""v_lshl_add_u32 v14, v10, 2, v14
      v_lshlrev_b32 v11, 12, v14
      v_lshl_add_u32 v11, v15, 7, v11
      v_lshl_add_u32 v11, v5, 3, v11
      v_add_u32 v11, s7, v11
      v_add_u32 v12, s33, v14""")
    for t in range(2):
        a(f"v_add_u32 v13, {t}, v12\nv_and_b32 v13, 7, v13\nv_lshl_add_u32 v{TR[t]}, v13, 4, v11")
    a(f"""v_lshrrev_b32 v11, 2, v4
      v_lshlrev_b32 v11, 10, v11
      v_lshl_add_u32 v11, v15, 7, v11
      v_add_u32 v12, s33, v5
      v_lshl_add_u32 v11, v12, 4, v11
      v_lshl_add_u32 v11, v10, 3, v11
      v_add_u32 v{vXL}, s7, v11
      v_lshlrev_b32 v12, 2, v3
      v_sub_u32 v12, v4, v12
      v_mov_b32 v13, 0x3f80
      v_mov_b32 v14, 0x3f800000
      v_cmp_eq_u32 s[40:41], 0, v12
      v_cmp_eq_u32 s[42:43], 1, v12
      v_cmp_eq_u32 s[44:45], 2, v12
      v_cmp_eq_u32 vcc, 3, v12
      v_cndmask_b32 v15, 0, v13, s[40:41]
      v_cndmask_b32 v16, 0, v13, s[44:45]
      v_cndmask_b32 v15, v15, v14, s[42:43]
      v_cndmask_b32 v16, v16, v14, vcc""")
    for t in range(2):
        for q in range(4): a(f"v_mov_b32 v{SEL(t,q)}, v15\nv_mov_b32 v{SEL(t,q)+1}, v16")
        a(f"v_mov_b32 v{EPQ[t]+2}, 0\nv_mov_b32 v{EPQ[t]+3}, 0")
    a(f"""s_mov_b32 s35, 0
      s_mov_b32 s{S_MA}, 0xaaaaaaaa
      s_mov_b32 s{S_MA+1}, 0xaaaaaaaa
      s_mov_b32 s{S_MC}, 0xcccccccc
      s_mov_b32 s{S_MC+1}, 0xcccccccc
      s_cmp_eq_u32 s5, 0
      s_cbranch_scc0 K4_WE
      s_waitcnt vmcnt(0)
      K4_WE:
      s_waitcnt vmcnt({0 if BD else 6}) lgkmcnt(0)
      s_barrier""")
    if BD:
        a("s_cmp_eq_u32 s5, 0\ns_cbranch_scc1 K4_WF")
        prefetch(a)
        a("K4_WF:")
    def arrive(a,off,t0,t1):
        a(f"""v_mov_b32 v{t0}, s{S_CNT}
          v_mov_b32 v{t1}, 1
          s_mov_b64 exec, 1
          ds_add_u32 v{t0}, v{t1} offset:{off}
          s_mov_b64 exec, -1""")
    def spin(a,off,t0,t1):
        l=a.label("SP")
        a(f"""{l}:
          ds_read_b32 v{t1}, v{t0} offset:{off}
          s_waitcnt lgkmcnt(0)
          v_readfirstlane_b32 s33, v{t1}
          s_cmp_ge_u32 s33, s38
          s_cbranch_scc1 {l}_E
          s_sleep 1
          s_branch {l}
          {l}_E:""")
    def publish(a,t0,t1):
        a(f"""s_waitcnt vmcnt(0)
          ds_write2st64_b64 v{vXL}, v[{X4}:{X4+1}], v[{X4+2}:{X4+3}] offset1:1
          s_waitcnt lgkmcnt(0)""")
        arrive(a,0,t0,t1)
    def land():
        a(f"""v_mov_b32 v{T2}, s{S_CNT}
          v_lshlrev_b32 v{D}, 16, v{DN}
          s_add_u32 s35, s35, 1
          v_cmp_eq_f32 vcc, 0, v{D}
          s_lshl_b32 s38, s35, 2
          s_lshl_b32 s36, s{S_N0}, 8
          v_cndmask_b32 v{D}, v{D}, 1.0, vcc""")
        spin(a,0,T2,T3)
    def hook2(B,dep):
        x=Asm(); publish(x,vPF,GP[0])
        B.add("\n".join(x.l),"blk",dep+["pf2"]+R(GP[0]),R(vPF)+R(GP[0]))
    def hook(B,tok):
        x=Asm(); x.uid=1000; arrive(x,4,T2,T3)
        B.add("\n".join(x.l),"blk",tok,R(T2)+R(T3)+["pf"])
        x=Asm(); x.uid=2000; spin(x,4,T2,T3)
        x(f"""s_add_u32 s{S_N0}, s{S_N0}, 32
          s_cmp_lt_u32 s35, 3
          s_cbranch_scc1 K4_PFN
          s_lshl_b32 s{S_N0}, s2, 1
          s_add_u32 s{S_N0}, s{S_N0}, 24576
          s_cmp_ge_u32 s2, 212
          s_cbranch_scc1 K4_NOPF
          s_cmp_lg_u32 s5, 0
          s_cbranch_scc1 K4_NOPF
          K4_PFN:""")
        prefetch(x); x("K4_NOPF:")
        B.add("\n".join(x.l),"blk",R(T2)+R(T3)+["pf"],R(T3)+R(vPF)+["pf2"])
    publish(a,T2,T3)
    a("K4_LOOP:")
    land(); st(); st(); st()
    if os.environ.get("FIFO","1")=="1":
        a("""s_setprio 3
          s_cmp_eq_u32 s35, 1
          s_cbranch_scc1 K4_PS
          s_setprio 2
          s_cmp_eq_u32 s35, 2
          s_cbranch_scc1 K4_PS
          s_setprio 1
          """+("s_cmp_lg_u32 s5, 0\ns_cbranch_scc1 K4_PS\ns_setprio 0\n" if os.environ.get("LASTB","0")=="1" else "")+"K4_PS:")
    emit_body(a,2,hook,hook2)
    st()
    if st.on:
        a("s_waitcnt lgkmcnt(0)")
        for it in (1,2):
            a(f"s_cmp_lg_u32 s35, {it}\ns_cbranch_scc1 K4_SV{it}")
            for k in range(4): a(f"s_mov_b32 s{86+8*(it-1)+2*k}, s{74+2*k}")
            a(f"K4_SV{it}:")
    a(f"""s_cmp_lt_u32 s35, 3
      s_cbranch_scc1 K4_LOOP""")
    if st.on:
        a("s_memrealtime s[68:69]\ns_waitcnt lgkmcnt(0)\ns_sub_u32 s82, s68, s66\ns_add_u32 s82, s82, s72\ns_mov_b32 s84, s72")
        st.n=15; st.dump(5,7,16); st.dump(5,4,32); st.n=5
    a(f"""s_cmp_ge_u32 s2, 212
      s_cbranch_scc1 K4_END
      s_cmp_lg_u32 s5, 0
      s_cbranch_scc1 K4_END""")
    a("s_setprio 2")
    land(); st()
    a("s_cmp_lg_u32 s3, 0\ns_cbranch_scc1 K4_END")
    emit_body(a,1)
    st(); st.n=15; st.dump(5,0)
    a("K4_END:\ns_endpgm")
    return a.text(), desc(name,NV,102 if STAMP else 64)
```

```python
from common import *
LDS_SCR=LDS_CNT+128
K3_LDS=LDS_SCR+4096
NHOP=7
CAPE=eval(os.environ.get('CAPE','CAPS'))
DPT=int(os.environ.get("DPT",2))
V_T0=0; V_T1=1
V_DP=2
V_IDX=4
V_SC=84
V_D=88
V_ACC=92
V_A=108
V_PK=112
V_L16=114
V_B=116
NV3=V_B+4*(DPT+1)
assert NV3<=128
S_TAB=12
S_OUT=16
S_BLOB=28
S_OVF=24
S_FLAG=28
S_HDR=32
S_HOP=20; S_B0=21; S_B1=22; S_OB=23; S_T=64
SCD=os.environ.get('SCD',' sc1')
SCL=os.environ.get('SCL',' sc1')
SCF='' if 'pf' in os.environ.get('PLAIN','') else ' sc1'
PLD=os.environ.get('PLD','sc1')
SPIN=2000000
SLP=int(os.environ.get('SLP',2))
C_DA,C_DB,C_DC,C_L,C_PC,C_PB,G_S0,G_S1,G_S2,C_0,C_1,C_4,C_P,C_E2,C_MD=0,4,8,12,16,20,24,28,32,36,40,44,48,80,112
NM_=3
S_PEND=7
S_PC=11

def gen_k3(name,nhop=NHOP):
    global S_PEND
    S_PEND=7
    a=Asm(); a.l.append(head(name))
    X=os.environ.get("K3X","")
    STH=int(os.environ.get("STH",5))
    if "k3" in STAMP: a("s_memtime s[98:99]")
    a(f"""s_cmp_ge_u32 s2, 256
      s_cbranch_scc1 K3_END
      s_load_dwordx2 s[8:9], s[0:1], 88
      v_lshrrev_b32 v1, 6, v0
      v_and_b32 v2, 63, v0
      s_and_b32 s4, s2, 7
      v_readfirstlane_b32 s3, v1
      s_lshr_b32 s5, s2, 6
      s_lshl_b32 s5, s5, 3
      s_add_u32 s4, s4, s5
      s_bfe_u32 s5, s2, 0x30003
      v_lshlrev_b32 v{V_L16}, 4, v2
      s_mul_i32 s6, s4, {GSTR}
      s_mul_i32 s7, s5, 25088
      s_mov_b32 s{S_B0}, 0
      s_mov_b32 s{S_B1}, {TB_}
      s_mov_b32 s{S_OB}, {LDS_OUT}
      s_mov_b32 s{S_HOP}, 0
      s_waitcnt lgkmcnt(0)
      {"s_memtime s[94:95]" if "k3" in STAMP else ""}
      s_add_u32 s{S_TAB}, s8, s6
      s_addc_u32 s{S_TAB+1}, s9, 0
      s_mov_b32 s{S_TAB+2}, {GSTR}
      s_mov_b32 s{S_TAB+3}, 0x20000""")
    def dma(off=0): a(f"buffer_load_dwordx4 v{V_L16}, s[{S_TAB}:{S_TAB+3}], s{S_T} offen"+(f" offset:{off}" if off else "")+SCL+" lds")
    def seg_fill(rreg,seg,base,i0,n):
        a(f"""s_cmp_ge_u32 s{rreg}, s5
          s_addc_u32 s{S_T}, s{rreg}, 0
          s_mul_i32 s{S_T}, s{S_T}, 25088
          s_add_u32 s{S_T}, s{S_T}, {SEG[seg]*8+i0*1024}
          s_mul_i32 s{S_T+1}, s{rreg}, {TST*8}
          s_add_u32 s{S_T+1}, s{S_T+1}, s{base}""")
        if i0: a(f"s_add_u32 s{S_T+1}, s{S_T+1}, {i0*1024}")
        for i in range(n):
            if i%4==0:
                if i: a(f"s_add_u32 s{S_T}, s{S_T}, 4096\ns_add_u32 s{S_T+1}, s{S_T+1}, 4096")
                a(f"s_mov_b32 m0, s{S_T+1}\ns_nop 0")
            dma(1024*(i%4))
    a(f"""s_lshl_b32 s{S_T+1}, s3, 10
      s_add_u32 s{S_T}, s7, s{S_T+1}
      s_add_u32 s{S_T+1}, s{S_T+1}, {LDS_OUT}
      s_mov_b32 m0, s{S_T+1}
      s_nop 0"""); dma()
    a(f"""s_cmp_ge_u32 s3, 9
      s_cbranch_scc1 K3_I1
      s_add_u32 s{S_T}, s{S_T}, 16384
      s_add_u32 m0, s{S_T+1}, 16384
      s_cmp_lg_u32 s3, 8
      s_cbranch_scc1 K3_I0
      s_mov_b32 exec_hi, 0
      K3_I0:"""); dma()
    a(f"""s_mov_b64 exec, -1
      K3_I1:
""")
    a(f"""K3_I3:
      s_add_u32 s{S_OUT}, s{S_TAB}, s7
      s_addc_u32 s{S_OUT+1}, s{S_TAB+1}, 0
      s_add_u32 s{S_OUT}, s{S_OUT}, {TSTR}
      s_addc_u32 s{S_OUT+1}, s{S_OUT+1}, 0
      s_mov_b32 s{S_OUT+2}, 25088
      s_mov_b32 s{S_OUT+3}, 0x20000
      s_cmp_ge_u32 s3, 14
      s_cbranch_scc1 K3_HELPER""")
    def flag_srd(gather=False):
        a(f"""s_and_b32 s10, s2, 7
          s_lshr_b32 s{S_T}, s2, 6
          s_lshl_b32 s{S_T}, s{S_T}, 3
          s_add_u32 s10, s10, s{S_T}
          s_lshl_b32 s10, s10, 11
          s_add_u32 s{S_FLAG}, s8, s10
          s_addc_u32 s{S_FLAG+1}, s9, 0
          s_add_u32 s{S_FLAG}, s{S_FLAG}, {OFF_FLAG:#x}
          s_addc_u32 s{S_FLAG+1}, s{S_FLAG+1}, 0
          s_mov_b32 s{S_FLAG+2}, 2048
          s_mov_b32 s{S_FLAG+3}, 0x20000""")
        if not gather: a("s_lshl_b32 s7, s5, 7"); return
        a(f"""s_lshr_b32 s10, s4, 1
          s_lshl_b32 s6, s10, 2
          s_cmp_ge_u32 s10, {NE}
          s_cselect_b32 s{S_T}, {1024-4*NE}, 0
          s_cmp_ge_u32 s10, {NE+NM_}
          s_cselect_b32 s{S_T}, {(32-4*(NE+NM_))&0xffffffff}, s{S_T}
          s_add_u32 s6, s6, s{S_T}
          s_lshl_b32 s10, s5, 7
          s_add_u32 s6, s6, s10""")
    def pubflag(hadd):
        a(f"""s_add_u32 s10, s{S_HOP}, {hadd}
          v_mov_b32 v{V_T1}, s10
          s_mov_b64 exec, 1
          s_waitcnt vmcnt(0)
          buffer_store_dword v{V_T1}, off, s[{S_FLAG}:{S_FLAG+3}], s6 sc1""")
    def arrive_flag(c,mult,off,fadd):
        l=a.label("AF")
        a(f"""v_mov_b32 v{V_T0}, {LDS_CNT}
          v_mov_b32 v{V_T1}, 1
          s_add_u32 s{S_T+2}, s{S_HOP}, {fadd}
          s_mul_i32 s{S_T+3}, s{S_HOP}, {mult}
          s_mov_b64 exec, 1
          ds_add_rtn_u32 v{V_T1}, v{V_T0}, v{V_T1} offset:{c}
          s_add_u32 s{S_T+3}, s{S_T+3}, {mult-1}
          s_waitcnt lgkmcnt(0)
          v_cmp_eq_u32 vcc, s{S_T+3}, v{V_T1}
          v_mov_b32 v{V_T1}, s{S_T+2}
          s_cbranch_vccz {l}
          buffer_store_dword v{V_T1}, off, s[{S_FLAG}:{S_FLAG+3}], s7 offset:{off}{SCF}
          {l}:
          s_mov_b64 exec, -1""")
    def poll(off,vi,vv,vr,hopadd):
        l=a.label("PO")
        if os.environ.get("SPOLL","1")=="1":
            nd={0:NE,1024:NM_,32:7-NE-NM_}[off]; w=2 if nd<=2 else 4
            a(f"s_add_u32 s{S_T+1}, s{S_HOP}, {hopadd}\ns_mov_b32 s{S_T}, {SPIN}\n{l}:")
            for q_ in range(8): a(f"s_load_dwordx{w} s[{32+w*q_}:{32+w*q_+w-1}], s[{S_FLAG}:{S_FLAG+1}], {off+128*q_} glc")
            a(f"s_sub_u32 s{S_T}, s{S_T}, 1\ns_cmp_eq_u32 s{S_T}, 0\ns_waitcnt lgkmcnt(0)\ns_cbranch_scc1 {l}_X")
            regs=[32+w*q_+d for q_ in range(8) for d in range(nd)]
            for r in regs[1:]: a(f"s_min_u32 s32, s32, s{r}")
            a(f"s_cmp_lt_u32 s32, s{S_T+1}\ns_cbranch_scc1 {l}\n{l}_X:")
            return
        ld=lambda r: a(f"buffer_load_dword v{r}, v{vi}, s[{S_FLAG}:{S_FLAG+3}], 0 offen offset:{off} {PLD}")
        a(f"""s_add_u32 s{S_T}, s{S_HOP}, {hopadd}
          v_mov_b32 v{vv}, s{S_T}
          s_mov_b32 s{S_T}, {SPIN}""")
        if os.environ.get("P1","1")=="1":
            a(f"{l}:"); ld(vr)
            a(f"""s_waitcnt vmcnt(0)
              v_cmp_gt_u32 vcc, v{vv}, v{vr}
              s_sub_u32 s{S_T}, s{S_T}, 1
              s_cbranch_vccz {l}_X
              s_cmp_gt_i32 s{S_T}, 0
              s_cbranch_scc1 {l}
              {l}_X:""")
            return
        ld(vr)
        a(f"s_sleep {SLP}\n{l}:")
        for k in range(2):
            ld(vr+1-k)
            a(f"""s_waitcnt vmcnt(1)
              v_cmp_gt_u32 vcc, v{vv}, v{vr+k}
              s_sub_u32 s{S_T}, s{S_T}, 1
              s_cbranch_vccz {l}_X""")
        a(f"""s_cmp_gt_i32 s{S_T}, 0
          s_cbranch_scc1 {l}
          {l}_X:""")
    def arrive(c):
        a(f"""v_mov_b32 v{V_T0}, {LDS_CNT}
          v_mov_b32 v{V_T1}, 1
          s_mov_b64 exec, 1
          ds_add_u32 v{V_T0}, v{V_T1} offset:{c}
          s_mov_b64 exec, -1""")
    def spin(c,mult,hadd=1):
        l=a.label("SP")
        a(f"""v_mov_b32 v{V_T0}, {LDS_CNT}
          s_add_u32 s{S_T+2}, s{S_HOP}, {hadd}
          s_mul_i32 s{S_T+2}, s{S_T+2}, {mult}
          {l}:
          ds_read_b32 v{V_T1}, v{V_T0} offset:{c}
          s_waitcnt lgkmcnt(0)
          v_readfirstlane_b32 s{S_T+3}, v{V_T1}
          s_cmp_ge_u32 s{S_T+3}, s{S_T+2}
          s_cbranch_scc1 {l}_E
          s_sleep 1
          s_branch {l}
          {l}_E:""")
    def rewarm(adv):
        if os.environ.get("RW","1")!="1": return
        a(f"""s_lshr_b32 s10, s4, 1
          s_mul_i32 s10, s10, 3584
          s_mov_b32 m0, {LDS_SCR}""")
        if adv: a(f"s_sub_u32 s{S_OUT}, s{S_OUT}, {TSTR}\ns_subb_u32 s{S_OUT+1}, s{S_OUT+1}, 0")
        else: a("s_nop 0")
        for k in range(4):
            if k==3: a("s_mov_b32 exec_hi, 0")
            a(f"buffer_load_dwordx4 v{V_L16}, s[{S_OUT}:{S_OUT+3}], s10 offen offset:{1024*k} sc1 lds")
        a("s_mov_b64 exec, -1")
        if adv: a(f"s_add_u32 s{S_OUT}, s{S_OUT}, {TSTR}\ns_addc_u32 s{S_OUT+1}, s{S_OUT+1}, 0")
    def tickets():
        l=a.label("TK")
        a(f"""s_lshl_b32 s10, s{S_HOP}, 2
          s_add_u32 s10, s10, {LDS_CNT+C_TK}
          v_mov_b32 v{V_T0}, s10
          {l}:
          v_mov_b32 v{V_T1}, 1
          s_mov_b64 exec, 1
          ds_add_rtn_u32 v{V_T1}, v{V_T0}, v{V_T1}
          s_mov_b64 exec, -1
          s_waitcnt lgkmcnt(0)
          v_readfirstlane_b32 s10, v{V_T1}
          s_cmp_ge_u32 s10, 7
          s_cbranch_scc1 {l}_E""")
        seg_fill(10,0,S_B1,0,NCH[0])
        a(f"s_add_u32 s{S_PEND}, s{S_PEND}, 1\ns_branch {l}\n{l}_E:")
    def landed():
        l=a.label("LD")
        a(f"""s_cmp_eq_u32 s{S_PEND}, 0
          s_cbranch_scc1 {l}
          v_mov_b32 v{V_T0}, {LDS_CNT}
          v_mov_b32 v{V_T1}, s{S_PEND}
          s_mov_b32 s{S_PEND}, 0
          s_waitcnt vmcnt(0)
          s_mov_b64 exec, 1
          ds_add_u32 v{V_T0}, v{V_T1} offset:{G_S0}
          s_mov_b64 exec, -1
          {l}:""")
    def handover(call,gate,k):
        l=a.label("HO")
        a(f"""v_mov_b32 v{V_T0}, s{S_PC}
          v_writelane_b32 v{V_T0}, s{S_T+4+k}, 1
          v_mov_b32 v{V_T1}, 1
          s_mul_i32 s{S_T+2}, s{S_HOP}, 4
          s_add_u32 s{S_T+2}, s{S_T+2}, {2*(k+1)}
          s_add_u32 s{S_T+3}, s{S_HOP}, 1
          s_lshl_b32 s{S_T+3}, s{S_T+3}, 1
          s_mov_b64 exec, 3
          s_waitcnt lgkmcnt(0)
          ds_add_u32 v{V_T0}, v{V_T1}
          v_mov_b32 v{V_PK}, s{S_T+2}
          v_writelane_b32 v{V_PK}, s{S_T+3}, 1
          v_writelane_b32 v{V_T0}, s{S_T+6+k}, 1
          {l}:
          ds_read_b32 v{V_T1}, v{V_T0}
          s_waitcnt lgkmcnt(0)
          v_cmp_gt_u32 vcc, v{V_PK}, v{V_T1}
          s_nop 0
          s_cbranch_vccz {l}_E
          s_sleep 1
          s_branch {l}
          {l}_E:
          s_mov_b64 exec, -1""")
    m={0:0,1:8,2:3,3:9,4:2,5:10,6:5,7:11,8:4,9:12,10:7,11:13,12:6,13:1}
    lo=sum(m[w]<<(4*w) for w in range(8)); hi=sum(m[w]<<(4*(w-8)) for w in range(8,14))
    a(f"""s_mov_b32 s10, {lo:#x}
      s_mov_b32 s11, {hi:#x}
      s_lshl_b32 s6, s3, 2
      s_lshr_b64 s[10:11], s[10:11], s6
      s_and_b32 s4, s10, 15
      s_mul_i32 s6, s5, 14
      s_add_u32 s6, s6, s4
      s_lshl_b32 s7, s6, 7
      s_add_u32 s10, s8, s7
      s_addc_u32 s11, s9, 0
      s_add_u32 s10, s10, {OFF_HDR:#x}
      s_addc_u32 s11, s11, 0
      s_load_dwordx16 s[{S_HDR}:{S_HDR+15}], s[10:11], 0
      s_load_dwordx16 s[{S_HDR+16}:{S_HDR+31}], s[10:11], 64
      s_mul_i32 s7, s6, {BLOBSZ}
      s_add_u32 s{S_BLOB}, s8, s7
      s_addc_u32 s{S_BLOB+1}, s9, 0
      s_add_u32 s{S_BLOB}, s{S_BLOB}, {OFF_BLOB:#x}
      s_addc_u32 s{S_BLOB+1}, s{S_BLOB+1}, 0
      s_mov_b32 s{S_BLOB+2}, {BLOBSZ}
      s_mov_b32 s{S_BLOB+3}, 0x20000""")
    def load_blob(u0,u1):
        for u in range(u0,u1):
            r=V_IDX+4*u
            if u%4==0 or u==u0: a(f"s_mov_b32 s{S_T}, {(u//4)*4096}")
            a(f"buffer_load_dwordx4 v[{r}:{r+3}], v{V_L16}, s[{S_BLOB}:{S_BLOB+3}], s{S_T} offen offset:{(u%4)*1024}")
    load_blob(0,UOFF[1])
    a(f"""s_lshl_b32 s7, s6, 9
      s_add_u32 s{S_OVF}, s8, s7
      s_addc_u32 s{S_OVF+1}, s9, 0
      s_add_u32 s{S_OVF}, s{S_OVF}, {OFF_DST:#x}
      s_addc_u32 s{S_OVF+1}, s{S_OVF+1}, 0
      s_mov_b32 s{S_OVF+2}, 512
      s_mov_b32 s{S_OVF+3}, 0x20000
      v_lshlrev_b32 v0, 3, v2
      v_and_b32 v{V_PK}, 15, v2
      v_lshrrev_b32 v1, 4, v2
      v_lshlrev_b32 v{V_PK+1}, 2, v2
      buffer_load_dwordx2 v[{V_DP}:{V_DP+1}], v0, s[{S_OVF}:{S_OVF+3}], 0 offen""")
    a.srd(S_OVF,8,9,OVF_SIZE,OFF_OVF)
    a(f"""v_lshlrev_b32 v1, 2, v1
      v_sub_u32 v{V_PK}, v{V_PK}, v1
      v_mov_b32 v0, 0x3f80
      v_mov_b32 v1, 0x3f800000
      v_cmp_eq_u32 s[64:65], 0, v{V_PK}
      v_cmp_eq_u32 s[66:67], 1, v{V_PK}
      v_cmp_eq_u32 s[10:11], 2, v{V_PK}
      v_cmp_eq_u32 vcc, 3, v{V_PK}
      v_cndmask_b32 v{V_A}, 0, v0, s[64:65]
      v_cndmask_b32 v{V_A+1}, 0, v0, s[10:11]
      v_cndmask_b32 v{V_A}, v{V_A}, v1, s[66:67]
      v_cndmask_b32 v{V_A+1}, v{V_A+1}, v1, vcc
      v_mov_b32 v{V_A+2}, v{V_A}
      v_mov_b32 v{V_A+3}, v{V_A+1}
      {"s_waitcnt lgkmcnt(0)"+chr(10)+"s_memtime s[92:93]"+chr(10)+"s_waitcnt vmcnt(6)"+chr(10)+"s_memtime s[90:91]"+chr(10)+"s_waitcnt vmcnt(0)"+chr(10)+"s_memtime s[88:89]" if "k3" in STAMP and STH==0 else ""}
      s_waitcnt vmcnt(6) lgkmcnt(0)
      s_barrier
      s_waitcnt vmcnt(0)""")
    if "k3" in STAMP: a("s_memtime s[96:97]")
    if "k3" in STAMP and STH==0:
        a("s_waitcnt lgkmcnt(0)\ns_mov_b32 s72, s98\ns_mov_b32 s74, s94\ns_mov_b32 s76, s92\ns_mov_b32 s78, s90\ns_mov_b32 s80, s88\ns_mov_b32 s82, s96")
        x=Stamper(a,True); x.n=6; x.dump(0,0,0); x.dump(0,12,16); a("s_mov_b64 exec, -1")
    load_blob(UOFF[1],UOFF[2])
    def late_loads(k):
        l=a.label("LL")
        a(f"s_cmp_lg_u32 s{S_HOP}, 0\ns_cbranch_scc1 {l}\ns_waitcnt vmcnt(0)")
        load_blob(UOFF[k],UOFF[k]+UNITS[k])
        if k==3:
            a(f"""s_lshl_b32 s10, s6, 10
              s_add_u32 s{S_BLOB}, s8, s10
              s_addc_u32 s{S_BLOB+1}, s9, 0
              s_add_u32 s{S_BLOB}, s{S_BLOB}, {OFF_SCALE:#x}
              s_addc_u32 s{S_BLOB+1}, s{S_BLOB+1}, 0
              s_mov_b32 s{S_BLOB+2}, 1024
              v_lshrrev_b32 v{V_T0}, 2, v{V_L16}""")
            for s_ in range(4): a(f"buffer_load_dword v{V_SC+s_}, v{V_T0}, s[{S_BLOB}:{S_BLOB+3}], 0 offen offset:{256*s_}")
            flag_srd(True)
        a(f"{l}:")
    a(f"""s_lshr_b32 s{S_PC}, s4, 1
      s_lshl_b32 s{S_PC}, s{S_PC}, 2
      s_add_u32 s{S_PC}, s{S_PC}, {LDS_CNT+C_P}
      s_mov_b32 s{S_PEND}, 0
      s_mov_b32 s{S_T+4}, {LDS_CNT+C_0}
      s_mov_b32 s{S_T+5}, {LDS_CNT+C_1}
      s_mov_b32 s{S_T+6}, {LDS_CNT+G_S1}
      s_mov_b32 s{S_T+7}, {LDS_CNT+G_S2}
      s_add_u32 s{S_TAB}, s{S_TAB}, {TSTR}
      s_addc_u32 s{S_TAB+1}, s{S_TAB+1}, 0""")
    NB=DPT+1
    def mf(acc,b,first):
        c="0" if first else f"v[{acc}:{acc+3}]"
        a(f"v_mfma_f32_16x16x32_bf16 v[{acc}:{acc+3}], v[{V_A}:{V_A+3}], v[{b}:{b+3}], {c}")
    def ad(d,ireg,w,base): a(f"v_mad_u32_u16 v{d}, v{ireg}, 8, s{base}"+(" op_sel:[1,0,0,0]" if w else ""))
    def issue(ireg,b,base,lo=None):
        if lo is None: ad(b,ireg,0,base)
        else: ad(lo,ireg,0,S_OB)
        ad(b+2,ireg,1,base)
        if "lin" in X: a(f"ds_read_b64 v[{b}:{b+1}], v{V_L16}\nds_read_b64 v[{b+2}:{b+3}], v{V_L16}"); return
        a(f"ds_read_b64 v[{b}:{b+1}], v{b if lo is None else lo}\nds_read_b64 v[{b+2}:{b+3}], v{b+2}")
    def accq(p,slot): return V_ACC+4*(slot if p<2 else slot&1)
    def flush(p,slot):
        acc=accq(p,slot); d=V_D+slot
        if p==1: ad(d,V_DP+(slot>>1),slot&1,S_OB)
        if p==3:
            for i in range(4): a(f"v_mul_f32 v{acc+i}, v{V_SC+slot}, v{acc+i}")
        a(f"""v_cvt_pk_bf16_f32 v{V_PK}, v{acc}, v{acc+1}
          v_cvt_pk_bf16_f32 v{V_PK+1}, v{acc+2}, v{acc+3}
          ds_write_b64 v{d}, v[{V_PK}:{V_PK+1}]""")
    PR=int(os.environ.get("PRIO","4"))
    LLO=int(os.environ.get("LLO",1)); LSW=float(os.environ.get("LSW",0.5)); LHI=int(os.environ.get("LHI",4)); LE=int(os.environ.get("LE",4))
    EP0=int(os.environ.get('EP0',0)); MIDE=int(os.environ.get('MIDE',0)); LL3=int(os.environ.get('LL3',0)); LS3=float(os.environ.get('LS3',0.6))
    def phase(h,p,side,early=None):
        H=S_HDR+4*p; I=V_IDX+4*UOFF[p]; base=[S_OB,S_B0,S_B1,S_B0][p]
        RB=[V_B+4*k for k in range(NB)]+([V_ACC+8,V_ACC+12] if p>=2 else [])
        seq=[]
        for slot,(r,pb,n) in enumerate(LAY[p][h]):
            cap=(CAPE if early else CAPS)[p][r]; assert cap<=n
            for k in range(cap): seq.append((I+pb+k,slot,k==0,k==cap-1))
        n=len(seq)
        if p==1 and EP0: L=lambda i:DPT; prios={0:"e1",n//2:"e0"}
        elif p<2: L=lambda i:DPT; prios={0:2,n//3+1:1,2*(n//3+1):0}
        elif early: L=lambda i:LE; prios={0:2}
        elif p==3 and MIDE: L=lambda i:(LL3 if i<LS3*n else LHI); prios={0:0}
        else: L=lambda i:(LLO if i<LSW*n else LHI); prios={0:1,n//2:0} if p==2 else {0:"m"}
        q=[]; ip=0; pend=None; mark=0
        for i,(ireg,slot,first,last) in enumerate(seq):
            if PR and i in prios:
                if str(prios[i])[0]=="e":
                    l=a.label("PM"); a(f"s_setprio 2\ns_cmp_lt_u32 s4, {2*NE}\ns_cbranch_scc1 {l}\ns_setprio {prios[i][1]}\n{l}:")
                elif prios[i]=="m":
                    l=a.label("PM"); a(f"s_setprio 1\ns_cmp_lt_u32 s4, {2*(NE+NM_)}\ns_cbranch_scc1 {l}\ns_setprio 0\n{l}:")
                else: a(f"s_setprio {prios[i]}")
            while ip<min(n,i+1+L(i)):
                r_,s_,f_,_=seq[ip]
                issue(r_,RB[ip%len(RB)],base,V_D+s_ if (f_ and p>1) else None); q.extend([ip,ip]); ip+=1
            if i in q:
                k=max(x for x,t in enumerate(q) if t==i); a(f"s_waitcnt lgkmcnt({len(q)-1-k})"); del q[:k+1]
            mf(accq(p,slot),RB[i%len(RB)],first and p!=1)
            if pend is not None:
                nb=len([x for x in a.l[mark:] if not x.endswith(":")])
                if p==1 and pend==0: spin(C_L,14); q.clear()
                elif nb<8: a(f"s_nop {8-nb-1}")
                flush(p,pend); q.append("w"); pend=None
            if last:
                r,pb,nr=LAY[p][h][slot]; cap=(CAPE if early else CAPS)[p][r]; tag=f"{h}{p}{slot}{'e' if early else ''}"
                mark=len(a.l)
                a(f"s_cmp_gt_u32 s{H+slot}, {cap}\ns_cbranch_scc1 K3_X{tag}\nK3_R{tag}:")
                side.append((tag,H+slot,I+pb,cap,nr,accq(p,slot),RB[i%len(RB)],base))
                if p>0: pend=slot
        if p>0: a("s_nop 5"); flush(p,pend)
    def sidepath(tag,np_,I,cap,n,acc,b,base):
        a(f"K3_X{tag}:")
        for k in range(cap,n):
            issue(I+k,b,base); a("s_waitcnt lgkmcnt(0)"); mf(acc,b,False)
            a(f"s_cmp_le_u32 s{np_}, {k+1}\ns_cbranch_scc1 K3_Y{tag}")
        a(f"""s_mov_b32 s{S_T}, s{np_+16}
          s_sub_u32 s{S_T+1}, s{np_}, {n}
          v_lshrrev_b32 v{V_T0}, 2, v{V_L16}
          K3_O{tag}:
          buffer_load_dword v{V_T1}, v{V_T0}, s[{S_OVF}:{S_OVF+3}], s{S_T} offen
          s_add_u32 s{S_T}, s{S_T}, 256
          s_waitcnt vmcnt(0)""")
        issue(V_T1,b,base); a("s_waitcnt lgkmcnt(0)"); mf(acc,b,False)
        a(f"""s_sub_u32 s{S_T+1}, s{S_T+1}, 1
          s_cmp_lg_u32 s{S_T+1}, 0
          s_cbranch_scc1 K3_O{tag}
          K3_Y{tag}:
          s_branch K3_R{tag}""")
    def readout(c0reg,two,climit):
        l=a.label("RO")
        a(f"""s_lshl_b32 s{S_T}, s{c0reg}, 10
          v_add_u32 v{V_T0}, s{S_T}, v{V_L16}
          v_add_u32 v{V_T1}, {LDS_OUT}, v{V_T0}
          ds_read_b128 v[{V_B}:{V_B+3}], v{V_T1}
          s_cmp_ge_u32 s{c0reg}, {climit-two}
          s_cbranch_scc1 {l}
          ds_read_b128 v[{V_B+4}:{V_B+7}], v{V_T1} offset:{two*1024}
          s_mov_b32 s{S_T+1}, {two*1024}
          s_waitcnt lgkmcnt(0)
          buffer_store_dwordx4 v[{V_B+4}:{V_B+7}], v{V_T0}, s[{S_OUT}:{S_OUT+3}], s{S_T+1} offen{SCD}
          {l}:
          s_waitcnt lgkmcnt(0)
          buffer_store_dwordx4 v[{V_B}:{V_B+3}], v{V_T0}, s[{S_OUT}:{S_OUT+3}], 0 offen{SCD}""")
    side=[]
    st=Stamper(a,"k3" in STAMP)
    a("K3_GOWN:\ns_bitcmp1_b32 s4, 0\ns_cbranch_scc1 K3_GB")
    for h in range(2):
        if h==1: a("K3_GB:")
        st.n=0
        phase(h,0,side)
        st()
        arrive(C_L)
        a(f"s_cmp_eq_u32 s{S_PEND}, 0\ns_cbranch_scc1 K3_NP{h}\ns_mov_b32 s{S_PEND}, 0"); pubflag(0); a("s_mov_b64 exec, -1"); ('l' in os.environ.get('RWM','')) and rewarm(True); a(f"K3_NP{h}:")
        spin(G_S0,2); late_loads(2); st()
        phase(h,1,side); st(); handover(None,None,0); late_loads(3); st()
        a(f"s_cmp_lt_u32 s4, {2*NE}\ns_cbranch_scc1 K3_EA{h}")
        for e in (0,1):
            if e: a(f"K3_EA{h}:"); st.n=4
            phase(h,2,side,e); st(); handover(None,None,1); a("s_waitcnt vmcnt(0)"); st()
            if e: a(f"K3_EB{h}:")
            elif MIDE: a(f"s_cmp_lt_u32 s4, {2*(NE+NM_)}\ns_cbranch_scc1 K3_EB{h}")
            phase(h,3,side,e)
            a(f"s_waitcnt lgkmcnt(0)"); st()
            if not (h==1 and e==1): a("s_branch K3_GE")
    a("K3_GE:")
    arrive(C_4)
    a(f"""s_setprio 3
      s_lshr_b32 s10, s4, 1
      s_lshl_b32 s{S_T}, s10, 2
      s_add_u32 s{S_T}, s{S_T}, {LDS_CNT+C_E2}
      v_mov_b32 v{V_T0}, s{S_T}
      s_mov_b64 exec, 1
      ds_add_rtn_u32 v{V_T1}, v{V_T0}, v{V_T1}
      s_mov_b64 exec, -1
      s_mul_i32 s{S_T}, s10, 3584
      v_add_u32 v{V_B+8}, s{S_T}, v{V_L16}
      v_add_u32 v{V_B+9}, {LDS_OUT}, v{V_B+8}
      s_waitcnt lgkmcnt(0)
      v_readfirstlane_b32 s{S_T+1}, v{V_T1}
      s_bitcmp1_b32 s{S_T+1}, 0
      s_cbranch_scc0 K3_E2""")
    for k in range(4): a(f"ds_read_b128 v[{V_ACC+4*k}:{V_ACC+4*k+3}], v{V_B+9} offset:{1024*k}")
    for k in range(4):
        a(f"s_waitcnt lgkmcnt({3-k})")
        if k==3: a("s_mov_b32 exec_hi, 0")
        a(f"buffer_store_dwordx4 v[{V_ACC+4*k}:{V_ACC+4*k+3}], v{V_B+8}, s[{S_OUT}:{S_OUT+3}], 0 offen offset:{1024*k}{SCD}")
    a(f"""s_mov_b64 exec, -1
      s_mov_b32 s{S_PEND}, 1
      s_cmp_ge_u32 s4, {2*(NE+NM_)}
      s_cbranch_scc1 K3_E2
      s_mov_b32 s{S_PEND}, 0""")
    pubflag(1)
    a("s_mov_b64 exec, -1")
    if 'e' in os.environ.get('RWM',''): rewarm(False)
    a("K3_E2:\ns_setprio 0"); st()
    a(f"s_cmp_eq_u32 s{S_HOP}, {nhop-1}\ns_cbranch_scc1 K3_END")
    spin(C_4,14); st()
    a(f"""s_add_u32 s{S_HOP}, s{S_HOP}, 1
      s_add_u32 s{S_OUT}, s{S_OUT}, {TSTR}
      s_addc_u32 s{S_OUT+1}, s{S_OUT+1}, 0
      s_add_u32 s{S_TAB}, s{S_TAB}, {TSTR}
      s_addc_u32 s{S_TAB+1}, s{S_TAB+1}, 0
      s_mov_b32 s10, s{S_B0}
      s_mov_b32 s{S_B0}, s{S_B1}
      s_mov_b32 s{S_B1}, s10"""); st()
    if st.on:
        a(f"s_cmp_lg_u32 s{S_HOP}, {STH}\ns_cbranch_scc1 K3_GOWN\ns_waitcnt lgkmcnt(0)")
        a("s_mov_b32 s92, s98\ns_mov_b32 s94, s96"); st.n=12
        st.dump(77,0,0); st.dump(77,int(os.environ.get('W1',12)),16); a("s_mov_b64 exec, -1")
    a("s_branch K3_GOWN")
    for x in side: sidepath(*x)
    a("K3_HELPER:\ns_setprio 3"); flag_srd()
    a(f"""v_mov_b32 v9, 0
      v_lshlrev_b32 v10, 2, v2
      v_add_u32 v11, {ZT*8}, v10
      ds_write_b32 v11, v9
      v_add_u32 v11, {TB_+ZT*8}, v10
      ds_write_b32 v11, v9
      v_add_u32 v11, {LDS_OUT+ZO*8}, v10
      ds_write_b32 v11, v9
      v_and_b32 v11, 0x7c, v10
      v_add_u32 v11, {LDS_CNT}, v11
      ds_write_b32 v11, v9
      s_sub_u32 s4, s3, 14
      s_lshl_b32 s4, s4, 2
      s_cmp_eq_u32 s3, 14
      s_cselect_b32 s6, 15, 7""")
    for k in range(4):
        a(f"s_add_u32 s10, s4, {k}\ns_cmp_ge_u32 s10, s5\ns_addc_u32 s10, s10, 0\ns_and_b32 s10, s10, 7\ns_lshl_b32 s{56+k}, s10, 7")
    a("s_waitcnt vmcnt(0) lgkmcnt(0)\ns_barrier\ns_branch K3_HF0")
    def pissue(off,nd):
        w=2 if nd<=2 else 4
        for k in range(4): a(f"s_load_dwordx{w} s[{32+4*k}:{32+4*k+w-1}], s[60:61], s{56+k} glc")
    def pstart(off,nd):
        a(f"s_add_u32 s60, s{S_FLAG}, {off}\ns_addc_u32 s61, s{S_FLAG+1}, 0"); pissue(off,nd)
    def pfill(seg,base,off,nd,dofill=True):
        l=a.label("PL")
        a(f"""s_mov_b32 s62, s{S_HOP}
          s_mov_b32 s7, s6
          s_mov_b32 s63, {SPIN}
          s_branch {l}_W
          {l}:""")
        pissue(off,nd)
        a(f"{l}_W:\ns_sub_u32 s63, s63, 1\ns_cmp_eq_u32 s63, 0\ns_cselect_b32 s62, 0, s62\ns_waitcnt lgkmcnt(0)")
        for k in range(4):
            for d in range(1,nd): a(f"s_min_u32 s{32+4*k}, s{32+4*k}, s{32+4*k+d}")
            a(f"""s_bitcmp0_b32 s7, {k}
              s_cbranch_scc1 {l}_{k}
              s_cmp_lt_u32 s{32+4*k}, s62
              s_cbranch_scc1 {l}_{k}
              s_bitset0_b32 s7, {k}""")
            if dofill: a(f"s_add_u32 s10, s4, {k}"); seg_fill(10,seg,base,0,NCH[seg])
            a(f"{l}_{k}:")
        a(f"s_cmp_lg_u32 s7, 0\ns_cbranch_scc1 {l}")
    TW=int(os.environ.get("TW",1)); TWB=int(os.environ.get("TWB",0))
    def tokwarm(node,nk,withx):
        a(f"""s_load_dwordx2 s[44:45], s[0:1], 0
          v_lshrrev_b32 v20, 7, v{V_L16}
          v_and_b32 v21, 127, v{V_L16}
          s_mov_b32 s10, {GSTR}
          v_mad_u32_u24 v20, v20, s10, v21
          s_mul_i32 s10, s2, {96*8}
          s_sub_u32 s11, s3, 14
          s_mul_i32 s11, s11, {nk*TSTR}
          s_add_u32 s10, s10, s11
          s_add_u32 s10, s10, {TSTR+node*8}""")
        a.srd(40,8,9,8*TSTR)
        for i in range(4*nk):
            a(f"buffer_load_dwordx4 v[24:27], v20, s[40:43], s10 offen")
            if i<4*nk-1: a(f"s_add_u32 s10, s10, {8*GSTR}")
        a(f"""s_waitcnt lgkmcnt(0)
          s_mov_b32 s46, {N*256}
          s_mov_b32 s47, 0x20000
          s_mul_i32 s10, s2, {96*256}
          s_sub_u32 s11, s3, 14
          s_lshl_b32 s11, s11, 11
          s_add_u32 s10, s10, s11
          s_add_u32 s10, s10, {node*256}""")
        for i in range(2): a(f"buffer_load_dwordx4 v[24:27], v{V_L16}, s[44:47], s10 offen offset:{1024*i}")
    st=Stamper(a,"k3" in STAMP)
    NC=7-NE-NM_
    a("K3_HL:"); spin(C_4,14,0); st()
    pfill(1,S_B1,1024,NM_); st(); pstart(32,NC); a("s_waitcnt vmcnt(0)"); st(); arrive(G_S1)
    pfill(2,S_B0,32,NC,False)
    spin(C_0,14); st()
    for k in range(4):
        if k==3: a("s_cmp_eq_u32 s3, 15\ns_cbranch_scc1 K3_H3")
        a(f"s_add_u32 s10, s4, {k}"); seg_fill(10,2,S_B0,0,NCH[2])
    a("K3_H3:"); st(); a("s_waitcnt vmcnt(0)"); st(); arrive(G_S2)
    a(f"s_cmp_eq_u32 s{S_HOP}, {nhop-1}\ns_cbranch_scc1 K3_WARM")
    if TWB:
        a(f"s_cmp_lg_u32 s{S_HOP}, {nhop-2}\ns_cbranch_scc1 K3_NWB"); tokwarm(16,2,True); a("K3_NWB:")
    spin(C_1,14); st()
    a(f"""s_add_u32 s{S_HOP}, s{S_HOP}, 1
      s_mov_b32 s10, s{S_B0}
      s_mov_b32 s{S_B0}, s{S_B1}
      s_mov_b32 s{S_B1}, s10
      s_add_u32 s{S_TAB}, s{S_TAB}, {TSTR}
      s_addc_u32 s{S_TAB+1}, s{S_TAB+1}, 0
      K3_HF0:""")
    pstart(0,NE); pfill(0,S_B0,0,NE); st(); pstart(1024,NM_); a("s_waitcnt vmcnt(0)"); st(); arrive(G_S0)
    if st.on:
        a(f"s_cmp_lg_u32 s{S_HOP}, {STH}\ns_cbranch_scc1 K3_HL\ns_waitcnt lgkmcnt(0)")
        st.dump(77,15,32); st.dump(77,14,48); a(f"s_mov_b64 exec, -1")
    a("s_branch K3_HL")
    a("K3_WARM:")
    if TW: tokwarm(0,3,True)
    if os.environ.get("W4","1")=="1":
        a(f"""s_cmp_ge_u32 s2, 64
          s_cbranch_scc1 K3_END
          s_cmp_eq_u32 s3, 14
          s_cbranch_scc1 K3_END
          s_mov_b32 v0_dummy, 0""".replace("s_mov_b32 v0_dummy, 0",f"v_lshrrev_b32 v0, 4, v{V_L16}"))
        code_prefetch(a,"attn_kernel","CODE_END",5,8,2,40,20)
        a.srd(40,8,9,69*1024,OFF_WF)
        a("s_lshl_b32 s44, s5, 10")
        for i in range(9): a(f"buffer_load_dwordx4 v[24:27], v20, s[40:43], s44 offen\ns_add_u32 s44, s44, 8192")
    a("K3_END:\ns_endpgm")
    return a.text(), desc(name,128,102 if STAMP else 80)
```

```python
N=25000; NP=25088; E=400000
GSTR=NP*8
TSTR=32*GSTR
OFF_G=0
OFF_EDG=8*TSTR
OFF_OFFS=0x3290000
OFF_BLOB=0x3A00000
OFF_SCALE=0x34B0000
OFF_HDR=0x34D0000
OFF_FLAG=0x34E0000
OFF_WF=0x34F0000
OFF_WT=0x3510000
WT_CS=131072; WT_R1=WT_CS+8192; WT_R2=WT_R1+8192; WT_SIZE=WT_R2+8192
OFF_EDG2=0x3C40000
OFF_OVF=0x4100000
OVF_SIZE=0x3400000
WS_SIZE=268435456
PW=100
PE=4000
NBIN=168
PIECE=3136
import os
SEGV=os.environ.get('SEGV','a')
SEG={'a':[0,896,2048,3136],'b':[0,1152,2144,3136]}[SEGV]
NCH={'a':(7,9,9),'b':(9,8,8)}[SEGV]
NE={'a':2,'b':3}[SEGV]
TST=1152
ZT=7*TST
TB_=(ZT+32)*8
LDS_OUT=2*TB_
ZO=PIECE
LDS_CNT=LDS_OUT+(PIECE+32)*8
BLOBSZ=20480

class Asm:
    gid=0
    def __init__(self): self.l=[]; self.uid=0
    def __call__(self,s=""):
        for ln in s.split("\n"):
            ln=ln.strip()
            if ln: self.l.append(ln if ln.endswith(":") else "    "+ln)
    def label(self,p="L"):
        Asm.gid+=1; return f"{p}_{Asm.gid}"
    def srd(self,d,lo,hi,size,off=0):
        if off:
            self(f"s_add_u32 s{d}, s{lo}, {off:#x}\ns_addc_u32 s{d+1}, s{hi}, 0")
        else:
            self(f"s_mov_b32 s{d}, s{lo}\ns_mov_b32 s{d+1}, s{hi}")
        self(f"s_mov_b32 s{d+2}, {size:#x}\ns_mov_b32 s{d+3}, 0x20000")
    def text(self): return "\n".join(self.l)+"\n"

def desc(name,vgpr,sgpr=102,accum=None):
    accum = accum or ((vgpr+3)//4*4)
    return f""".section .rodata,"a"
.p2align 6
.amdhsa_kernel {name}
  .amdhsa_next_free_vgpr {vgpr}
  .amdhsa_next_free_sgpr {sgpr}
  .amdhsa_accum_offset {accum}
  .amdhsa_group_segment_fixed_size 0
  .amdhsa_kernarg_size 96
  .amdhsa_user_sgpr_count 2
  .amdhsa_user_sgpr_kernarg_segment_ptr 1
  .amdhsa_system_sgpr_workgroup_id_x 1
  .amdhsa_float_denorm_mode_32 3
.end_amdhsa_kernel
"""
def head(name):
    return f""".text
.globl {name}
.p2align 8
.type {name},@function
{name}:
"""
def wave_scan_u32(a,v):
    for sh in (1,2,4,8):
        a(f"s_nop 1\nv_add_u32_dpp v{v}, v{v}, v{v} row_shr:{sh} row_mask:0xf bank_mask:0xf bound_ctrl:0")
    a(f"s_nop 1\nv_add_u32_dpp v{v}, v{v}, v{v} row_bcast:15 row_mask:0xa bank_mask:0xf")
    a(f"s_nop 1\nv_add_u32_dpp v{v}, v{v}, v{v} row_bcast:31 row_mask:0xc bank_mask:0xf")

import os
STAMP=os.environ.get("STAMP","")
class Stamper:
    def __init__(self,a,on): self.a=a; self.on=on; self.n=0
    def __call__(self):
        if not self.on: return
        if "fine" in os.environ.get("K3X",""):
            self.n=14; return
        self.a(f"s_memtime s[{72+2*self.n}:{73+2*self.n}]"); self.n+=1
    def dump(self,wg,wave,base=0,wavereg=3):
        if not self.on: return
        a=self.a; l=a.label("ST")
        a(f"""s_cmp_lg_u32 s{wavereg}, {wave}
          s_cbranch_scc1 {l}
          s_load_dwordx2 s[100:101], s[0:1], 88
          s_lshl_b32 vcc_lo, s2, 8
          s_add_u32 vcc_lo, vcc_lo, {OFF_ST:#x}
          s_waitcnt lgkmcnt(0)
          s_add_u32 s100, s100, vcc_lo
          s_addc_u32 s101, s101, 0
          s_mov_b64 exec, 1""")
        for i in range(self.n):
            a(f"v_mov_b32 v0, s{72+2*i}\nv_mov_b32 v1, {4*(base+i)}\nglobal_store_dword v1, v0, s[100:101]")
        a(f"s_waitcnt vmcnt(0)\n{l}:")
OFF_ST=0x7F00000

BAL=os.environ.get('BAL','1')=='1'
ROWS={0:[6,4,1],1:[5,3,2,0]} if BAL else {0:[6,3,1],1:[5,4,2,0]}
if SEGV=='a':
    REGS=[{0:[6,6,6],1:[5,5,5,5]},{0:[9,4,3],1:[5,5,3,3]},{0:[12,6,6],1:[7,6,6,5]},{0:[11,5,4],1:[7,5,4,4]}]
    if BAL: REGS=[REGS[0],{0:[8,5,3],1:[6,4,3,3]},{0:[11,7,6],1:[8,6,5,5]},{0:[10,6,4],1:[7,5,4,4]}]
    UNITS=[5,4,6,5]; UOFF=[0,5,9,15]
else:
    REGS=[{0:[6,6,6],1:[5,5,5,5]}]+[{0:[11,5,4],1:[7,6,4,3]}]*3
    UNITS=[5,5,5,5]; UOFF=[0,5,10,15]
E0=[0,0,1,1]
LAY=[{h:[(ROWS[h][i],sum(REGS[p][h][:i]),REGS[p][h][i]) for i in range(len(ROWS[h]))] for h in (0,1)} for p in range(4)]
SORT=os.environ.get("SORT","class")
CAPS={"class":[[3]*7,[2,2,3,3,4,4,6],[3,3,4,4,5,5,7],[3,3,4,4,5,5,7]],
      "global":[[3]*7,[1,2,2,2,3,3,6],[2,3,3,3,4,5,7],[2,3,3,3,4,4,7]]}[SORT]
if SEGV=='b': CAPS=[[3]*7,[2,3,3,4,4,5,7],[3,3,3,4,4,5,7],[3,3,3,4,4,5,7]]
if os.environ.get("CAPS"): CAPS=eval(os.environ["CAPS"])
OFF_DST=0x3540000

def code_prefetch(a,first,last,widx,nw,per,sr=40,vt=20):
    l=a.label("CP")
    a(f"""s_getpc_b64 s[{sr}:{sr+1}]
      {l}:
      s_add_u32 s{sr}, s{sr}, {first}-{l}
      s_addc_u32 s{sr+1}, s{sr+1}, 0
      s_mov_b32 s{sr+2}, {last}-{first}
      s_mov_b32 s{sr+3}, 0x20000
      v_and_b32 v{vt}, 63, v0
      v_lshlrev_b32 v{vt}, 4, v{vt}
      s_lshl_b32 s{sr+4}, s{widx}, 10""")
    for i in range(per):
        a(f"buffer_load_dwordx4 v[{vt+4}:{vt+7}], v{vt}, s[{sr}:{sr+3}], s{sr+4} offen\ns_add_u32 s{sr+4}, s{sr+4}, {nw*1024}")

BL4=os.environ.get('BL4','1')=='1'
DIRECT=os.environ.get('DIRECT','0')=='1'
```

```python
from common import *
import math
NTE=os.environ.get('NTE',' nt'); NTX=os.environ.get('NTX','')
TJ=int(os.environ.get('TJ',13)); NTW=-(-1568//TJ)
def wave_scan_f32(a,v):
    for sh in (1,2,4,8):
        a(f"s_nop 1\nv_add_f32_dpp v{v}, v{v}, v{v} row_shr:{sh} row_mask:0xf bank_mask:0xf bound_ctrl:0")
    a(f"s_nop 1\nv_add_f32_dpp v{v}, v{v}, v{v} row_bcast:15 row_mask:0xa bank_mask:0xf")
    a(f"s_nop 1\nv_add_f32_dpp v{v}, v{v}, v{v} row_bcast:31 row_mask:0xc bank_mask:0xf")
def f2u(x):
    import struct; return struct.unpack("<I",struct.pack("<f",x))[0]

def row16_reduce(a,src,dst,n):
    for i in range(n): a(f"v_add_f32_dpp v{dst+i}, v{src+i}, v{src+i} row_ror:8 row_mask:0xf bank_mask:0xf")
    for sh in (4,2,1):
        for i in range(n): a(f"v_add_f32_dpp v{dst+i}, v{dst+i}, v{dst+i} row_ror:{sh} row_mask:0xf bank_mask:0xf")

def gen_k1(name):
    a=Asm(); a.l.append(head(name))
    st=Stamper(a,"k1" in STAMP)
    st()
    a(f"""s_cmp_ge_u32 s2, {PW+32+NTW}
      s_cbranch_scc1 K1_END
      s_load_dwordx2 s[8:9], s[0:1], 88
      v_lshrrev_b32 v1, 6, v0
      v_and_b32 v2, 63, v0
      s_cmp_ge_u32 s2, {PW}
      v_readfirstlane_b32 s3, v1
      s_cbranch_scc1 K1_NOTPART""")
    a(f"""s_load_dwordx4 s[4:7], s[0:1], 8
      v_lshlrev_b32 v3, 2, v0
      v_mov_b32 v4, 0
      ds_write_b32 v3, v4
      v_lshlrev_b32 v3, 4, v0
      s_mul_i32 s10, s2, {PE*4}
      s_waitcnt lgkmcnt(0)""")
    a.srd(12,4,5,E*4); a.srd(16,6,7,E*4)
    a(f"""v_cmp_gt_u32 vcc, {PE//4}, v0
      s_and_saveexec_b64 s[20:21], vcc
      buffer_load_dwordx4 v[8:11], v3, s[16:19], s10 offen{NTE}
      buffer_load_dwordx4 v[4:7], v3, s[12:15], s10 offen{NTE}
      s_movk_i32 s22, {SEG[1]}
      s_movk_i32 s23, {SEG[2]}
      s_movk_i32 s24, -448
      s_movk_i32 s25, {-PIECE}
      s_movk_i32 s42, {TST}
      v_mov_b32 v28, 1
      v_mov_b32 v29, {SEG[1]}
      v_mov_b32 v30, {SEG[2]}
      s_barrier"""); st()
    a("s_waitcnt vmcnt(1)"); st()
    R4=range(4)
    for i in R4: a(f"v_lshrrev_b32 v{12+i}, 6, v{8+i}")
    for i in R4: a(f"v_mul_u32_u24 v{32+i}, 1338, v{12+i}")
    for i in R4: a(f"v_mul_u32_u24 v{12+i}, 9363, v{12+i}")
    for i in R4: a(f"v_lshrrev_b32 v{32+i}, 16, v{32+i}")
    for i in R4: a(f"v_lshrrev_b32 v{12+i}, 16, v{12+i}")
    for i in R4: a(f"v_mad_i32_i24 v{8+i}, v{12+i}, s24, v{8+i}")
    for i in R4: a(f"v_lshl_add_u32 v{12+i}, v{12+i}, 1, v{12+i}")
    a("s_waitcnt vmcnt(0)")
    for i in R4: a(f"v_lshrrev_b32 v{36+i}, 6, v{4+i}")
    for i in R4: a(f"v_mul_u32_u24 v{36+i}, 1338, v{36+i}")
    for i in R4: a(f"v_lshrrev_b32 v{36+i}, 16, v{36+i}")
    for i in R4: a(f"v_mad_i32_i24 v{4+i}, v{36+i}, s25, v{4+i}")
    for i in R4: a(f"v_cmp_le_u32 s[{26+2*i}:{27+2*i}], s22, v{4+i}")
    for i in R4: a(f"v_cmp_le_u32 s[{34+2*i}:{35+2*i}], s23, v{4+i}")
    for i in R4: a(f"v_cndmask_b32 v{16+i}, 0, v29, s[{26+2*i}:{27+2*i}]")
    for i in R4: a(f"v_cndmask_b32 v{40+i}, 0, 1, s[{26+2*i}:{27+2*i}]")
    for i in R4: a(f"v_cndmask_b32 v{16+i}, v{16+i}, v30, s[{34+2*i}:{35+2*i}]")
    for i in R4: a(f"v_cndmask_b32 v{40+i}, v{40+i}, 2, s[{34+2*i}:{35+2*i}]")
    for i in R4: a(f"v_cmp_gt_u32 s[{26+2*i}:{27+2*i}], v{36+i}, v{32+i}")
    for i in R4: a(f"v_cmp_eq_u32 s[{34+2*i}:{35+2*i}], v{36+i}, v{32+i}")
    for i in R4: a(f"v_sub_u32 v{16+i}, v{4+i}, v{16+i}")
    for i in R4: a(f"v_subb_co_u32 v{36+i}, vcc, v{36+i}, 0, s[{26+2*i}:{27+2*i}]")
    for i in R4: a(f"v_or_b32 v{44+i}, 0x200, v{8+i}")
    for i in R4: a(f"v_mad_u32_u24 v{16+i}, v{36+i}, s42, v{16+i}")
    for i in R4: a(f"v_cndmask_b32 v{40+i}, v{40+i}, 0, s[{34+2*i}:{35+2*i}]")
    for i in R4: a(f"v_cndmask_b32 v{8+i}, v{8+i}, v{44+i}, s[{34+2*i}:{35+2*i}]")
    for i in R4: a(f"v_cndmask_b32 v{4+i}, v{16+i}, v{4+i}, s[{34+2*i}:{35+2*i}]")
    for i in R4: a(f"v_add_lshl_u32 v{12+i}, v{12+i}, v{40+i}, 2")
    for i in R4: a(f"ds_add_rtn_u32 v{16+i}, v{12+i}, v28")
    for i in R4: a(f"v_lshl_or_b32 v{4+i}, v{8+i}, 16, v{4+i}")
    st()
    a(f"""s_waitcnt lgkmcnt(0)
      s_barrier"""); st()
    a(f"""s_cmp_lg_u32 s3, 0
      s_cbranch_scc1 K1_P_SKIPSCAN
      v_lshlrev_b32 v20, 4, v2
      ds_read_b128 v[24:27], v20
      s_lshl_b32 s11, s2, 2
      s_add_u32 s44, s8, {OFF_OFFS:#x}
      s_addc_u32 s45, s9, 0
      s_mov_b32 s46, {NBIN*512}
      s_mov_b32 s47, 0x20000
      v_lshlrev_b32 v23, 11, v2
      s_waitcnt lgkmcnt(0)
      v_add_u32 v21, v24, v25
      v_add3_u32 v21, v21, v26, v27
      v_mov_b32 v22, v21""")
    wave_scan_u32(a,22)
    a(f"""v_sub_u32 v32, v22, v21
      v_add_u32 v33, v32, v24
      v_add_u32 v34, v33, v25
      v_add_u32 v35, v34, v26
      ds_write_b128 v20, v[32:35] offset:1024
      v_max_u32 v40, v24, v25
      v_max3_u32 v40, v40, v26, v27
      ds_max_u32 v28, v40 offset:1019
      v_lshl_or_b32 v36, v24, 16, v32
      v_lshl_or_b32 v37, v25, 16, v33
      v_lshl_or_b32 v38, v26, 16, v34
      v_lshl_or_b32 v39, v27, 16, v35
      buffer_store_dword v36, v23, s[44:47], s11 offen sc1
      buffer_store_dword v37, v23, s[44:47], s11 offen offset:512 sc1
      buffer_store_dword v38, v23, s[44:47], s11 offen offset:1024 sc1
      buffer_store_dword v39, v23, s[44:47], s11 offen offset:1536 sc1
      s_waitcnt lgkmcnt(0)
      K1_P_SKIPSCAN:
      s_barrier"""); st()
    if DIRECT:
        for i in range(4): a(f"ds_read_b32 v{20+i}, v{12+i} offset:1024")
        a(f"""ds_read_b32 v24, v28 offset:1019
          s_mul_i32 s11, s2, {NBIN*256}
          s_add_u32 s16, s8, s11
          s_addc_u32 s17, s9, 0
          s_add_u32 s16, s16, {OFF_EDG2:#x}
          s_addc_u32 s17, s17, 0
          s_mov_b32 s18, {NBIN*256}""")
        a.srd(12,8,9,E*4,OFF_EDG)
        for i in range(4):
            a(f"""v_cmp_gt_u32 vcc, 64, v{16+i}
              v_lshlrev_b32 v{33+2*i}, 6, v{12+i}
              v_mov_b32 v{32+2*i}, v{4+i}
              v_lshl_add_u32 v{33+2*i}, v{16+i}, 2, v{33+2*i}
              v_cndmask_b32 v{33+2*i}, -1, v{33+2*i}, vcc""")
        for i in range(4):
            a(f"s_waitcnt lgkmcnt({4-i+i})\nv_add_lshl_u32 v{20+i}, v{20+i}, v{16+i}, 3\nds_write_b64 v{20+i}, v[{32+2*i}:{33+2*i}] offset:2048")
        a(f"""v_lshlrev_b32 v3, 3, v0
          s_waitcnt lgkmcnt(0)
          v_readfirstlane_b32 s11, v24
          s_barrier""")
        for i in range(4): a(f"ds_read_b64 v[{32+2*i}:{33+2*i}], v3 offset:{2048+8000*i}")
        for i in range(4): a(f"s_waitcnt lgkmcnt({3-i})\nbuffer_store_dword v{32+2*i}, v{33+2*i}, s[16:19], 0 offen")
        a(f"s_cmp_le_u32 s11, 64\ns_cbranch_scc1 K1_P_END\nv_lshlrev_b32 v3, 2, v0")
        for i in range(4): a(f"buffer_store_dword v{32+2*i}, v3, s[12:15], s10 offen\ns_add_u32 s10, s10, 4000")
        a("K1_P_END:"); st()
    else:
        for i in range(4): a(f"ds_read_b32 v{20+i}, v{12+i} offset:1024")
        a.srd(12,8,9,E*4,OFF_EDG)
        for i in range(4):
            a(f"s_waitcnt lgkmcnt({3-i})\nv_add_lshl_u32 v{20+i}, v{20+i}, v{16+i}, 2")
        for i in range(4): a(f"ds_write_b32 v{20+i}, v{4+i} offset:2048")
        a(f"""s_waitcnt lgkmcnt(0)
          s_barrier
          ds_read_b128 v[4:7], v3 offset:2048
          s_waitcnt lgkmcnt(0)
          buffer_store_dwordx4 v[4:7], v3, s[12:15], s10 offen"""); st()
    if st.on: a("s_waitcnt vmcnt(0)"); st(); a("s_waitcnt lgkmcnt(0)"); st.dump(0,0,0)
    a("s_endpgm")
    a("K1_NOTPART:")
    a(f"""K1_WEIGHTS:
      s_cmp_lg_u32 s2, {PW}
      s_cbranch_scc1 K1_W1
      v_mov_b32 v12, 0
      v_mov_b32 v13, 0
      v_mov_b32 v14, 0
      v_mov_b32 v15, 0
      v_lshlrev_b32 v16, 6, v0
      s_waitcnt lgkmcnt(0)""")
    a.srd(28,8,9,65536,OFF_FLAG)
    for i in range(4): a(f"buffer_store_dwordx4 v[12:15], v16, s[28:31], 0 offen offset:{16*i}")
    a(f"""
      K1_W1:
      s_cmp_ge_u32 s2, {PW+32}
      s_cbranch_scc1 TR_START
      s_cmp_lg_u32 s3, 0
      s_cbranch_scc1 K1_CP
      s_load_dwordx8 s[36:43], s[0:1], 32
      s_load_dwordx2 s[6:7], s[0:1], 64
      s_sub_u32 s4, s2, {PW}
      s_bfe_u32 s10, s4, 0x30001
      s_and_b32 s11, s4, 1""")
    lane_setup(a)
    a("s_waitcnt lgkmcnt(0)")
    a.srd(20,8,9,WT_SIZE,OFF_WT)
    A0=32; B0=16; ACC=96; T=32
    a("s_cmp_ge_u32 s4, 16\ns_cbranch_scc1 K1_WV")
    a.srd(24,36,37,32768); a.srd(28,38,39,32768)
    for s_ in range(4): a(f"buffer_load_dwordx4 v[{B0+4*s_}:{B0+4*s_+3}], v3, s[28:31], s17 offen offset:{64*s_}")
    a("s_branch K1_WA\nK1_WV:")
    a.srd(24,40,41,32768); a.srd(28,42,43,32768); a.srd(32,6,7,256)
    a(f"""v_lshrrev_b32 v15, 1, v8
      buffer_load_ushort v10, v15, s[32:35], 0 offen
      v_lshl_add_u32 v15, v5, 11, v15""")
    for s_ in range(4):
        a(f"s_mov_b32 s18, {8192*s_}")
        for j in range(8):
            a(f"buffer_load_ushort v{96+8*s_+j}, v15, s[28:31], s18 offen offset:{256*j}")
    a("K1_WA:")
    for i in range(4):
        so="s15" if i<2 else "s16"
        for s_ in range(4):
            a(f"buffer_load_dwordx4 v[{A0+16*i+4*s_}:{A0+16*i+4*s_+3}], v3, s[24:27], {so} offen offset:{(i&1)*1024+64*s_}")
    a(f"""s_lshl_b32 s18, s4, 12
      s_lshl_b32 s19, s4, 8
      s_add_u32 s19, s19, {WT_CS}
      v_lshlrev_b32 v13, 2, v2
      v_lshlrev_b32 v14, 6, v5
      s_waitcnt vmcnt(0)
      s_cmp_lt_u32 s4, 16
      s_cbranch_scc1 K1_WB""")
    for k in range(16): a(f"v_lshl_or_b32 v{B0+k}, v{97+2*k}, 16, v{96+2*k}")
    a("s_nop 1\nK1_WB:")
    for s_ in range(4):
        for i in range(4):
            c = "0" if s_==0 else f"v[{ACC+4*i}:{ACC+4*i+3}]"
            a(f"v_mfma_f32_16x16x32_bf16 v[{ACC+4*i}:{ACC+4*i+3}], v[{A0+16*i+4*s_}:{A0+16*i+4*s_+3}], v[{B0+4*s_}:{B0+4*s_+3}], {c}")
    a("s_nop 7")
    for i in range(4): a(f"buffer_store_dwordx4 v[{ACC+4*i}:{ACC+4*i+3}], v11, s[20:23], s18 offen offset:{1024*i}")
    a(f"v_add_f32 v12, v{ACC}, v{ACC+1}")
    for i in range(2,16): a(f"v_add_f32 v12, v12, v{ACC+i}")
    a("buffer_store_dword v12, v13, s[20:23], s19 offen")
    a("v_lshlrev_b32 v10, 16, v10")
    for i in range(16): a(f"v_mul_f32 v{64+i}, v10, v{ACC+i}")
    row16_reduce(a,ACC,T,16); row16_reduce(a,64,48,16)
    a(f"""s_add_u32 s19, s19, 8192
      s_add_u32 s18, s19, {8192-4096}
      s_mov_b32 exec_lo, 0x00010001
      s_mov_b32 exec_hi, 0x00010001""")
    for i in range(4): a(f"buffer_store_dwordx4 v[{T+4*i}:{T+4*i+3}], v14, s[20:23], s19 offen offset:{16*i}")
    a("s_cmp_lt_u32 s4, 16\ns_cbranch_scc1 K1_END")
    for i in range(4): a(f"buffer_store_dwordx4 v[{48+4*i}:{48+4*i+3}], v14, s[20:23], s18 offen offset:{16*i}")
    a("K1_END:\ns_endpgm\nK1_CP:")
    if os.environ.get("CPF","1")=="1":
        a("s_sub_u32 s3, s3, 1"); code_prefetch(a,"build_kernel","CODE_END",3,15,4)
    a("s_endpgm")
    transpose(a,PW+32)
    return a.text(), desc(name,128,102 if STAMP else 64)

def lane_setup(a):
    a(f"""v_and_b32 v4, 15, v2
      v_lshrrev_b32 v5, 4, v2
      v_lshrrev_b32 v6, 2, v4
      v_and_b32 v7, 3, v4
      v_lshl_add_u32 v6, v6, 3, v7
      v_lshlrev_b32 v3, 8, v6
      v_lshl_add_u32 v3, v5, 4, v3
      s_lshr_b32 s12, s10, 1
      s_and_b32 s13, s10, 1
      s_lshl_b32 s12, s12, 5
      s_lshl_b32 s13, s13, 2
      s_add_u32 s12, s12, s13
      v_add_lshl_u32 v8, v6, s12, 2
      v_lshlrev_b32 v9, 5, v5
      s_lshl_b32 s14, s11, 8
      v_add_u32 v9, s14, v9
      v_lshlrev_b32 v11, 4, v2
      s_lshl_b32 s15, s11, 14
      s_add_u32 s16, s15, 8192
      s_lshl_b32 s17, s12, 8""")

def weights_stage2(a,first_wg):
    kappa=128**-0.5*math.log2(math.e)
    ACC=16; T=32
    a(f"""W2_START:
      s_cmp_lg_u32 s3, 0
      s_cbranch_scc1 W2_END
      s_waitcnt lgkmcnt(0)
      s_load_dwordx2 s[6:7], s[0:1], 64
      s_sub_u32 s4, s2, {first_wg}
      s_bfe_u32 s10, s4, 0x30001
      s_and_b32 s11, s4, 1""")
    lane_setup(a)
    a(f"""v_lshlrev_b32 v13, 2, v2
      v_lshlrev_b32 v14, 6, v2
      v_and_b32 v15, 3, v2
      v_lshlrev_b32 v15, 5, v15
      v_bfe_u32 v12, v2, 2, 1
      v_lshl_add_u32 v15, v12, 8, v15
      v_mov_b32 v48, 0
      v_mov_b32 v49, 0
      v_mov_b32 v50, 0
      v_mov_b32 v51, 0
      ds_write_b128 v11, v[48:51]
      ds_write_b128 v11, v[48:51] offset:1024
      s_waitcnt lgkmcnt(0)""")
    a.srd(20,8,9,WT_SIZE,OFF_WT); a.srd(24,8,9,69*1024,OFF_WF); a.srd(28,6,7,256)
    def rowsums(goff,loff,tot):
        a(f"s_mov_b32 s18, {goff}")
        for i in range(4): a(f"buffer_load_dwordx4 v[{T+4*i}:{T+4*i+3}], v14, s[20:23], s18 offen offset:{16*i}")
        a("s_waitcnt vmcnt(0)")
        for i in range(16): a(f"ds_add_f32 v15, v{T+i} offset:{loff+((i>>3)*32+((i>>2)&1)*4+(i&3))*4}")
        a(f"v_add_f32 v12, v{T}, v{T+1}")
        for i in range(2,16): a(f"v_add_f32 v12, v12, v{T+i}")
        wave_scan_f32(a,12)
        a(f"s_nop 1\nv_readlane_b32 s{tot}, v12, 63")
    a("s_cmp_eq_u32 s4, 32\ns_cbranch_scc1 W2_EXT")
    a(f"""s_lshl_b32 s18, s4, 12
      s_and_b32 s19, s4, 30
      s_lshl_b32 s19, s19, 8
      s_add_u32 s19, s19, {WT_CS}
      buffer_load_dword v52, v13, s[20:23], s19 offen
      buffer_load_dword v53, v13, s[20:23], s19 offen offset:256""")
    for i in range(4): a(f"buffer_load_dwordx4 v[{ACC+4*i}:{ACC+4*i+3}], v11, s[20:23], s18 offen offset:{1024*i}")
    a(f"""s_mov_b32 s32, 0
      s_cmp_ge_u32 s4, 16
      s_cbranch_scc1 W2_NOROW""")
    rowsums(WT_R1,0,32)
    a(f"""s_mov_b32 s33, {f2u(kappa):#x}
      s_branch W2_R2
      W2_NOROW:
      s_mov_b32 s33, 1.0
      W2_R2:
      s_waitcnt vmcnt(0) lgkmcnt(0)
      v_add_f32 v52, v52, v53
      v_xor_b32 v54, 128, v13""")
    for i in range(4): a(f"ds_read_b128 v[{T+4*i}:{T+4*i+3}], v9 offset:{((i>>1)*32+(i&1)*4)*4}")
    a(f"""ds_swizzle_b32 v53, v52 offset:0x401F
      s_waitcnt lgkmcnt(0)
      v_add_f32 v52, v52, v53
      ds_bpermute_b32 v53, v54, v52
      s_mov_b32 s34, {f2u(1/128):#x}
      s_mov_b32 s35, {f2u(-1/128):#x}
      v_mov_b32 v55, s32
      s_waitcnt lgkmcnt(0)
      v_add_f32 v52, v52, v53
      v_fma_f32 v52, v55, s34, -v52
      v_mul_f32 v52, s34, v52
      v_mul_f32 v52, s33, v52""")
    for i in range(16): a(f"v_fma_f32 v{ACC+i}, v{T+i}, s35, v{ACC+i}")
    for i in range(16): a(f"v_fma_f32 v{ACC+i}, v{ACC+i}, s33, v52")
    a("s_lshl_b32 s18, s4, 11")
    for c in range(2):
        for h in range(2):
            for p in range(2):
                a(f"v_cvt_pk_bf16_f32 v{48+4*c+2*h+p}, v{ACC+8*c+4*h+2*p}, v{ACC+8*c+4*h+2*p+1}")
        a(f"buffer_store_dwordx4 v[{48+4*c}:{51+4*c}], v11, s[24:27], s18 offen offset:{1024*c}")
    a("s_endpgm\nW2_EXT:")
    a(f"""v_lshlrev_b32 v16, 1, v2
      buffer_load_ushort v52, v16, s[28:31], 0 offen
      buffer_load_ushort v53, v16, s[28:31], 0 offen offset:128""")
    rowsums(WT_R1+4096,1024,32); rowsums(WT_R2,1536,33)
    a(f"""v_lshlrev_b32 v52, 16, v52
      v_lshlrev_b32 v53, 16, v53
      v_mov_b32 v54, 1.0
      ds_write_b32 v13, v54
      ds_write_b32 v13, v54 offset:256
      ds_write_b32 v13, v52 offset:512
      ds_write_b32 v13, v53 offset:768
      v_add_f32 v12, v52, v53
      v_mov_b32 v55, s32
      v_mov_b32 v56, s33
      v_mul_f32 v55, {f2u(-1/128):#x}, v55
      v_mul_f32 v56, {f2u(-1/128):#x}, v56
      ds_add_f32 v13, v55 offset:1024
      ds_add_f32 v13, v55 offset:1280
      ds_add_f32 v13, v56 offset:1536
      ds_add_f32 v13, v56 offset:1792""")
    wave_scan_f32(a,12)
    a(f"""s_mov_b32 s18, {68*1024}
      buffer_store_dword v12, v13, s[24:27], s18 offen
      v_lshlrev_b32 v17, 9, v7
      v_lshl_add_u32 v17, v5, 5, v17
      s_mov_b32 s18, 65536
      s_waitcnt lgkmcnt(0)""")
    for c in range(4):
        a(f"ds_read_b128 v[{T+8*c}:{T+8*c+3}], v17 offset:{128*c}\nds_read_b128 v[{T+8*c+4}:{T+8*c+7}], v17 offset:{128*c+16}")
    a("s_waitcnt lgkmcnt(0)")
    for c in range(4):
        for p in range(4): a(f"v_cvt_pk_bf16_f32 v{16+4*c+p}, v{T+8*c+2*p}, v{T+8*c+2*p+1}")
        a(f"buffer_store_dwordx4 v[{16+4*c}:{19+4*c}], v11, s[24:27], s18 offen offset:{1024*c}")
    a("W2_END:\ns_endpgm")

def transpose(a,first_wg):
    st=Stamper(a,'k1' in STAMP); st.n=1
    a(f"""TR_START:
      s_waitcnt lgkmcnt(0)
      s_load_dwordx2 s[4:5], s[0:1], 0
      s_load_dwordx2 s[6:7], s[0:1], 24
      s_sub_u32 s10, s2, {first_wg}
      s_mul_i32 s10, s10, {TJ}
      s_add_u32 s10, s10, s3
      s_cmp_ge_u32 s3, {TJ}
      s_cbranch_scc1 K1_END
      s_cmp_ge_u32 s10, 1568
      s_cbranch_scc1 K1_END
      v_lshlrev_b32 v3, 4, v2
      v_lshrrev_b32 v4, 4, v2
      v_lshlrev_b32 v5, 1, v4
      s_lshl_b32 s24, s10, 12
      s_lshl_b32 s25, s10, 5
      s_lshl_b32 s27, s10, 7
      s_lshl_b32 s11, s3, 12
      s_waitcnt lgkmcnt(0)""")
    a.srd(12,4,5,N*256); a.srd(16,6,7,N*2); a.srd(20,8,9,TSTR)
    for i in range(4): a(f"buffer_load_dwordx4 v[{8+4*i}:{11+4*i}], v3, s[12:15], s24 offen offset:{1024*i}{NTX}")
    for i in range(4): a(f"buffer_load_ushort v{32+i}, v5, s[16:19], s25 offen offset:{8*i}")
    a(f"""v_and_b32 v6, 15, v2
      v_and_b32 v7, 7, v2
      v_lshrrev_b32 v36, 1, v4
      v_xor_b32 v36, v36, v7
      v_and_b32 v37, 1, v4
      v_lshlrev_b32 v6, 8, v6
      v_lshl_add_u32 v6, v37, 3, v6
      v_add_u32 v6, s11, v6
      v_lshrrev_b32 v38, 3, v2
      v_lshrrev_b32 v39, 1, v38
      v_xor_b32 v39, v39, v7
      s_mov_b32 s26, {GSTR}
      v_mul_u32_u24 v38, s26, v38
      v_lshl_add_u32 v40, v39, 4, v38
      v_xor_b32 v41, 64, v40
      v_add_u32 v42, s11, v3
      s_mov_b32 s26, 0xffff0000""")
    st()
    if st.on: a("s_waitcnt vmcnt(0)"); st()
    for i in range(4):
        a(f"s_waitcnt vmcnt({3-i})\nv_lshlrev_b32 v{32+i}, 16, v{32+i}\nv_xor_b32 v37, {2*i}, v36\nv_lshl_add_u32 v37, v37, 4, v6")
        for j in range(4):
            r=8+4*i+j
            a(f"v_lshlrev_b32 v{24+2*j}, 16, v{r}\nv_and_b32 v{25+2*j}, s26, v{r}")
        for j in range(8): a(f"v_mul_f32 v{24+j}, v{32+i}, v{24+j}")
        for j in range(4): a(f"v_cvt_pk_bf16_f32 v{8+4*i+j}, v{24+2*j}, v{25+2*j}")
        a(f"ds_write2_b64 v37, v[{8+4*i}:{9+4*i}], v[{10+4*i}:{11+4*i}] offset1:16")
    a("s_waitcnt lgkmcnt(0)")
    for i in range(4): a(f"ds_read_b128 v[{8+4*i}:{11+4*i}], v42 offset:{1024*i}")
    for i in range(4):
        a(f"s_waitcnt lgkmcnt({3-i})\nbuffer_store_dwordx4 v[{8+4*i}:{11+4*i}], v{41 if i&1 else 40}, s[20:23], s27 offen"+os.environ.get('TRS',''))
        if i<3: a(f"s_add_u32 s27, s27, {8*GSTR}")
    st()
    if st.on: a("s_waitcnt vmcnt(0)"); st(); a("s_waitcnt lgkmcnt(0)"); st.dump(0,0,0); st.dump(0,12,16)
    a("s_endpgm")
```

```python
from common import *
L_CNT=0
L_CNT2=4096
L_CUR2=8192
L_HIST=12288
L_RMAX=12544
L_OVF=12608
L_INFO=12800
L_STG=16896
LSTR=400
L_NM=L_STG+64*LSTR
L_BM=L_NM+4096
L_LIST=L_BM+4096
L_LM=L_OVF+80
L_LC=L_OVF+72
K2_LDS=L_LIST+16*4096
GREEDY=os.environ.get('GREEDY','1')=='1'
SENT_T=ZT|(ZT<<16); SENT_O=ZO|(ZO<<16)
def lut(f,bits): return sum(f(r)<<(bits*r) for r in range(7))
def rowinfo(p):
    d={}
    for h,l in LAY[p].items():
        for s_,(r,pb,n) in enumerate(l): d[r]=(h,s_,pb,n)
    return d
RI=[rowinfo(p) for p in range(4)]
HS=lut(lambda r:RI[0][r][0]*4+RI[0][r][1],4)|(3<<28)
PB8=[lut(lambda r:RI[p][r][2]+24*RI[p][r][0],8) for p in range(4)]
CP4=[lut(lambda r:CAPS[p][r],4) for p in range(4)]
NR4=[lut(lambda r:RI[p][r][3],4) for p in range(4)]

def gen_k2(name):
    a=Asm(); a.l.append(head(name))
    st=Stamper(a,"k2" in STAMP); st.off=4
    SS=lambda: a(f"s_memtime s[{76+2*st.n}:{77+2*st.n}]") or setattr(st,"n",st.n+1) if st.on else None
    SS()
    a(f"""s_cmp_ge_u32 s2, {NBIN+33+48}
      s_cbranch_scc1 K2_END
      s_load_dwordx2 s[8:9], s[0:1], 88
      s_load_dwordx2 s[4:5], s[0:1], 24
      s_load_dwordx2 s[6:7], s[0:1], 80
      v_lshrrev_b32 v1, 6, v0
      v_and_b32 v2, 63, v0
      v_lshrrev_b32 v3, 5, v0
      v_readfirstlane_b32 s3, v1
      v_and_b32 v4, 31, v0
      s_cmp_ge_u32 s2, {NBIN+33}
      s_cbranch_scc1 K2_WARM
      s_cmp_ge_u32 s2, {NBIN}
      s_cbranch_scc1 W2_START
      s_mul_i32 s10, s2, 21846
      s_lshr_b32 s10, s10, 16
      s_mul_i32 s11, s10, 3
      s_sub_u32 s11, s2, s11
      v_lshlrev_b32 v5, 2, v3
      s_lshl_b32 s12, s2, 9
      v_lshlrev_b32 v7, 4, v0
      v_mov_b32 v8, 0
      v_mov_b32 v9, 0
      v_mov_b32 v10, 0
      v_mov_b32 v11, 0
      ds_write_b128 v7, v[8:11]
      s_and_b32 s13, s3, 3
      s_mul_i32 s13, s13, 0x80008
      s_add_u32 s14, s13, {SENT_O+0x10000:#x}
      s_add_u32 s13, s13, {SENT_T+0x10000:#x}
      v_mov_b32 v8, s13
      v_add_u32 v9, 0x20002, v8
      v_add_u32 v10, 0x40004, v8
      v_add_u32 v11, 0x60006, v8
      v_mov_b32 v20, s14
      v_add_u32 v21, 0x20002, v20
      v_add_u32 v22, 0x40004, v20
      v_add_u32 v23, 0x60006, v20
      s_min_u32 s64, s11, 1
      s_waitcnt lgkmcnt(0)""")
    a(f"s_add_u32 s16, s8, s12\ns_addc_u32 s17, s9, 0\ns_add_u32 s16, s16, {OFF_OFFS:#x}\ns_addc_u32 s17, s17, 0\ns_mov_b32 s18, {PW*4}\ns_mov_b32 s19, 0x20000"); a.srd(20,8,9,E*4,OFF_EDG); a.srd(24,4,5,N*2)
    for k in range(4):
        a(f"buffer_load_dword v{12+k}, v5, s[16:19], 0 offen offset:{128*k}")
    a(f"""s_mul_i32 s13, s10, 896
      v_lshl_add_u32 v16, v0, 1, s13
      buffer_load_ushort v16, v16, s[24:27], 0 offen
      s_cmp_ge_u32 s3, 12
      s_cbranch_scc1 K2_NOSTG
      v_mul_u32_u24 v7, {LSTR}, v2
      v_lshl_add_u32 v7, v1, 4, v7
      ds_write_b128 v7, v[8:11] offset:{L_STG}
      ds_write_b128 v7, v[20:23] offset:{L_STG+192}
      K2_NOSTG:
      v_mul_u32_u24 v17, {PE*4}, v3
      v_lshl_add_u32 v17, v4, 2, v17
      v_mov_b32 v18, 1
      v_add_u32 v19, 32, v4
      s_mov_b32 s14, 0xffff""")
    for reg,vals in ((66,[x&0xffffffff for x in PB8]),(67,[x>>32 for x in PB8]),(68,NR4),(69,UNITS),(70,UOFF),(71,CP4)):
        a(f"s_mov_b32 s{reg}, {vals[1]:#x}\ns_cmp_eq_u32 s11, 1\ns_cselect_b32 s{reg}, {vals[2]:#x}, s{reg}\ns_cmp_eq_u32 s11, 2\ns_cselect_b32 s{reg}, {vals[3]:#x}, s{reg}")
    a(f"""s_mov_b32 s48, {PB8[0]&0xffffffff:#x}
      s_mov_b32 s49, {PB8[0]>>32:#x}
      s_cmp_lt_u32 s3, 8
      s_cselect_b32 s48, s66, s48
      s_cselect_b32 s49, s67, s49
      s_cselect_b32 s50, s64, 0
      s_and_b32 s51, s3, 7
      s_lshl_b32 s51, s51, 3
      s_lshr_b64 s[48:49], s[48:49], s51
      s_lshl_b32 s48, s48, 1
      v_subrev_u32 v6, s48, v4
      v_lshlrev_b32 v6, v6, v18
      v_or_b32 v6, s50, v6
      v_lshlrev_b32 v62, 2, v0
      ds_write_b32 v62, v6 offset:{L_BM}""")
    if DIRECT:
        a.srd(56,8,9,PW*NBIN*256,OFF_EDG2)
        a(f"v_mul_u32_u24 v20, {NBIN*256}, v3\nv_lshl_add_u32 v20, v4, 2, v20\ns_lshl_b32 s13, s2, 8")
        for k in range(4):
            a(f"buffer_load_dword v{28+k}, v20, s[56:59], s13 offen\nbuffer_load_dword v{32+k}, v20, s[56:59], s13 offen offset:128\ns_add_u32 s13, s13, {32*NBIN*256}")
    for k in range(4):
        a(f"""s_waitcnt vmcnt({(4-k+8) if DIRECT else (4-k+2*k)})
          v_and_b32 v{20+k}, s14, v{12+k}
          v_lshrrev_b32 v{24+k}, 16, v{12+k}
          v_lshl_add_u32 v{20+k}, v{20+k}, 2, v17
          v_cmp_lt_u32 s[{30+2*k}:{31+2*k}], v4, v{24+k}
          v_cmp_lt_u32 s[{38+2*k}:{39+2*k}], v19, v{24+k}
""")
        if not DIRECT: a(f"""s_mov_b32 s13, {32*k*PE*4}
          buffer_load_dword v{28+k}, v{20+k}, s[20:23], s13 offen
          buffer_load_dword v{32+k}, v{20+k}, s[20:23], s13 offen offset:128""")
    a(f"""v_max_u32 v36, v24, v25
      v_max3_u32 v36, v36, v26, v27
      v_cmp_lt_u32 vcc, 64, v36
      s_waitcnt lgkmcnt(0)
      s_barrier
      s_mov_b64 s[46:47], vcc""")
    SS()
    order=[0,4,1,5,2,6,3,7]
    for n,j in enumerate(order):
        a(f"""s_waitcnt vmcnt({7-n})
          s_mov_b64 exec, s[{30+2*j}:{31+2*j}]
          {"s_cbranch_execz K2_A%d"%j if j>=3 else ""}
          v_lshrrev_b32 v{36+j}, 14, v{28+j}
          v_and_b32 v{36+j}, 0xffc, v{36+j}
          ds_add_rtn_u32 v{44+j}, v{36+j}, v18
          {"K2_A%d:"%j if j>=3 else ""}""")
    a("s_mov_b64 exec, -1")
    a(f"""s_cmp_eq_u64 s[46:47], 0
      s_cbranch_scc1 K2_NOSLOWA
      ds_write_b32 v18, v18 offset:{L_HIST-1}""")
    for k in range(4):
        a(f"""v_add_u32 v52, 64, v4
          v_add_u32 v53, 256, v{20+k}
          s_mov_b32 s13, {32*k*PE*4}
          K2_SA{k}:
          v_cmp_lt_u32 vcc, v52, v{24+k}
          s_and_saveexec_b64 s[48:49], vcc
          s_cbranch_execz K2_SA{k}_E
          buffer_load_dword v54, v53, s[20:23], s13 offen
          s_waitcnt vmcnt(0)
          v_lshrrev_b32 v54, 14, v54
          v_and_b32 v54, 0xffc, v54
          ds_add_u32 v54, v18 offset:{L_CNT2}
          s_mov_b64 exec, s[48:49]
          v_add_u32 v52, 32, v52
          v_add_u32 v53, 128, v53
          s_branch K2_SA{k}
          K2_SA{k}_E:
          s_mov_b64 exec, s[48:49]""")
    a("K2_NOSLOWA:"); SS()
    a(f"""s_waitcnt lgkmcnt(0)
      s_barrier"""); SS()
    a(f"""
      s_mul_i32 s50, s10, 9363
      s_lshr_b32 s50, s50, 16
      s_mul_i32 s50, s50, 7
      s_sub_u32 s50, s10, s50
      s_mul_i32 s50, s50, 448
      v_lshlrev_b32 v52, 2, v0
      v_add_u32 v60, s50, v0""")
    if SORT=="class":
        a(f"""s_cmp_ge_u32 s3, 7
          s_cbranch_scc1 K2_SKIP2
          v_lshlrev_b32 v1, 2, v4
          v_add_u32 v5, 1024, v1
          ds_read2st64_b32 v[54:55], v52 offset0:0 offset1:{L_CNT2//256}
          ds_read2st64_b32 v[56:57], v52 offset0:8 offset1:{8+L_CNT2//256}
          ds_read_b32 v17, v18 offset:{L_HIST-1}""")
        CP=[8,10,12,14,58,62,56]
        for m in range(6): a(f"ds_read2_b32 v[{CP[m]}:{CP[m]+1}], v{1 if m<4 else 5} offset0:{64*(m&3)} offset1:{64*(m&3)+32}")
        a(f"""s_waitcnt lgkmcnt(6)
          v_add_u32 v53, v54, v55
          v_add_u32 v6, v56, v57
          v_readfirstlane_b32 s13, v17
          ds_read2_b32 v[56:57], v5 offset0:128 offset1:160
          v_lshl_add_u32 v54, v53, 4, v3
          v_mov_b32 v55, 0
          s_cmp_eq_u32 s13, 0
          s_waitcnt lgkmcnt(0)
          s_cbranch_scc1 K2_NOC2""")
        for m in range(14):
            a(f"ds_read_b32 v17, v1 offset:{L_CNT2+128*m}\ns_waitcnt lgkmcnt(0)\nv_add_u32 v{CP[m>>1]+(m&1)}, v{CP[m>>1]+(m&1)}, v17")
        a("K2_NOC2:")
        for m in range(14): a(f"v_lshl_add_u32 v{CP[m>>1]+(m&1)}, v{CP[m>>1]+(m&1)}, 4, {m}")
        for m in range(7):
            a(f"v_cmp_lt_u32 vcc, v{CP[m]}, v54\nv_cmp_lt_u32 s[48:49], v{CP[m]+1}, v54\ns_nop 0\nv_addc_co_u32 v55, vcc, 0, v55, vcc\nv_addc_co_u32 v55, vcc, 0, v55, s[48:49]")
        a("v_mov_b32 v57, v55")
        a(f"""v_lshrrev_b32 v58, 1, v57
          v_and_b32 v57, 1, v57
          v_lshl_add_u32 v57, v57, 5, v4""")
    else:
        a(f"""s_cmp_ge_u32 s3, 7
          s_cbranch_scc1 K2_SKIP1
          ds_read2st64_b32 v[54:55], v52 offset0:0 offset1:{L_CNT2//256}
          ds_read2st64_b32 v[56:57], v52 offset0:8 offset1:{8+L_CNT2//256}
          s_waitcnt lgkmcnt(0)
          v_add_u32 v53, v54, v55
          v_add_u32 v6, v56, v57
          v_min_u32 v54, 63, v53
          v_lshlrev_b32 v54, 2, v54
          ds_add_rtn_u32 v55, v54, v18 offset:{L_HIST}
          s_waitcnt lgkmcnt(0)
          K2_SKIP1:
          s_barrier
          s_cmp_ge_u32 s3, 7
          s_cbranch_scc1 K2_SKIP2
          v_lshlrev_b32 v56, 2, v2
          ds_read_b32 v56, v56 offset:{L_HIST}
          s_waitcnt lgkmcnt(0)
          v_mov_b32 v57, v56""")
        wave_scan_u32(a,57)
        a(f"""v_sub_u32 v57, v57, v56
          ds_bpermute_b32 v57, v54, v57
          s_waitcnt lgkmcnt(0)
          v_add_u32 v57, v57, v55
          v_lshrrev_b32 v58, 6, v57
          v_and_b32 v57, 63, v57""")
    a(f"""v_lshlrev_b32 v59, 2, v58
      ds_max_u32 v59, v53 offset:{L_RMAX}
      ds_max_u32 v59, v6 offset:{L_RMAX+32}
      v_add_u32 v61, s64, v53
      v_bfm_b32 v61, v61, 0
      v_bfm_b32 v6, v6, 0
      ds_write2st64_b32 v52, v61, v6 offset0:{L_NM//256} offset1:{L_NM//256+8}
      s_mov_b32 s48, {PB8[0]&0xffffffff:#x}
      s_mov_b32 s49, {PB8[0]>>32:#x}
      s_mov_b32 s13, {NR4[0]:#x}
      s_mov_b32 s15, {HS:#x}
      v_lshlrev_b32 v61, 1, v59
      v_lshrrev_b64 v[62:63], v61, s[66:67]
      v_lshrrev_b64 v[54:55], v61, s[48:49]
      v_lshrrev_b32 v61, v59, s68
      v_lshrrev_b32 v56, v59, s13
      v_mul_u32_u24 v63, {LSTR}, v57
      v_lshl_or_b32 v63, v58, 28, v63
      v_lshrrev_b32 v55, 5, v57
      v_lshl_or_b32 v63, v55, 27, v63
      v_and_b32 v62, 0xff, v62
      v_and_b32 v54, 0xff, v54
      v_and_b32 v61, 15, v61
      v_and_b32 v56, 15, v56
      v_lshl_add_u32 v62, v62, 2, v63
      v_lshl_or_b32 v61, v61, 15, v62
      v_lshl_add_u32 v54, v54, 2, v63
      v_lshl_or_b32 v54, v56, 15, v54
      v_add_u32 v54, {192+(8<<28):#x}, v54
      ds_write2st64_b32 v52, v61, v54 offset0:{L_INFO//256} offset1:{L_INFO//256+8}
      v_lshrrev_b32 v62, v59, s15
      s_cmp_eq_u32 s11, 1
      s_cbranch_scc1 K2_NOSCALE
      s_cmp_eq_u32 s11, 0
      s_cbranch_scc1 K2_DST""")
    a.srd(52,8,9,56*2048,OFF_SCALE)
    a(f"""v_and_b32 v62, 15, v62
      v_lshlrev_b32 v62, 8, v62
      v_lshl_add_u32 v62, v57, 2, v62
      s_lshl_b32 s51, s10, 11
      v_lshlrev_b32 v16, 16, v16
      v_mul_f32 v16, v16, v16
      buffer_store_dword v16, v62, s[52:55], s51 offen
      s_branch K2_NOSCALE
      K2_DST:""")
    a.srd(52,8,9,56*1024,OFF_DST)
    a(f"""v_and_b32 v63, 3, v62
      v_bfe_u32 v62, v62, 2, 1
      v_lshlrev_b32 v62, 9, v62
      v_lshl_add_u32 v62, v57, 3, v62
      v_lshl_add_u32 v62, v63, 1, v62
      s_lshl_b32 s51, s10, 10
      buffer_store_short v60, v62, s[52:55], s51 offen
      K2_NOSCALE:
      s_waitcnt lgkmcnt(0)
      K2_SKIP2:
      s_barrier"""); SS()
    a(f"""v_and_b32 v52, 15, v2
      v_lshlrev_b32 v52, 2, v52
      ds_read_b32 v53, v52 offset:{L_RMAX}
      ds_read_b32 v1, v18 offset:{L_HIST-1}""")
    for j in range(8):
        a(f"s_mov_b64 exec, s[{30+2*j}:{31+2*j}]\nds_read_b32 v{36+j}, v{36+j} offset:{L_INFO}")
    a(f"""s_mov_b64 exec, -1
      s_mov_b32 s48, s68
      s_mov_b32 s49, {NR4[0]:#x}
      v_lshrrev_b64 v[54:55], v52, s[48:49]
      v_and_b32 v55, 15, v54
      v_mov_b32 v56, s64
      v_cmp_gt_u32 vcc, 32, v52
      s_nop 1
      v_cndmask_b32 v56, 0, v56, vcc
      s_waitcnt lgkmcnt(0)
      v_add3_u32 v53, v53, v56, 1
      v_lshrrev_b32 v53, 1, v53
      v_cmp_ne_u32 vcc, 0, v55
      s_nop 1
      v_cndmask_b32 v53, 0, v53, vcc
      v_sub_u32 v54, v53, v55
      v_max_i32 v54, 0, v54
      v_cmp_ne_u32 vcc, 0, v54
      s_mov_b32 s48, s71
      s_mov_b32 s49, {CP4[0]:#x}
      v_lshrrev_b64 v[56:57], v52, s[48:49]
      v_and_b32 v56, 15, v56
      v_max_u32 v56, v56, v53
      v_lshlrev_b32 v56, 1, v56
      v_bfm_b32 v56, v56, 0
      ds_write_b32 v52, v56 offset:{L_LM}
      v_mov_b32 v56, 0
      v_readfirstlane_b32 s72, v1""")
    a.srd(56,8,9,OVF_SIZE,OFF_OVF)
    a(f"""s_cbranch_vccz K2_NOOVF
      s_mov_b32 s72, 1
      v_mov_b32 v57, v54""")
    for sh in (1,2,4,8): a(f"s_nop 1\nv_add_u32_dpp v57, v57, v57 row_shr:{sh} row_mask:0xf bank_mask:0xf bound_ctrl:0")
    a(f"""s_nop 1
      v_readlane_b32 s60, v57, 15
      v_readlane_b32 s65, v57, 7
      v_sub_u32 v57, v57, v54
      s_lshl_b32 s60, s60, 8
      s_lshl_b32 s65, s65, 8
      s_cmp_lg_u32 s3, 0
      s_cbranch_scc1 K2_OV1
      s_mov_b64 exec, 1
      v_mov_b32 v58, s60
      v_mov_b32 v59, 0
      global_atomic_add v58, v59, v58, s[6:7] sc0 sc1
      s_waitcnt vmcnt(0)
      ds_write_b32 v59, v58 offset:{L_OVF+64}
      s_waitcnt lgkmcnt(0)
      s_mov_b64 exec, -1
      K2_OV1:
      s_barrier
      v_mov_b32 v59, 0
      ds_read_b32 v58, v59 offset:{L_OVF+64}
      s_waitcnt lgkmcnt(0)
      s_nop 0
      v_readfirstlane_b32 s61, v58
      v_lshl_add_u32 v56, v57, 8, v58
      ds_write_b32 v52, v56 offset:{L_OVF}
      v_lshlrev_b32 v59, 2, v0
      v_mov_b32 v62, {SENT_T:#x}
      v_mov_b32 v63, {SENT_O:#x}
      K2_OVF_FILL:
      v_cmp_gt_u32 s[48:49], s65, v59
      v_cmp_gt_u32 vcc, s60, v59
      s_nop 0
      v_cndmask_b32 v58, v63, v62, s[48:49]
      s_and_saveexec_b64 s[48:49], vcc
      s_cbranch_execz K2_OVF_FILL_E
      buffer_store_dword v58, v59, s[56:59], s61 offen
      s_mov_b64 exec, s[48:49]
      s_nop 0
      v_add_u32 v59, 4096, v59
      s_branch K2_OVF_FILL
      K2_OVF_FILL_E:
      s_mov_b64 exec, s[48:49]
      s_waitcnt vmcnt(0) lgkmcnt(0)
      s_barrier
      K2_NOOVF:
      s_cmp_lg_u32 s3, 8
      s_cbranch_scc1 K2_NOHDR""")
    a.srd(52,8,9,112*128,OFF_HDR)
    a(f"""s_mov_b32 s15, {HS:#x}
      v_and_b32 v57, 28, v52
      v_lshrrev_b32 v57, v57, s15
      v_and_b32 v58, 3, v57
      v_bfe_u32 v57, v57, 2, 1
      v_lshlrev_b32 v57, 7, v57
      v_lshl_add_u32 v57, v58, 2, v57
      s_lshl_b32 s62, s11, 4
      s_add_u32 s62, s62, 16
      v_mov_b32 v58, s62
      v_cmp_gt_u32 vcc, 32, v52
      s_lshl_b32 s51, s10, 8
      s_movk_i32 s62, 0xff
      s_cmp_eq_u32 s11, 0
      v_cndmask_b32 v58, 0, v58, vcc
      s_cselect_b32 s62, 0xffff, s62
      v_add_u32 v57, v57, v58
      s_mov_b32 exec_lo, s62
      s_mov_b32 exec_hi, 0
      buffer_store_dword v53, v57, s[52:55], s51 offen
      buffer_store_dword v56, v57, s[52:55], s51 offen offset:64
      s_mov_b64 exec, -1
      K2_NOHDR:""")
    def place(ent,info,rank,t0,t1,t2,tag,ovf=True):
        a(f"v_and_b32 v{t0}, 0x7fff, v{info}")
        if not ovf:
            a(f"""v_lshl_add_u32 v{t0}, v{rank}, 1, v{t0}
              ds_write_b16 v{t0}, v{ent} offset:{L_STG}
              K2_PL_{tag}:""")
            return
        a(f"""v_bfe_u32 v{t2}, v{info}, 15, 5
          v_mul_u32_u24 v{t1}, 5243, v{t0}
          v_lshlrev_b32 v{t2}, 1, v{t2}
          v_lshl_add_u32 v{t0}, v{rank}, 1, v{t0}
          v_cmp_lt_u32 vcc, v{rank}, v{t2}
          v_lshrrev_b32 v{t1}, 21, v{t1}
          s_and_saveexec_b64 s[48:49], vcc
          ds_write_b16 v{t0}, v{ent} offset:{L_STG}
          s_andn2_b64 exec, s[48:49], exec
          s_cbranch_execz K2_PL_{tag}
          v_lshrrev_b32 v{t0}, 26, v{info}
          v_and_b32 v{t0}, 0x3c, v{t0}
          ds_read_b32 v{t0}, v{t0} offset:{L_OVF}
          v_sub_u32 v{rank}, v{rank}, v{t2}
          v_lshrrev_b32 v{t2}, 1, v{rank}
          v_and_b32 v{rank}, 1, v{rank}
          s_waitcnt lgkmcnt(0)
          v_lshl_add_u32 v{t0}, v{t2}, 8, v{t0}
          v_lshl_add_u32 v{t0}, v{t1}, 2, v{t0}
          v_lshl_add_u32 v{t0}, v{rank}, 1, v{t0}
          buffer_store_short v{ent}, v{t0}, s[56:59], 0 offen
          K2_PL_{tag}:""")
    a(f"""s_cmp_ge_u32 s3, 7
      s_cbranch_scc1 K2_PL_N
      s_cmp_eq_u32 s11, 0
      s_cbranch_scc1 K2_PL_N
      v_mov_b32 v55, 0""")
    place(60,61,55,57,58,59,"N")
    a("s_mov_b64 exec, -1")
    if GREEDY:
        a("s_cmp_lg_u32 s72, 0\ns_cbranch_scc1 K2_SIMPLE")
        SS()
        BT=[12,13,14,15,8,9,10,11]; OD=[52,53,54,55,5,6,17,19]
        for j in range(8):
            a(f"s_mov_b64 exec, s[{30+2*j}:{31+2*j}]")
            if j>=3: a(f"s_cbranch_execz K2_G1_{j}")
            a(f"""v_add_u32 v{44+j}, s64, v{44+j}
              v_lshrrev_b32 v57, 20, v{36+j}
              v_and_b32 v59, 31, v{28+j}
              v_lshlrev_b32 v{BT[j]}, v{44+j}, v18
              v_lshl_or_b32 v57, v59, 2, v57
              ds_or_rtn_b32 v{OD[j]}, v57, v{BT[j]} offset:{L_BM}
              K2_G1_{j}:""")
        a(f"s_mul_i32 s74, s3, 4096\ns_add_u32 s74, s74, {L_LIST}\ns_mov_b32 s73, s74\ns_waitcnt lgkmcnt(0)")
        for j in range(8):
            a(f"s_mov_b64 exec, s[{30+2*j}:{31+2*j}]")
            if j>=3: a(f"s_cbranch_execz K2_PL_G{j}")
            a(f"""v_and_b32 v57, v{OD[j]}, v{BT[j]}
              v_lshrrev_b32 v58, 14, v{28+j}
              v_cmp_ne_u32 vcc, 0, v57
              v_and_b32 v58, 0xffc, v58
              v_mov_b32 v62, v{28+j}
              v_mov_b32 v63, v{36+j}
              v_mbcnt_lo_u32_b32 v59, vcc_lo, 0
              v_mbcnt_hi_u32_b32 v59, vcc_hi, v59
              s_bcnt1_i32_b64 s13, vcc
              v_lshl_add_u32 v59, v59, 3, s73
              s_and_saveexec_b64 s[48:49], vcc
              ds_xor_b32 v58, v{BT[j]} offset:{L_NM}
              ds_write_b64 v59, v[62:63]
              s_lshl3_add_u32 s73, s13, s73
              s_andn2_b64 exec, s[48:49], vcc""")
            place(28+j,36+j,44+j,57,58,59,f"G{j}",False)
        SS(); SS()
        a(f"""s_mov_b64 exec, -1
          v_lshl_add_u32 v21, v2, 3, s74
          K2_GL:
          v_cmp_gt_u32 vcc, s73, v21
          s_and_saveexec_b64 s[62:63], vcc
          s_cbranch_execz K2_GE
          ds_read_b64 v[28:29], v21
          s_mov_b32 s75, 0
          s_mov_b64 s[30:31], exec
          s_waitcnt lgkmcnt(0)
          v_lshrrev_b32 v57, 26, v29
          v_lshrrev_b32 v22, 14, v28
          v_and_b32 v57, 0x3c, v57
          v_and_b32 v22, 0xffc, v22
          ds_read_b32 v24, v57 offset:{L_LM}
          v_and_b32 v59, 31, v28
          v_lshrrev_b32 v58, 20, v29
          v_lshl_or_b32 v23, v59, 2, v58
          K2_GR:
          ds_read_b32 v25, v22 offset:{L_NM}
          ds_read_b32 v26, v23 offset:{L_BM}
          s_cmp_ge_u32 s75, {int(os.environ.get('GR',2))}
          s_cselect_b64 s[32:33], -1, 0
          s_add_u32 s75, s75, 1
          s_waitcnt lgkmcnt(0)
          v_bfi_b32 v25, v25, 0, v24
          v_bfi_b32 v26, v26, 0, v25
          v_cmp_eq_u32 vcc, 0, v26
          s_nop 1
          v_cndmask_b32 v26, v26, v25, vcc
          s_or_b64 s[32:33], s[32:33], vcc
          v_cmp_ne_u32 vcc, 0, v26
          v_ffbl_b32 v44, v26
          s_and_b64 exec, exec, vcc
          v_lshlrev_b32 v27, v44, v18
          ds_or_rtn_b32 v25, v22, v27 offset:{L_NM}
          ds_or_rtn_b32 v26, v23, v27 offset:{L_BM}
          s_waitcnt lgkmcnt(0)
          v_and_b32 v25, v25, v27
          v_and_b32 v26, v26, v27
          v_cmp_eq_u32 s[34:35], 0, v25
          v_cmp_eq_u32 s[36:37], 0, v26
          s_mov_b64 s[38:39], exec
          s_or_b64 s[32:33], s[32:33], s[36:37]
          s_and_b64 s[40:41], s[34:35], s[32:33]
          s_andn2_b64 s[30:31], s[30:31], s[40:41]
          s_andn2_b64 exec, s[34:35], s[32:33]
          ds_xor_b32 v22, v27 offset:{L_NM}
          s_andn2_b64 exec, s[36:37], s[34:35]
          ds_xor_b32 v23, v27 offset:{L_BM}
          s_mov_b64 exec, s[30:31]
          s_cbranch_execnz K2_GR
          s_and_b64 exec, s[62:63], s[62:63]
          v_cmp_gt_u32 vcc, s73, v21
          s_nop 0
          s_and_b64 exec, exec, vcc""")
        place(28,29,44,57,58,59,"GG",False)
        a(f"""s_mov_b64 exec, s[62:63]
          v_add_u32 v21, 512, v21
          s_branch K2_GL
          K2_GE:
          s_mov_b64 exec, s[62:63]
          s_branch K2_NOSLOWB
          K2_SIMPLE:""")
    for j in range(8):
        a(f"s_mov_b64 exec, s[{30+2*j}:{31+2*j}]")
        if j>=4: a(f"s_cbranch_execz K2_PL_{j}")
        a(f"v_add_u32 v{44+j}, s64, v{44+j}")
        place(28+j,36+j,44+j,57,58,59,str(j))
    a(f"""s_mov_b64 exec, -1
      s_cmp_eq_u64 s[46:47], 0
      s_cbranch_scc1 K2_NOSLOWB""")
    for k in range(4):
        a(f"""v_add_u32 v52, 64, v4
          v_add_u32 v53, 256, v{20+k}
          s_mov_b32 s13, {32*k*PE*4}
          K2_SB{k}:
          v_cmp_lt_u32 vcc, v52, v{24+k}
          s_and_saveexec_b64 s[62:63], vcc
          s_cbranch_execz K2_SB{k}_E
          buffer_load_dword v28, v53, s[20:23], s13 offen
          s_waitcnt vmcnt(0)
          v_lshrrev_b32 v54, 14, v28
          v_and_b32 v54, 0xffc, v54
          ds_add_rtn_u32 v44, v54, v18 offset:{L_CUR2}
          ds_read_b32 v45, v54
          ds_read_b32 v36, v54 offset:{L_INFO}
          s_waitcnt lgkmcnt(0)
          v_add3_u32 v44, v44, v45, s64""")
        place(28,36,44,57,58,59,f"S{k}")
        a(f"""s_mov_b64 exec, s[62:63]
          v_add_u32 v52, 32, v52
          v_add_u32 v53, 128, v53
          s_branch K2_SB{k}
          K2_SB{k}_E:
          s_mov_b64 exec, s[62:63]""")
    a("K2_NOSLOWB:"); SS()
    a(f"""s_waitcnt lgkmcnt(0)
      s_barrier"""); SS()
    if st.on:
        a("s_waitcnt lgkmcnt(0)")
        for i in range(st.n): a(f"s_mov_b32 s{72+2*i}, s{76+2*i}")
        st.dump(0,0,0); st.dump(0,9,16); a("s_mov_b64 exec, -1")
    a(f"""
      s_cmp_ge_u32 s3, 12
      s_cbranch_scc1 K2_END
      ds_read_b128 v[8:11], v7 offset:{L_STG}
      ds_read_b128 v[12:15], v7 offset:{L_STG+192}
      v_lshlrev_b32 v16, {4 if BL4 else 2}, v2""")
    a.srd(52,8,9,112*BLOBSZ,OFF_BLOB)
    st4=lambda r,so: f"buffer_store_dwordx4 v[{r}:{r+3}], v16, s[52:55], {so} offen" if BL4 else "\n".join(f"buffer_store_dword v{r+i}, v16, s[52:55], {so} offen offset:{256*i}" for i in range(4))
    a(f"""s_cmp_ge_u32 s3, 6
      s_cselect_b32 s48, 6, 0
      s_cselect_b32 s49, {BLOBSZ}, 0
      s_sub_u32 s48, s3, s48
      s_mul_i32 s51, s10, {2*BLOBSZ}
      s_add_u32 s51, s51, s49
      s_lshl_b32 s49, s48, 10
      s_add_u32 s51, s51, s49
      s_lshl_b32 s62, s70, 10
      s_add_u32 s62, s62, s51
      s_waitcnt lgkmcnt(0)
      s_cmp_ge_u32 s48, s69
      s_cbranch_scc1 K2_NOMAIN
      {st4(8,'s62')}
      K2_NOMAIN:
      s_cmp_lg_u32 s11, 0
      s_cbranch_scc1 K2_END
      s_cmp_ge_u32 s48, {UNITS[0]}
      s_cbranch_scc1 K2_END
      {st4(12,'s51')}
      K2_END:
      s_endpgm""")
    a(f"""K2_WARM:
      s_and_b32 s10, s2, 7
      s_sub_u32 s11, s2, {NBIN+33}
      s_lshr_b32 s11, s11, 3
      s_lshl_b32 s11, s11, 4
      s_add_u32 s11, s11, s3
      s_lshl_b32 s11, s11, 10
      s_mul_i32 s10, s10, {GSTR}
      v_lshlrev_b32 v7, 4, v2
      s_waitcnt lgkmcnt(0)
      s_add_u32 s12, s8, s10
      s_addc_u32 s13, s9, 0
      s_mov_b32 s14, {GSTR}
      s_mov_b32 s15, 0x20000
      s_add_u32 s16, s11, {96*1024}
      s_add_u32 s17, s11, {192*1024}""")
    for j in range(4):
        for k,so in enumerate((11,16,17)):
            a(f"buffer_load_dwordx4 v[{8+4*k}:{11+4*k}], v7, s[12:15], s{so} offen")
            if k<int(os.environ.get("WSER",2)): a("s_waitcnt vmcnt(0)")
        if j<3: a(f"s_add_u32 s12, s12, {8*GSTR}\ns_addc_u32 s13, s13, 0")
    a("s_endpgm")
    import k1
    k1.weights_stage2(a,NBIN)
    return a.text(), desc(name,64,102 if STAMP else 80)
```

```python
from common import *
LDS_SCR=LDS_CNT+128
K3_LDS=LDS_SCR+4096
NHOP=7
CAPE=eval(os.environ.get('CAPE','CAPS'))
DPT=int(os.environ.get("DPT",2))
V_T0=0; V_T1=1
V_DP=2
V_IDX=4
V_SC=84
V_D=88
V_ACC=92
V_A=108
V_PK=112
V_L16=114
V_B=116
NV3=V_B+4*(DPT+1)
assert NV3<=128
S_TAB=12
S_OUT=16
S_BLOB=28
S_OVF=24
S_FLAG=28
S_HDR=32
S_HOP=20; S_B0=21; S_B1=22; S_OB=23; S_T=64
SCD=os.environ.get('SCD',' sc1')
SCL=os.environ.get('SCL',' sc1')
SCF='' if 'pf' in os.environ.get('PLAIN','') else ' sc1'
PLD=os.environ.get('PLD','sc1')
SPIN=4000000
SLP=int(os.environ.get('SLP',2))
C_DA,C_DB,C_DC,C_L,C_PC,C_PB,G_S0,G_S1,G_S2,C_0,C_1,C_4,C_P,C_E2,C_MD=0,4,8,12,16,20,24,28,32,36,40,44,48,80,112
NM_=3
S_PEND=7
S_PC=11

def gen_k3(name,nhop=NHOP):
    global S_PEND
    S_PEND=7
    a=Asm(); a.l.append(head(name))
    X=os.environ.get("K3X","")
    STH=int(os.environ.get("STH",5))
    if "k3" in STAMP or "tot" in STAMP: a("s_memtime s[72:73]" if "tot" in STAMP else "s_memtime s[98:99]")
    a(f"""s_cmp_ge_u32 s2, 256
      s_cbranch_scc1 K3_END
      s_load_dwordx2 s[8:9], s[0:1], 88
      v_lshrrev_b32 v1, 6, v0
      v_and_b32 v2, 63, v0
      s_and_b32 s4, s2, 7
      v_readfirstlane_b32 s3, v1
      s_lshr_b32 s5, s2, 6
      s_lshl_b32 s5, s5, 3
      s_add_u32 s4, s4, s5
      s_bfe_u32 s5, s2, 0x30003
      v_lshlrev_b32 v{V_L16}, 4, v2
      s_mul_i32 s6, s4, {GSTR}
      s_mul_i32 s7, s5, 25088
      s_mov_b32 s{S_B0}, 0
      s_mov_b32 s{S_B1}, {TB_}
      s_mov_b32 s{S_OB}, {LDS_OUT}
      s_mov_b32 s{S_HOP}, 0
      s_waitcnt lgkmcnt(0)
      {"s_memtime s[94:95]" if "k3" in STAMP else ""}
      s_add_u32 s{S_TAB}, s8, s6
      s_addc_u32 s{S_TAB+1}, s9, 0
      s_mov_b32 s{S_TAB+2}, {GSTR}
      s_mov_b32 s{S_TAB+3}, 0x20000""")
    def dma(off=0): a(f"buffer_load_dwordx4 v{V_L16}, s[{S_TAB}:{S_TAB+3}], s{S_T} offen"+(f" offset:{off}" if off else "")+SCL+" lds")
    def seg_fill(rreg,seg,base,i0,n):
        a(f"""s_cmp_ge_u32 s{rreg}, s5
          s_addc_u32 s{S_T}, s{rreg}, 0
          s_mul_i32 s{S_T}, s{S_T}, 25088
          s_add_u32 s{S_T}, s{S_T}, {SEG[seg]*8+i0*1024}
          s_mul_i32 s{S_T+1}, s{rreg}, {TST*8}
          s_add_u32 s{S_T+1}, s{S_T+1}, s{base}""")
        if i0: a(f"s_add_u32 s{S_T+1}, s{S_T+1}, {i0*1024}")
        for i in range(n):
            if i%4==0:
                if i: a(f"s_add_u32 s{S_T}, s{S_T}, 4096\ns_add_u32 s{S_T+1}, s{S_T+1}, 4096")
                a(f"s_mov_b32 m0, s{S_T+1}\ns_nop 0")
            dma(1024*(i%4))
    a(f"""s_lshl_b32 s{S_T+1}, s3, 10
      s_add_u32 s{S_T}, s7, s{S_T+1}
      s_add_u32 s{S_T+1}, s{S_T+1}, {LDS_OUT}
      s_mov_b32 m0, s{S_T+1}
      s_nop 0"""); dma()
    a(f"""s_cmp_ge_u32 s3, 9
      s_cbranch_scc1 K3_I1
      s_add_u32 s{S_T}, s{S_T}, 16384
      s_add_u32 m0, s{S_T+1}, 16384
      s_cmp_lg_u32 s3, 8
      s_cbranch_scc1 K3_I0
      s_mov_b32 exec_hi, 0
      K3_I0:"""); dma()
    a(f"""s_mov_b64 exec, -1
      K3_I1:
""")
    a(f"""K3_I3:
      s_add_u32 s{S_OUT}, s{S_TAB}, s7
      s_addc_u32 s{S_OUT+1}, s{S_TAB+1}, 0
      s_add_u32 s{S_OUT}, s{S_OUT}, {TSTR}
      s_addc_u32 s{S_OUT+1}, s{S_OUT+1}, 0
      s_mov_b32 s{S_OUT+2}, 25088
      s_mov_b32 s{S_OUT+3}, 0x20000
      s_cmp_ge_u32 s3, 14
      s_cbranch_scc1 K3_HELPER""")
    def flag_srd(gather=False):
        a(f"""s_and_b32 s10, s2, 7
          s_lshr_b32 s{S_T}, s2, 6
          s_lshl_b32 s{S_T}, s{S_T}, 3
          s_add_u32 s10, s10, s{S_T}
          s_lshl_b32 s10, s10, 11
          s_add_u32 s{S_FLAG}, s8, s10
          s_addc_u32 s{S_FLAG+1}, s9, 0
          s_add_u32 s{S_FLAG}, s{S_FLAG}, {OFF_FLAG:#x}
          s_addc_u32 s{S_FLAG+1}, s{S_FLAG+1}, 0
          s_mov_b32 s{S_FLAG+2}, 2048
          s_mov_b32 s{S_FLAG+3}, 0x20000""")
        if not gather: a("s_lshl_b32 s7, s5, 7"); return
        a(f"""s_lshr_b32 s10, s4, 1
          s_lshl_b32 s6, s10, 2
          s_cmp_ge_u32 s10, {NE}
          s_cselect_b32 s{S_T}, {1024-4*NE}, 0
          s_cmp_ge_u32 s10, {NE+NM_}
          s_cselect_b32 s{S_T}, {(32-4*(NE+NM_))&0xffffffff}, s{S_T}
          s_add_u32 s6, s6, s{S_T}
          s_lshl_b32 s10, s5, 7
          s_add_u32 s6, s6, s10""")
    def pubflag(hadd):
        a(f"""s_add_u32 s10, s{S_HOP}, {hadd}
          v_mov_b32 v{V_T1}, s10
          s_mov_b64 exec, 1
          s_waitcnt vmcnt(0)
          buffer_store_dword v{V_T1}, off, s[{S_FLAG}:{S_FLAG+3}], s6 sc1""")
    def arrive_flag(c,mult,off,fadd):
        l=a.label("AF")
        a(f"""v_mov_b32 v{V_T0}, {LDS_CNT}
          v_mov_b32 v{V_T1}, 1
          s_add_u32 s{S_T+2}, s{S_HOP}, {fadd}
          s_mul_i32 s{S_T+3}, s{S_HOP}, {mult}
          s_mov_b64 exec, 1
          ds_add_rtn_u32 v{V_T1}, v{V_T0}, v{V_T1} offset:{c}
          s_add_u32 s{S_T+3}, s{S_T+3}, {mult-1}
          s_waitcnt lgkmcnt(0)
          v_cmp_eq_u32 vcc, s{S_T+3}, v{V_T1}
          v_mov_b32 v{V_T1}, s{S_T+2}
          s_cbranch_vccz {l}
          buffer_store_dword v{V_T1}, off, s[{S_FLAG}:{S_FLAG+3}], s7 offset:{off}{SCF}
          {l}:
          s_mov_b64 exec, -1""")
    def poll(off,vi,vv,vr,hopadd):
        l=a.label("PO")
        if os.environ.get("SPOLL","1")=="1":
            nd={0:NE,1024:NM_,32:7-NE-NM_}[off]; w=2 if nd<=2 else 4
            a(f"s_add_u32 s{S_T+1}, s{S_HOP}, {hopadd}\ns_mov_b32 s{S_T}, {SPIN}\n{l}:")
            for q_ in range(8): a(f"s_load_dwordx{w} s[{32+w*q_}:{32+w*q_+w-1}], s[{S_FLAG}:{S_FLAG+1}], {off+128*q_} glc")
            a(f"s_sub_u32 s{S_T}, s{S_T}, 1\ns_cmp_eq_u32 s{S_T}, 0\ns_waitcnt lgkmcnt(0)\ns_cbranch_scc1 {l}_X")
            regs=[32+w*q_+d for q_ in range(8) for d in range(nd)]
            for r in regs[1:]: a(f"s_min_u32 s32, s32, s{r}")
            a(f"s_cmp_lt_u32 s32, s{S_T+1}\ns_cbranch_scc1 {l}\n{l}_X:")
            return
        ld=lambda r: a(f"buffer_load_dword v{r}, v{vi}, s[{S_FLAG}:{S_FLAG+3}], 0 offen offset:{off} {PLD}")
        a(f"""s_add_u32 s{S_T}, s{S_HOP}, {hopadd}
          v_mov_b32 v{vv}, s{S_T}
          s_mov_b32 s{S_T}, {SPIN}""")
        if os.environ.get("P1","1")=="1":
            a(f"{l}:"); ld(vr)
            a(f"""s_waitcnt vmcnt(0)
              v_cmp_gt_u32 vcc, v{vv}, v{vr}
              s_sub_u32 s{S_T}, s{S_T}, 1
              s_cbranch_vccz {l}_X
              s_cmp_gt_i32 s{S_T}, 0
              s_cbranch_scc1 {l}
              {l}_X:""")
            return
        ld(vr)
        a(f"s_sleep {SLP}\n{l}:")
        for k in range(2):
            ld(vr+1-k)
            a(f"""s_waitcnt vmcnt(1)
              v_cmp_gt_u32 vcc, v{vv}, v{vr+k}
              s_sub_u32 s{S_T}, s{S_T}, 1
              s_cbranch_vccz {l}_X""")
        a(f"""s_cmp_gt_i32 s{S_T}, 0
          s_cbranch_scc1 {l}
          {l}_X:""")
    def arrive(c):
        a(f"""v_mov_b32 v{V_T0}, {LDS_CNT}
          v_mov_b32 v{V_T1}, 1
          s_mov_b64 exec, 1
          ds_add_u32 v{V_T0}, v{V_T1} offset:{c}
          s_mov_b64 exec, -1""")
    def spin(c,mult,hadd=1):
        l=a.label("SP")
        a(f"""v_mov_b32 v{V_T0}, {LDS_CNT}
          s_add_u32 s{S_T+2}, s{S_HOP}, {hadd}
          s_mul_i32 s{S_T+2}, s{S_T+2}, {mult}
          {l}:
          ds_read_b32 v{V_T1}, v{V_T0} offset:{c}
          s_waitcnt lgkmcnt(0)
          v_readfirstlane_b32 s{S_T+3}, v{V_T1}
          s_cmp_ge_u32 s{S_T+3}, s{S_T+2}
          s_cbranch_scc1 {l}_E
          s_sleep 1
          s_branch {l}
          {l}_E:""")
    def rewarm(adv):
        if os.environ.get("RW","1")!="1": return
        a(f"""s_lshr_b32 s10, s4, 1
          s_mul_i32 s10, s10, 3584
          s_mov_b32 m0, {LDS_SCR}""")
        if adv: a(f"s_sub_u32 s{S_OUT}, s{S_OUT}, {TSTR}\ns_subb_u32 s{S_OUT+1}, s{S_OUT+1}, 0")
        else: a("s_nop 0")
        for k in range(4):
            if k==3: a("s_mov_b32 exec_hi, 0")
            a(f"buffer_load_dwordx4 v{V_L16}, s[{S_OUT}:{S_OUT+3}], s10 offen offset:{1024*k} sc1 lds")
        a("s_mov_b64 exec, -1")
        if adv: a(f"s_add_u32 s{S_OUT}, s{S_OUT}, {TSTR}\ns_addc_u32 s{S_OUT+1}, s{S_OUT+1}, 0")
    def tickets():
        l=a.label("TK")
        a(f"""s_lshl_b32 s10, s{S_HOP}, 2
          s_add_u32 s10, s10, {LDS_CNT+C_TK}
          v_mov_b32 v{V_T0}, s10
          {l}:
          v_mov_b32 v{V_T1}, 1
          s_mov_b64 exec, 1
          ds_add_rtn_u32 v{V_T1}, v{V_T0}, v{V_T1}
          s_mov_b64 exec, -1
          s_waitcnt lgkmcnt(0)
          v_readfirstlane_b32 s10, v{V_T1}
          s_cmp_ge_u32 s10, 7
          s_cbranch_scc1 {l}_E""")
        seg_fill(10,0,S_B1,0,NCH[0])
        a(f"s_add_u32 s{S_PEND}, s{S_PEND}, 1\ns_branch {l}\n{l}_E:")
    def landed():
        l=a.label("LD")
        a(f"""s_cmp_eq_u32 s{S_PEND}, 0
          s_cbranch_scc1 {l}
          v_mov_b32 v{V_T0}, {LDS_CNT}
          v_mov_b32 v{V_T1}, s{S_PEND}
          s_mov_b32 s{S_PEND}, 0
          s_waitcnt vmcnt(0)
          s_mov_b64 exec, 1
          ds_add_u32 v{V_T0}, v{V_T1} offset:{G_S0}
          s_mov_b64 exec, -1
          {l}:""")
    def handover(call,gate,k):
        l=a.label("HO")
        a(f"""v_mov_b32 v{V_T0}, s{S_PC}
          v_writelane_b32 v{V_T0}, s{S_T+4+k}, 1
          v_mov_b32 v{V_T1}, 1
          s_mul_i32 s{S_T+2}, s{S_HOP}, 4
          s_add_u32 s{S_T+2}, s{S_T+2}, {2*(k+1)}
          s_add_u32 s{S_T+3}, s{S_HOP}, 1
          s_lshl_b32 s{S_T+3}, s{S_T+3}, 1
          s_mov_b64 exec, 3
          s_waitcnt lgkmcnt(0)
          ds_add_u32 v{V_T0}, v{V_T1}
          v_mov_b32 v{V_PK}, s{S_T+2}
          v_writelane_b32 v{V_PK}, s{S_T+3}, 1
          v_writelane_b32 v{V_T0}, s{S_T+6+k}, 1
          {l}:
          ds_read_b32 v{V_T1}, v{V_T0}
          s_waitcnt lgkmcnt(0)
          v_cmp_gt_u32 vcc, v{V_PK}, v{V_T1}
          s_nop 0
          s_cbranch_vccz {l}_E
          s_sleep 1
          s_branch {l}
          {l}_E:
          s_mov_b64 exec, -1""")
    m={0:0,1:8,2:3,3:9,4:2,5:10,6:5,7:11,8:4,9:12,10:7,11:13,12:6,13:1}
    lo=sum(m[w]<<(4*w) for w in range(8)); hi=sum(m[w]<<(4*(w-8)) for w in range(8,14))
    a(f"""s_mov_b32 s10, {lo:#x}
      s_mov_b32 s11, {hi:#x}
      s_lshl_b32 s6, s3, 2
      s_lshr_b64 s[10:11], s[10:11], s6
      s_and_b32 s4, s10, 15
      s_mul_i32 s6, s5, 14
      s_add_u32 s6, s6, s4
      s_lshl_b32 s7, s6, 7
      s_add_u32 s10, s8, s7
      s_addc_u32 s11, s9, 0
      s_add_u32 s10, s10, {OFF_HDR:#x}
      s_addc_u32 s11, s11, 0
      s_load_dwordx16 s[{S_HDR}:{S_HDR+15}], s[10:11], 0
      s_load_dwordx16 s[{S_HDR+16}:{S_HDR+31}], s[10:11], 64
      s_mul_i32 s7, s6, {BLOBSZ}
      s_add_u32 s{S_BLOB}, s8, s7
      s_addc_u32 s{S_BLOB+1}, s9, 0
      s_add_u32 s{S_BLOB}, s{S_BLOB}, {OFF_BLOB:#x}
      s_addc_u32 s{S_BLOB+1}, s{S_BLOB+1}, 0
      s_mov_b32 s{S_BLOB+2}, {BLOBSZ}
      s_mov_b32 s{S_BLOB+3}, 0x20000""")
    def load_blob(p,ext=True,h=None):
        if BL4:
            if ext=="only": return
            for u in range(UOFF[p],UOFF[p]+UNITS[p]):
                r=V_IDX+4*u
                if u%4==0 or u==UOFF[p]: a(f"s_mov_b32 s{S_T}, {(u//4)*4096}")
                a(f"buffer_load_dwordx4 v[{r}:{r+3}], v{V_L16}, s[{S_BLOB}:{S_BLOB+3}], s{S_T} offen offset:{(u%4)*1024}")
            return
        if h is None:
            l=a.label("LB"); a(f"s_bitcmp1_b32 s4, 0\ns_cbranch_scc1 {l}"); load_blob(p,ext,0); a(f"s_branch {l}_E\n{l}:"); load_blob(p,ext,1); a(f"{l}_E:"); return
        a(f"v_lshrrev_b32 v{V_T0}, 2, v{V_L16}\ns_mov_b32 s{S_T}, {UOFF[p]*1024}\ns_mov_b32 s{S_T+1}, {UOFF[p]*1024+4096}")
        def ld(P): a(f"buffer_load_dword v{V_IDX+4*UOFF[p]+P}, v{V_T0}, s[{S_BLOB}:{S_BLOB+3}], s{S_T+(P>>4)} offen offset:{(P&15)*256}")
        if ext!="only":
            for slot,(r,pb,n) in enumerate(LAY[p][h]):
                for k in range(CAPS[p][r]): ld(pb+k)
        if ext:
            for slot,(r,pb,n) in enumerate(LAY[p][h]):
                l=a.label("LE")
                for k in range(CAPS[p][r],n):
                    a(f"s_cmp_le_u32 s{S_HDR+4*p+slot}, {k}\ns_cbranch_scc1 {l}"); ld(pb+k)
                a(f"{l}:")
    load_blob(0,False)
    a(f"""s_lshl_b32 s7, s6, 9
      s_add_u32 s{S_OVF}, s8, s7
      s_addc_u32 s{S_OVF+1}, s9, 0
      s_add_u32 s{S_OVF}, s{S_OVF}, {OFF_DST:#x}
      s_addc_u32 s{S_OVF+1}, s{S_OVF+1}, 0
      s_mov_b32 s{S_OVF+2}, 512
      s_mov_b32 s{S_OVF+3}, 0x20000
      v_lshlrev_b32 v0, 3, v2
      v_and_b32 v{V_PK}, 15, v2
      v_lshrrev_b32 v1, 4, v2
      v_lshlrev_b32 v{V_PK+1}, 2, v2
      buffer_load_dwordx2 v[{V_DP}:{V_DP+1}], v0, s[{S_OVF}:{S_OVF+3}], 0 offen""")
    a.srd(S_OVF,8,9,OVF_SIZE,OFF_OVF)
    a(f"""v_lshlrev_b32 v1, 2, v1
      v_sub_u32 v{V_PK}, v{V_PK}, v1
      v_mov_b32 v0, 0x3f80
      v_mov_b32 v1, 0x3f800000
      v_cmp_eq_u32 s[64:65], 0, v{V_PK}
      v_cmp_eq_u32 s[66:67], 1, v{V_PK}
      v_cmp_eq_u32 s[10:11], 2, v{V_PK}
      v_cmp_eq_u32 vcc, 3, v{V_PK}
      v_cndmask_b32 v{V_A}, 0, v0, s[64:65]
      v_cndmask_b32 v{V_A+1}, 0, v0, s[10:11]
      v_cndmask_b32 v{V_A}, v{V_A}, v1, s[66:67]
      v_cndmask_b32 v{V_A+1}, v{V_A+1}, v1, vcc
      v_mov_b32 v{V_A+2}, v{V_A}
      v_mov_b32 v{V_A+3}, v{V_A+1}
      {"s_waitcnt lgkmcnt(0)"+chr(10)+"s_memtime s[92:93]"+chr(10)+"s_waitcnt vmcnt(6)"+chr(10)+"s_memtime s[90:91]"+chr(10)+"s_waitcnt vmcnt(0)"+chr(10)+"s_memtime s[88:89]" if "k3" in STAMP and STH==0 else ""}
      s_waitcnt vmcnt({6 if BL4 else 10}) lgkmcnt(0)
      s_barrier""")
    load_blob(0,"only"); a("s_waitcnt vmcnt(0)")
    if "k3" in STAMP: a("s_memtime s[96:97]")
    if "k3" in STAMP and STH==0:
        a("s_waitcnt lgkmcnt(0)\ns_mov_b32 s72, s98\ns_mov_b32 s74, s94\ns_mov_b32 s76, s92\ns_mov_b32 s78, s90\ns_mov_b32 s80, s88\ns_mov_b32 s82, s96")
        x=Stamper(a,True); x.n=6; x.dump(0,0,0); x.dump(0,12,16); a("s_mov_b64 exec, -1")
    load_blob(1)
    def late_loads(k,h):
        l=a.label("LL")
        a(f"s_cmp_lg_u32 s{S_HOP}, 0\ns_cbranch_scc1 {l}\ns_waitcnt vmcnt(0)")
        load_blob(k,True,h)
        if k==3:
            a(f"""s_lshl_b32 s10, s6, 10
              s_add_u32 s{S_BLOB}, s8, s10
              s_addc_u32 s{S_BLOB+1}, s9, 0
              s_add_u32 s{S_BLOB}, s{S_BLOB}, {OFF_SCALE:#x}
              s_addc_u32 s{S_BLOB+1}, s{S_BLOB+1}, 0
              s_mov_b32 s{S_BLOB+2}, 1024
              v_lshrrev_b32 v{V_T0}, 2, v{V_L16}""")
            for s_ in range(4): a(f"buffer_load_dword v{V_SC+s_}, v{V_T0}, s[{S_BLOB}:{S_BLOB+3}], 0 offen offset:{256*s_}")
            flag_srd(True)
        a(f"{l}:")
        return True
    def wait_p0(h): a(f"s_waitcnt vmcnt({NBASE(2,h)+NBASE(3,h)+4})")
    a(f"""s_lshr_b32 s{S_PC}, s4, 1
      s_lshl_b32 s{S_PC}, s{S_PC}, 2
      s_add_u32 s{S_PC}, s{S_PC}, {LDS_CNT+C_P}
      s_mov_b32 s{S_PEND}, 0
      s_mov_b32 s{S_T+4}, {LDS_CNT+C_0}
      s_mov_b32 s{S_T+5}, {LDS_CNT+C_1}
      s_mov_b32 s{S_T+6}, {LDS_CNT+G_S1}
      s_mov_b32 s{S_T+7}, {LDS_CNT+G_S2}
      s_add_u32 s{S_TAB}, s{S_TAB}, {TSTR}
      s_addc_u32 s{S_TAB+1}, s{S_TAB+1}, 0""")
    NB=DPT+1
    def mf(acc,b,first):
        c="0" if first else f"v[{acc}:{acc+3}]"
        a(f"v_mfma_f32_16x16x32_bf16 v[{acc}:{acc+3}], v[{V_A}:{V_A+3}], v[{b}:{b+3}], {c}")
    def ad(d,ireg,w,base): a(f"v_mad_u32_u16 v{d}, v{ireg}, 8, s{base}"+(" op_sel:[1,0,0,0]" if w else ""))
    def issue(ireg,b,base,lo=None):
        if lo is None: ad(b,ireg,0,base)
        else: ad(lo,ireg,0,S_OB)
        ad(b+2,ireg,1,base)
        if "lin" in X: a(f"ds_read_b64 v[{b}:{b+1}], v{V_L16}\nds_read_b64 v[{b+2}:{b+3}], v{V_L16}"); return
        a(f"ds_read_b64 v[{b}:{b+1}], v{b if lo is None else lo}\nds_read_b64 v[{b+2}:{b+3}], v{b+2}")
    def accq(p,slot): return V_ACC+4*(slot if p<2 else slot&1)
    def flush(p,slot):
        acc=accq(p,slot); d=V_D+slot if p>1 else V_T0
        if p==1: ad(d,V_DP+(slot>>1),slot&1,S_OB)
        if p==3:
            for i in range(4): a(f"v_mul_f32 v{acc+i}, v{V_SC+slot}, v{acc+i}")
        a(f"""v_cvt_pk_bf16_f32 v{V_PK}, v{acc}, v{acc+1}
          v_cvt_pk_bf16_f32 v{V_PK+1}, v{acc+2}, v{acc+3}
          ds_write_b64 v{d}, v[{V_PK}:{V_PK+1}]""")
    PR=int(os.environ.get("PRIO","4"))
    LLO=int(os.environ.get("LLO",1)); LSW=float(os.environ.get("LSW",0.5)); LHI=int(os.environ.get("LHI",4)); LE=int(os.environ.get("LE",4))
    L01=int(os.environ.get('L01',3)); LLF=int(os.environ.get('LLF',0)); EP0=int(os.environ.get('EP0',0)); MIDE=int(os.environ.get('MIDE',0)); LL3=int(os.environ.get('LL3',0)); LS3=float(os.environ.get('LS3',0.6))
    def phase(h,p,side,early=None):
        H=S_HDR+4*p; I=V_IDX+4*UOFF[p]; base=[S_OB,S_B0,S_B1,S_B0][p]
        RB=[V_B+4*k for k in range(NB)]+([V_ACC+8,V_ACC+12] if p>=2 else [V_D])
        seq=[]
        for slot,(r,pb,n) in enumerate(LAY[p][h]):
            cap=(CAPE if early else CAPS)[p][r]; assert cap<=n
            for k in range(cap): seq.append((I+pb+k,slot,k==0,k==cap-1))
        n=len(seq)
        if p==1 and EP0: L=lambda i:DPT; prios={0:"e1",n//2:"e0"}
        elif p<2: L=lambda i:L01; prios={0:2,n//3+1:1,2*(n//3+1):0}
        elif early: L=lambda i:LE; prios={0:2}
        elif p==3 and MIDE: L=lambda i:(LL3 if i<LS3*n else LHI); prios={0:0}
        else: L=lambda i:(LLO if i<LSW*n else LHI); prios={0:1,n//2:0} if p==2 else {0:"m"}
        q=[]; ip=0; pend=None; mark=0
        for i,(ireg,slot,first,last) in enumerate(seq):
            if PR and i in prios:
                if str(prios[i])[0]=="e":
                    l=a.label("PM"); a(f"s_setprio 2\ns_cmp_lt_u32 s4, {2*NE}\ns_cbranch_scc1 {l}\ns_setprio {prios[i][1]}\n{l}:")
                elif prios[i]=="m":
                    l=a.label("PM"); a(f"s_setprio 1\ns_cmp_lt_u32 s4, {2*(NE+NM_)}\ns_cbranch_scc1 {l}\ns_setprio 0\n{l}:")
                else: a(f"s_setprio {prios[i]}")
            while ip<min(n,i+1+L(i)):
                r_,s_,f_,_=seq[ip]
                issue(r_,RB[ip%len(RB)],base,V_D+s_ if (f_ and p>1) else None); q.extend([ip,ip]); ip+=1
            if i in q:
                k=max(x for x,t in enumerate(q) if t==i); a(f"s_waitcnt lgkmcnt({len(q)-1-k})"); del q[:k+1]
            mf(accq(p,slot),RB[i%len(RB)],first and p!=1)
            if pend is not None:
                nb=len([x for x in a.l[mark:] if not x.endswith(":")])
                if p==1 and pend==0: spin(C_L,14); q.clear()
                elif nb<8: a(f"s_nop {8-nb-1}")
                flush(p,pend); q.append("w"); pend=None
            if last:
                r,pb,nr=LAY[p][h][slot]; cap=(CAPE if early else CAPS)[p][r]; tag=f"{h}{p}{slot}{'e' if early else ''}"
                mark=len(a.l)
                a(f"s_cmp_gt_u32 s{H+slot}, {cap}\ns_cbranch_scc1 K3_X{tag}\nK3_R{tag}:")
                side.append((tag,H+slot,I+pb,cap,nr,accq(p,slot),RB[i%len(RB)],base))
                if p>0: pend=slot
        if p>0: a("s_nop 5"); flush(p,pend)
    def sidepath(tag,np_,I,cap,n,acc,b,base):
        a(f"K3_X{tag}:")
        for k in range(cap,n):
            issue(I+k,b,base); a("s_waitcnt lgkmcnt(0)"); mf(acc,b,False)
            a(f"s_cmp_le_u32 s{np_}, {k+1}\ns_cbranch_scc1 K3_Y{tag}")
        a(f"""s_mov_b32 s{S_T}, s{np_+16}
          s_sub_u32 s{S_T+1}, s{np_}, {n}
          v_lshrrev_b32 v{V_T0}, 2, v{V_L16}
          K3_O{tag}:
          buffer_load_dword v{V_T1}, v{V_T0}, s[{S_OVF}:{S_OVF+3}], s{S_T} offen
          s_add_u32 s{S_T}, s{S_T}, 256
          s_waitcnt vmcnt(0)""")
        issue(V_T1,b,base); a("s_waitcnt lgkmcnt(0)"); mf(acc,b,False)
        a(f"""s_sub_u32 s{S_T+1}, s{S_T+1}, 1
          s_cmp_lg_u32 s{S_T+1}, 0
          s_cbranch_scc1 K3_O{tag}
          K3_Y{tag}:
          s_branch K3_R{tag}""")
    def readout(c0reg,two,climit):
        l=a.label("RO")
        a(f"""s_lshl_b32 s{S_T}, s{c0reg}, 10
          v_add_u32 v{V_T0}, s{S_T}, v{V_L16}
          v_add_u32 v{V_T1}, {LDS_OUT}, v{V_T0}
          ds_read_b128 v[{V_B}:{V_B+3}], v{V_T1}
          s_cmp_ge_u32 s{c0reg}, {climit-two}
          s_cbranch_scc1 {l}
          ds_read_b128 v[{V_B+4}:{V_B+7}], v{V_T1} offset:{two*1024}
          s_mov_b32 s{S_T+1}, {two*1024}
          s_waitcnt lgkmcnt(0)
          buffer_store_dwordx4 v[{V_B+4}:{V_B+7}], v{V_T0}, s[{S_OUT}:{S_OUT+3}], s{S_T+1} offen{SCD}
          {l}:
          s_waitcnt lgkmcnt(0)
          buffer_store_dwordx4 v[{V_B}:{V_B+3}], v{V_T0}, s[{S_OUT}:{S_OUT+3}], 0 offen{SCD}""")
    side=[]
    st=Stamper(a,"k3" in STAMP)
    a("K3_GOWN:\ns_bitcmp1_b32 s4, 0\ns_cbranch_scc1 K3_GB")
    for h in range(2):
        if h==1: a("K3_GB:")
        st.n=0
        phase(h,0,side)
        st()
        arrive(C_L)
        a(f"s_cmp_eq_u32 s{S_PEND}, 0\ns_cbranch_scc1 K3_NP{h}\ns_mov_b32 s{S_PEND}, 0"); pubflag(0); a("s_mov_b64 exec, -1"); ('l' in os.environ.get('RWM','')) and rewarm(True); a(f"K3_NP{h}:")
        (LLF and late_loads(2,h)); spin(G_S0,2); (LLF or late_loads(2,h)); st()
        phase(h,1,side); st(); (LLF and late_loads(3,h)); handover(None,None,0); (LLF or late_loads(3,h)); st()
        a(f"s_cmp_lt_u32 s4, {2*NE}\ns_cbranch_scc1 K3_EA{h}")
        if os.environ.get("LASTE","0")=="1": a(f"s_cmp_eq_u32 s{S_HOP}, {nhop-1}\ns_cbranch_scc1 K3_EA{h}")
        for e in (0,1):
            if e: a(f"K3_EA{h}:"); st.n=4
            phase(h,2,side,e); st(); handover(None,None,1); a("s_waitcnt vmcnt(0)"); st()
            if e: a(f"K3_EB{h}:")
            elif MIDE: a(f"s_cmp_lt_u32 s4, {2*(NE+NM_)}\ns_cbranch_scc1 K3_EB{h}")
            phase(h,3,side,e)
            a(f"s_waitcnt lgkmcnt(0)"); st()
            if not (h==1 and e==1): a("s_branch K3_GE")
    a("K3_GE:")
    arrive(C_4)
    a(f"""s_setprio 3
      s_lshr_b32 s10, s4, 1
      s_lshl_b32 s{S_T}, s10, 2
      s_add_u32 s{S_T}, s{S_T}, {LDS_CNT+C_E2}
      v_mov_b32 v{V_T0}, s{S_T}
      s_mov_b64 exec, 1
      ds_add_rtn_u32 v{V_T1}, v{V_T0}, v{V_T1}
      s_mov_b64 exec, -1
      s_mul_i32 s{S_T}, s10, 3584
      v_add_u32 v{V_B+8}, s{S_T}, v{V_L16}
      v_add_u32 v{V_B+9}, {LDS_OUT}, v{V_B+8}
      s_waitcnt lgkmcnt(0)
      v_readfirstlane_b32 s{S_T+1}, v{V_T1}
      s_bitcmp1_b32 s{S_T+1}, 0
      s_cbranch_scc0 K3_E2""")
    for k in range(4): a(f"ds_read_b128 v[{V_ACC+4*k}:{V_ACC+4*k+3}], v{V_B+9} offset:{1024*k}")
    for k in range(4):
        a(f"s_waitcnt lgkmcnt({3-k})")
        if k==3: a("s_mov_b32 exec_hi, 0")
        a(f"buffer_store_dwordx4 v[{V_ACC+4*k}:{V_ACC+4*k+3}], v{V_B+8}, s[{S_OUT}:{S_OUT+3}], 0 offen offset:{1024*k}{SCD}")
    a(f"""s_mov_b64 exec, -1
      s_mov_b32 s{S_PEND}, 1
      s_cmp_ge_u32 s4, {2*(NE+NM_)}
      s_cbranch_scc1 K3_E2
      s_mov_b32 s{S_PEND}, 0""")
    pubflag(1)
    a(f"""s_cmp_ge_u32 s4, {2*NE}
      s_cselect_b32 s{S_T}, {C_DB}, {C_DA}
      s_add_u32 s{S_T}, s{S_T}, {LDS_CNT}
      v_mov_b32 v{V_T0}, s{S_T}
      v_mov_b32 v{V_PK}, 1
      ds_add_u32 v{V_T0}, v{V_PK}
      s_mov_b64 exec, -1""")
    if 'e' in os.environ.get('RWM',''): rewarm(False)
    a("K3_E2:\ns_setprio 0"); st()
    a(f"s_cmp_eq_u32 s{S_HOP}, {nhop-1}\ns_cbranch_scc1 {'K3_TOT' if 'tot' in STAMP else 'K3_END'}")
    spin(C_4,14); st()
    a(f"""s_add_u32 s{S_HOP}, s{S_HOP}, 1
      s_add_u32 s{S_OUT}, s{S_OUT}, {TSTR}
      s_addc_u32 s{S_OUT+1}, s{S_OUT+1}, 0
      s_add_u32 s{S_TAB}, s{S_TAB}, {TSTR}
      s_addc_u32 s{S_TAB+1}, s{S_TAB+1}, 0
      s_mov_b32 s10, s{S_B0}
      s_mov_b32 s{S_B0}, s{S_B1}
      s_mov_b32 s{S_B1}, s10"""); st()
    if st.on:
        a(f"s_cmp_lg_u32 s{S_HOP}, {STH}\ns_cbranch_scc1 K3_GOWN\ns_waitcnt lgkmcnt(0)")
        a("s_mov_b32 s92, s98\ns_mov_b32 s94, s96"); st.n=12
        st.dump(77,0,0); st.dump(77,int(os.environ.get('W1',12)),16); a("s_mov_b64 exec, -1")
    a("s_branch K3_GOWN")
    for x in side: sidepath(*x)
    a("K3_HELPER:\ns_setprio 3"); flag_srd()
    a(f"""v_mov_b32 v9, 0
      v_lshlrev_b32 v10, 2, v2
      v_add_u32 v11, {ZT*8}, v10
      ds_write_b32 v11, v9
      v_add_u32 v11, {TB_+ZT*8}, v10
      ds_write_b32 v11, v9
      v_add_u32 v11, {LDS_OUT+ZO*8}, v10
      ds_write_b32 v11, v9
      v_and_b32 v11, 0x7c, v10
      v_add_u32 v11, {LDS_CNT}, v11
      ds_write_b32 v11, v9
      s_sub_u32 s4, s3, 14
      s_lshl_b32 s4, s4, 2
      s_cmp_eq_u32 s3, 14
      s_cselect_b32 s6, 15, 7""")
    for k in range(4):
        a(f"s_add_u32 s10, s4, {k}\ns_cmp_ge_u32 s10, s5\ns_addc_u32 s10, s10, 0\ns_and_b32 s10, s10, 7\ns_lshl_b32 s{56+k}, s10, 7")
    a("s_waitcnt vmcnt(0) lgkmcnt(0)\ns_barrier\ns_branch K3_HF0")
    def pissue(off,nd):
        w=2 if nd<=2 else 4
        for k in range(4): a(f"s_load_dwordx{w} s[{32+4*k}:{32+4*k+w-1}], s[60:61], s{56+k} glc")
    def pstart(off,nd):
        a(f"s_add_u32 s60, s{S_FLAG}, {off}\ns_addc_u32 s61, s{S_FLAG+1}, 0"); pissue(off,nd)
    def pfill(seg,base,off,nd,dofill=True):
        l=a.label("PL")
        a(f"""s_mov_b32 s62, s{S_HOP}
          s_mov_b32 s7, s6
          s_mov_b32 s63, {SPIN}
          s_branch {l}_W
          {l}:""")
        if int(os.environ.get("PSL",0)): a(f"s_sleep {os.environ['PSL']}")
        pissue(off,nd)
        a(f"{l}_W:\ns_sub_u32 s63, s63, 1\ns_cmp_eq_u32 s63, 0\ns_cselect_b32 s62, 0, s62\ns_waitcnt lgkmcnt(0)")
        for k in range(4):
            for d in range(1,nd): a(f"s_min_u32 s{32+4*k}, s{32+4*k}, s{32+4*k+d}")
            a(f"""s_bitcmp0_b32 s7, {k}
              s_cbranch_scc1 {l}_{k}
              s_cmp_lt_u32 s{32+4*k}, s62
              s_cbranch_scc1 {l}_{k}
              s_bitset0_b32 s7, {k}""")
            if dofill: a(f"s_add_u32 s10, s4, {k}"); seg_fill(10,seg,base,0,NCH[seg])
            a(f"{l}_{k}:")
        a(f"s_cmp_lg_u32 s7, 0\ns_cbranch_scc1 {l}")
    TW=int(os.environ.get("TW",1)); TWB=int(os.environ.get("TWB",0))
    def tokwarm(node,nk,withx):
        a(f"""s_load_dwordx2 s[44:45], s[0:1], 0
          v_lshrrev_b32 v20, 7, v{V_L16}
          v_and_b32 v21, 127, v{V_L16}
          s_mov_b32 s10, {GSTR}
          v_mad_u32_u24 v20, v20, s10, v21
          s_mul_i32 s10, s2, {96*8}
          s_sub_u32 s11, s3, 14
          s_mul_i32 s11, s11, {nk*TSTR}
          s_add_u32 s10, s10, s11
          s_add_u32 s10, s10, {TSTR+node*8}""")
        a.srd(40,8,9,8*TSTR)
        for i in range(4*nk):
            a(f"buffer_load_dwordx4 v[24:27], v20, s[40:43], s10 offen")
            if i<4*nk-1: a(f"s_add_u32 s10, s10, {8*GSTR}")
        a(f"""s_waitcnt lgkmcnt(0)
          s_mov_b32 s46, {N*256}
          s_mov_b32 s47, 0x20000
          s_mul_i32 s10, s2, {96*256}
          s_sub_u32 s11, s3, 14
          s_lshl_b32 s11, s11, 11
          s_add_u32 s10, s10, s11
          s_add_u32 s10, s10, {node*256}""")
        for i in range(2): a(f"buffer_load_dwordx4 v[24:27], v{V_L16}, s[44:47], s10 offen offset:{1024*i}")
    st=Stamper(a,"k3" in STAMP)
    NC=7-NE-NM_
    a("K3_HL:"); spin(C_4,14,0); st()
    pfill(1,S_B1,1024,NM_); st(); pstart(32,NC); a("s_waitcnt vmcnt(0)"); st(); arrive(G_S1)
    pfill(2,S_B0,32,NC,False)
    spin(C_0,14); st()
    for k in range(4):
        if k==3: a("s_cmp_eq_u32 s3, 15\ns_cbranch_scc1 K3_H3")
        a(f"s_add_u32 s10, s4, {k}"); seg_fill(10,2,S_B0,0,NCH[2])
    a("K3_H3:"); st(); a("s_waitcnt vmcnt(0)"); st(); arrive(G_S2)
    a(f"s_cmp_eq_u32 s{S_HOP}, {nhop-1}\ns_cbranch_scc1 K3_WARM")
    XW=int(os.environ.get("XW",0))
    if XW:
        a(f"""s_cmp_lg_u32 s{S_HOP}, {XW}
          s_cbranch_scc1 K3_NXW
          s_load_dwordx2 s[44:45], s[0:1], 0
          s_mov_b32 s46, {N*256}
          s_mov_b32 s47, 0x20000
          s_mul_i32 s10, s2, {98*256}
          s_sub_u32 s11, s3, 14
          s_mul_i32 s11, s11, {13*1024}
          s_add_u32 s10, s10, s11
          s_waitcnt lgkmcnt(0)""")
        for i in range(13):
            a(f"buffer_load_dwordx4 v[24:27], v{V_L16}, s[44:47], s10 offen offset:{1024*(i%4)}")
            if i%4==3: a("s_add_u32 s10, s10, 4096")
        a("K3_NXW:")
    if TWB:
        a(f"s_cmp_lg_u32 s{S_HOP}, {nhop-2}\ns_cbranch_scc1 K3_NWB"); tokwarm(16,2,True); a("K3_NWB:")
    spin(C_1,14)
    if os.environ.get("WDA","1")=="1": spin(C_DA,NE)
    st()
    a(f"""s_add_u32 s{S_HOP}, s{S_HOP}, 1
      s_mov_b32 s10, s{S_B0}
      s_mov_b32 s{S_B0}, s{S_B1}
      s_mov_b32 s{S_B1}, s10
      s_add_u32 s{S_TAB}, s{S_TAB}, {TSTR}
      s_addc_u32 s{S_TAB+1}, s{S_TAB+1}, 0
      K3_HF0:""")
    if int(os.environ.get("PS0",0)): a(f"s_sleep {os.environ['PS0']}")
    pstart(0,NE); pfill(0,S_B0,0,NE); st(); pstart(1024,NM_); a("s_waitcnt vmcnt(0)"); st(); arrive(G_S0)
    if st.on:
        a(f"s_cmp_lg_u32 s{S_HOP}, {STH}\ns_cbranch_scc1 K3_HL\ns_waitcnt lgkmcnt(0)")
        st.dump(77,15,32); st.dump(77,14,48); a(f"s_mov_b64 exec, -1")
    a("s_branch K3_HL")
    a("K3_WARM:")
    if TW: tokwarm(0,3,True)
    if os.environ.get("W4","1")=="1":
        a(f"""s_cmp_ge_u32 s2, 64
          s_cbranch_scc1 K3_END
          s_cmp_eq_u32 s3, 14
          s_cbranch_scc1 K3_END
          s_mov_b32 v0_dummy, 0""".replace("s_mov_b32 v0_dummy, 0",f"v_lshrrev_b32 v0, 4, v{V_L16}"))
        code_prefetch(a,"attn_kernel","CODE_END",5,8,2,40,20)
        a.srd(40,8,9,69*1024,OFF_WF)
        a("s_lshl_b32 s44, s5, 10")
        for i in range(9): a(f"buffer_load_dwordx4 v[24:27], v20, s[40:43], s44 offen\ns_add_u32 s44, s44, 8192")
    a("K3_END:\ns_endpgm")
    if "tot" in STAMP:
        a("K3_TOT:"); spin(C_4,14); a("s_memtime s[74:75]\ns_waitcnt lgkmcnt(0)"); x=Stamper(a,True); x.n=2; x.dump(0,0,0); a("s_endpgm")
    return a.text(), desc(name,128,102 if STAMP else 80)
```

```python
from common import *
from sched import *
from k1 import f2u
import math
TOK=69632
CNT=TOK+65536
K4_LDS=CNT+64
NRING=int(os.environ.get("NRING",6))
GP=[0,26]; VX=[52,92]; UP=[132,148]; ACC=[164,172]
EPQ=[180,184]
O2=[188,189]
AL=192
GO=[192,172]
Y,GW,AK,D,DE,T0,T1,T2,T3=196,197,198,199,200,201,202,203,204
vW,vW2=205,206; TB=[207,208]; TR=[209,210]; vBP,vALM,vXS,vVM,vDMA,vXG,vXL,vDI,vOUT,vDG,DN=211,212,213,214,215,216,217,218,219,220,221
X4=222
vBP1=226; vPF=227
WR=228
NV=WR+4*NRING
S_G=12; S_X=16; S_D=20; S_O=24; S_WF=28
S_N0=32
S_MA=44; S_MC=46; S_C128=48; S_EPS=49; S_L2E=50; S_WS=51; S_CNT=52
LOC=os.environ.get('LOCAL','')=='1'
GS4,TS4,NSH=(128,4096,11) if LOC else (GSTR,TSTR,3)
def chunk(t,c): return GP[t]+2+6*c
def Pc(t,i): return GP[t]+6*i
def gE(t,b): return VX[t]+10*(b>>1)+(0 if b%2==0 else 8)
def VP(t,b): return VX[t]+10*(b>>1)+(2 if b%2==0 else 6)
def SEL(t,q): return VX[t]+10*q+4
ID="quad_perm:[0,1,2,3]"

def body(NT,hook=None,hook2=None):
    B=Block(); T=range(NT)
    A0=lambda t:ACC[t]; A1=lambda t:ACC[t]+4
    nfr=[0]; OFM=os.environ.get('OFM','0')=='1'
    def frag(f):
        r=WR+4*(nfr[0]%NRING); nfr[0]+=1
        if f<64: B.add(f"ds_read_b128 v[{r}:{r+3}], v{vW} offset:{f*1024}","ds",R(vW),R(r,4))
        else: B.add(f"ds_read_b128 v[{r}:{r+3}], v{vW2} offset:{(f-64)*1024}","ds",R(vW2),R(r,4))
        return r
    def v(text,wr,rd,kind="valu",dpp=()): B.v(text,[f"v{x}" for x in wr],[f"v{x}" for x in rd],kind,[f"v{x}" for x in dpp])
    def op2(op,d,a,b): v(f"{op} v{d}, v{a}, v{b}",[d],[a,b]+([d] if "fmac" in op else []))
    def ops(op,d,sr,b): v(f"{op} v{d}, s{sr}, v{b}",[d],[b]+([d] if "fmac" in op else []))
    def cvt(d,a,b): v(f"v_cvt_pk_bf16_f32 v{d}, v{a}, v{b}",[d],[a,b])
    def tr(op,d,s): v(f"{op} v{d}, v{s}",[d],[s],"trans")
    def mov(d,s): v(f"v_mov_b32 v{d}, v{s}",[d],[s])
    def swap(n,a,b): v(f"v_permlane{n}_swap_b32 v{a}, v{b}",[a,b],[a,b],"perml")
    def swz16(d,s): B.add(f"ds_swizzle_b32 v{d}, v{s} offset:0x401F","ds",R(s),R(d))
    def bperm(d,a,s,off=0): B.add(f"ds_bpermute_b32 v{d}, v{a}, v{s}"+(f" offset:{off}" if off else ""),"ds",R(a)+R(s),R(d))
    def dpp(op,d,s0,s1,ctl,rm=0xf,bm=0xf):
        part=[d] if (rm,bm)!=(0xf,0xf) else []
        if s1 is None: v(f"{op}_dpp v{d}, v{s0} {ctl} row_mask:{rm:#x} bank_mask:{bm:#x}",[d],[s0]+part,"dpp",[s0])
        else: v(f"{op}_dpp v{d}, v{s0}, v{s1} {ctl} row_mask:{rm:#x} bank_mask:{bm:#x}",[d],[s0,s1]+part,"dpp",[s0])
    def merge(op,d,s0,s1=None):
        dpp(op,d,s0,s1,"row_ror:8",0x3,0xc); dpp(op,d,s0,s1,"row_ror:8",0xc,0x3)
    def cnd(d,a,b,m): B.v(f"v_cndmask_b32 v{d}, v{a}, v{b}, s[{m}:{m+1}]",[f"v{d}"],[f"v{a}",f"v{b}"])
    tok=[]
    for c in range(4):
        for t in T:
            r=chunk(t,c)
            if os.environ.get("RD2","0")=="1": B.add(f"ds_read2st64_b64 v[{r}:{r+3}], v{TB[t]} offset0:{2*c} offset1:{2*c+1}","ds",R(TB[t]),R(r,4))
            else:
                for h in range(2): B.add(f"ds_read_b64 v[{r+2*h}:{r+2*h+1}], v{TB[t]} offset:{c*1024+h*512}","ds",R(TB[t]),R(r+2*h,2))
            tok+=R(r,4)
    PACE=int(os.environ.get("PACE",2))
    trl=[(t,b) for b in range(8) for t in T]
    def trread(dep=()):
        t,b=trl.pop(0); r=gE(t,b); B.add(f"ds_read_b64_tr_b16 v[{r}:{r+1}], v{TR[t]} offset:{b*512}","ds",R(TR[t])+list(dep),R(r,2)); tok.extend(R(r,2))
        if not trl and hook: hook(B,tok)
    if not PACE:
        while trl: trread()
    if os.environ.get('NOBODY'): B.cut=B.cut0=0; return B
    for c in range(4):
        r=frag(64+c)
        for t in T: B.mfma(A0(t),chunk(t,c),chunk(t,c),None if c==0 else A0(t))
        for t in T: B.mfma(A1(t),chunk(t,c),r,None if c==0 else A1(t))
    for t in T:
        x=A0(t); cnd(x,x,x+1,S_MA); cnd(x+2,x+2,x+3,S_MA); cnd(x,x,x+2,S_MC)
        bperm(O2[t],vDG,x)
    for t in T:
        x=A1(t); cvt(EPQ[t],x,x+1); cvt(EPQ[t]+1,x+2,x+3)
        for q in range(1,4): dpp("v_mov_b32",x,x+q,None,ID,0xf,1<<q)
    if NT==2:
        dpp("v_mov_b32",A1(1)+1,A1(1),None,"quad_perm:[0,1,0,1]"); cnd(A1(0),A1(0),A1(1)+1,S_MC)
        merge("v_mov_b32",O2[0],O2[1])
    bperm(Y,vXS,A1(0)); bperm(GW,vXS,A1(0),4)
    s2=O2[0]
    ops("v_mul_f32",T0,S_C128,Y); op2("v_mul_f32",DE,D,D); ops("v_mul_f32",DE,S_EPS,DE)
    v(f"v_fma_f32 v{T1}, -v{T0}, v{T0}, v{DE}",[T1],[T0,DE]); ops("v_fmac_f32",T1,S_C128,s2); op2("v_max_f32",T1,T1,DE)
    tr("v_rsq_f32",T1,T1)
    v(f"v_and_b32 v{T0}, 0x80000000, v{D}",[T0],[D]); op2("v_or_b32",AK,T1,T0)
    for r in range(4): bperm(AL+r,vALM,AK,4*r)
    for b in range(8):
        for c in range(4):
            r=frag(b*4+c)
            for t in T:
                a=ACC[t]+4*(b&1); o=B.mfma(a,r,chunk(t,c),None if c==0 else a)
            if trl and (b*4+c)%PACE==PACE-1:
                o.wr=set(o.wr); tag=f"pace{b}_{c}"; B.ops[-1].tagw=tag; trread([tag])
        for t in T:
            a=ACC[t]+4*(b&1); u=UP[t]+2*b; cvt(u,a,a+1); cvt(u+1,a+2,a+3)
    while trl: trread()
    for c in range(4):
        for t in T: B.mfma(A0(t),chunk(t,c),UP[t]+4*c,None if c==0 else A0(t))
    S=A0(0); W=A1(0); m=T0; m2=T1
    if NT==2:
        for r in range(4): merge("v_mov_b32",S+r,A0(1)+r)
    for r in range(4): op2("v_mul_f32",W+r,AK,AL+r)
    for r in range(4): op2("v_mul_f32",S+r,S+r,W+r)
    v(f"v_max3_f32 v{m}, v{S}, v{S+1}, v{S+2}",[m],[S,S+1,S+2]); op2("v_max_f32",m,m,S+3)
    swz16(m2,m); op2("v_max_f32",m,m,m2)
    for r in range(4): op2("v_sub_f32",S+r,S+r,m)
    for r in range(4): tr("v_exp_f32",S+r,S+r)
    op2("v_add_f32",m,S,S+1); op2("v_add_f32",m2,S+2,S+3); op2("v_add_f32",m,m,m2)
    swz16(m2,m); op2("v_add_f32",m,m,m2); tr("v_rcp_f32",m,m); op2("v_mul_f32",m,m,D)
    for r in range(4): op2("v_mul_f32",W+r,m,AL+r)
    for r in range(4): op2("v_mul_f32",S+r,S+r,W+r)
    cvt(W,S,S+1); cvt(W+1,S+2,S+3)
    for t in T:
        for h in range(2):
            if t==0: op2("v_and_b32",Pc(0,0)+h,W+h,vVM)
            else: dpp("v_and_b32",Pc(1,0)+h,W+h,vVM,"row_ror:8")
        for i in range(1,5):
            for h in range(2): v(f"v_mov_b32 v{Pc(t,i)+h}, v{Pc(t,0)+h}",[Pc(t,i)+h],[Pc(t,0)+h])
    for b in range(8):
        for c in range(4):
            r=frag(32+b*4+c)
            for t in T:
                a=UP[t]+4*(b&3); B.mfma(a,chunk(t,c),r,None if c==0 else a)
        for t in T:
            a=UP[t]+4*(b&3); u=VP(t,b); cvt(u,a,a+1); cvt(u+1,a+2,a+3)
    B.cut=len(B.ops)
    for t in T: B.mfma(A1(t),EPQ[t],Pc(t,0),None)
    for b in range(8):
        for t in T:
            a=UP[t]+4*(b&3)
            if b%2==0: B.mfma(a,VP(t,b),Pc(t,b>>1),None)
            else: B.mfma(a,SEL(t,b>>1),chunk(t,b>>1)+2,None)
        if OFM:
            for t in T:
                a=UP[t]+4*(b&3); o=GO[t]
                for e in range(4): op2("v_mul_f32" if (b==0 and e<2) else "v_fmac_f32",o+(e&1),a+e,a+e)
            continue
        for t in T:
            a=UP[t]+4*(b&3); u=chunk(t,b>>1)+2*(b&1); cvt(u,a,a+1); cvt(u+1,a+2,a+3)
        if b&1:
            for t in T: B.mfma(GO[t],chunk(t,b>>1),chunk(t,b>>1),None if b==1 else GO[t])
    if hook2: hook2(B,R(GP[0]+2) if not OFM else R(UP[0]+12))
    if OFM:
        o0,o1=GO
        for t in T: op2("v_add_f32",GO[t],GO[t],GO[t]+1)
        if NT==2:
            swap(32,o0,o1); op2("v_add_f32",o0,o0,o1)
            mov(o1,o0); swap(16,o0,o1); op2("v_add_f32",o0,o0,o1)
            mov(o1,o0); swap(32,o0,o1); merge("v_mov_b32",o0,o1)
        else:
            for n in (16,32): mov(o1,o0); swap(n,o0,o1); op2("v_add_f32",o0,o0,o1)
    else:
        for t in T:
            x=GO[t]; cnd(x,x,x+1,S_MA); cnd(x+2,x+2,x+3,S_MA); cnd(x,x,x+2,S_MC)
            bperm(O2[t],vDG,x)
        if NT==2: merge("v_mov_b32",O2[0],O2[1])
        o0=O2[0]
    mu=T0; lg=T1; o=o0
    op2("v_add_f32",mu,A1(0)+2,Y); op2("v_add_f32",lg,A1(0)+3,GW)
    if NT==2: merge("v_add_f32",mu,A1(1)+2,Y); merge("v_add_f32",lg,A1(1)+3,GW)
    ops("v_mul_f32",mu,S_C128,mu)
    v(f"v_fma_f32 v{lg}, -v{mu}, s{S_WS}, v{lg}",[lg],[mu,lg])
    v(f"v_fma_f32 v{T2}, -v{mu}, v{mu}, v{DE}",[T2],[mu,DE])
    tr("v_rcp_f32",T3,D); ops("v_mul_f32",lg,S_L2E,lg)
    v(f"v_and_b32 v{mu}, 0x80000000, v{D}",[mu],[D]); op2("v_xor_b32",lg,lg,mu)
    ops("v_fmac_f32",T2,S_C128,o); op2("v_max_f32",T2,T2,DE); tr("v_rsq_f32",T2,T2)
    op2("v_mul_f32",lg,lg,T2)
    Q=("quad_perm:[1,0,3,2]","quad_perm:[2,3,0,1]","row_half_mirror")
    dpp("v_max_f32",T2,lg,lg,Q[0]); dpp("v_max_f32",T2,T2,T2,Q[1]); dpp("v_max_f32",T2,T2,T2,Q[2])
    op2("v_sub_f32",lg,lg,T2); tr("v_exp_f32",lg,lg)
    dpp("v_add_f32",T2,lg,lg,Q[0]); dpp("v_add_f32",T2,T2,T2,Q[1]); dpp("v_add_f32",T2,T2,T2,Q[2])
    tr("v_rcp_f32",T2,T2); op2("v_mul_f32",lg,lg,T3); op2("v_mul_f32",lg,lg,T2)
    dpp("v_mov_b32",T2,lg,None,Q[0]); cvt(T2,lg,T2)
    for t in T:
        BG=UP[t]+8; bperm(BG+4,(vBP,vBP1)[t],T2); bperm(BG+5,(vBP,vBP1)[t],T2,8)
    for r in range(4): op2("v_mul_f32",S+r,S+r,lg)
    for ctl in Q:
        for r in range(4): dpp("v_add_f32",S+r,S+r,S+r,ctl)
    cvt(S,S,S+1); cvt(S+1,S+2,S+3)
    for t in T:
        BG=UP[t]+8
        for h in range(2):
            if t==0: op2("v_and_b32",BG+2+h,S+h,vVM)
            else: dpp("v_and_b32",BG+2+h,S+h,vVM,"row_ror:8")
        for h in range(2): op2("v_and_b32",BG+h,BG+4+h,vVM)
        for h in range(2): op2("v_and_b32",BG+4+h,BG+4+h,vVM)
    for b in range(8):
        for t in T:
            BG=UP[t]+8; f=[UP[t],UP[t]+4,A0(t),A1(t)][b&3]
            if b%2==0: B.mfma(f,gE(t,b),BG,None)
            else: B.mfma(f,VP(t,b),BG+2,None)
        for t in T:
            f=[UP[t],UP[t]+4,A0(t),A1(t)][b&3]; u=chunk(t,b>>1)+2*(b&1)
            cvt(u,f,f+1); cvt(u+1,f+2,f+3)
            if b&1:
                c=chunk(t,b>>1)
                B.add(f"buffer_store_dwordx4 v[{c}:{c+3}], v{vOUT}, s[{S_O}:{S_O+3}], s36 offen offset:{512*t+64*(b>>1)}"+os.environ.get("OST"," sc1"),"vst",R(c,4)+R(vOUT),[])
    return B

def emit_body(a,NT,hook=None,hook2=None):
    SCH=os.environ.get("NOSCHED","")==""
    B=body(NT,hook,hook2); ops=B.schedule(SCH); lines,dsq,vmq=finalize(ops)
    pr=os.environ.get("K4PRIO","0")
    if pr!="0": lines=add_prio(lines,*map(int,pr.split("_")))+["s_setprio 0"]
    print(f"K4 body({NT}): ops",len(ops),"est",getattr(B,"est",None),"mfma",sum(o.kind=="mfma" for o in ops),"valu",sum(o.kind in VAL for o in ops),"ds",sum(o.kind=="ds" for o in ops),"nops",sum(l.startswith("s_nop") for l in lines),"waits",sum(l.startswith("s_waitcnt") for l in lines))
    for l in lines: a(l)

def gen_k4(name):
    a=Asm(); a.l.append(head(name))
    st=Stamper(a,"k4" in STAMP); st()
    if st.on: a("s_memrealtime s[66:67]")
    T4="t4" in STAMP
    if T4: a("s_memtime s[72:73]")
    a(f"""s_cmp_ge_u32 s2, 256
      s_cbranch_scc1 K4_END
      s_load_dwordx2 s[8:9], s[0:1], 88
      s_load_dwordx2 s[40:41], s[0:1], 0
      s_load_dwordx2 s[42:43], s[0:1], 24
      s_load_dwordx2 s[10:11], s[0:1], 72
      v_lshrrev_b32 v1, 6, v0
      v_and_b32 v2, 63, v0
      v_lshrrev_b32 v3, 4, v2
      v_readfirstlane_b32 s3, v1
      v_and_b32 v4, 15, v2
      v_lshlrev_b32 v{vW}, 4, v2
      v_lshrrev_b32 v5, 3, v2
      v_and_b32 v6, 7, v2
      s_and_b32 s4, s3, 3
      s_lshr_b32 s5, s3, 2
      s_mul_i32 s{S_N0}, s2, 96
      s_lshl_b32 s7, s5, 4
      s_add_u32 s{S_N0}, s{S_N0}, s7
      s_lshl_b32 s7, s5, 15
      s_add_u32 s7, s7, {TOK}
      s_add_u32 s33, s4, 1
      v_subrev_u32 v6, s33, v6
      v_and_b32 v6, 7, v6
      v_lshlrev_b32 v6, 4, v6
      v_and_b32 v7, 3, v5
      v_lshrrev_b32 v8, 2, v5
      v_lshl_or_b32 v7, v7, 1, v8
      s_mov_b32 s33, {GS4}
      v_mad_u32_u24 v{vDMA}, v7, s33, v6
      s_lshl_b32 s33, s4, 10
      v_lshl_add_u32 v{vXG}, v3, 8, s33
      v_lshl_add_u32 v{vXG}, v4, 4, v{vXG}
      v_lshrrev_b32 v7, 3, v4
      v_and_b32 v8, 7, v4
      v_lshrrev_b32 v5, 1, v3
      s_lshl_b32 s33, s4, 2
      v_xor_b32 v17, v5, v7
      v_lshl_add_u32 v9, v17, 1, v5
      v_add_lshl_u32 v9, v9, s33, 1
      v_mov_b32 v10, 0x40000000
      v_cmp_eq_u32 vcc, 0, v8
      s_waitcnt lgkmcnt(0)
      v_cndmask_b32 v{vDI}, v9, v10, vcc
      v_add_lshl_u32 v9, v7, s33, 8
      v_lshl_add_u32 v9, v3, 4, v9
      v_cndmask_b32 v{vOUT}, v10, v9, vcc""")
    a.srd(S_G,8,9,8*TSTR); a.srd(S_X,40,41,N*256); a.srd(S_D,42,43,N*2); a.srd(S_O,10,11,N*256); a.srd(S_WF,8,9,69*1024,OFF_WF)
    def prefetch(a):
        l=a.label("PF")
        a(f"""s_add_u32 s34, s4, 1
          s_mul_i32 s33, s34, {TS4}
          s_lshl_b32 s37, s{S_N0}, {NSH}
          s_add_u32 s33, s33, s37
          s_lshl_b32 s34, s34, 12
          s_add_u32 s34, s34, s7
          v_xor_b32 v{vPF}, 64, v{vDMA}""")
        for half in range(2):
            if half==1: a(f"s_cmp_eq_u32 s4, 3\ns_cbranch_scc1 {l}\ns_add_u32 s33, s33, {4*TS4-24*GS4}\ns_add_u32 s34, s34, {3*4096}")
            for i in range(4):
                if os.environ.get("NOLOAD"): continue
                a(f"s_mov_b32 m0, s34\ns_add_u32 s34, s34, 1024\nbuffer_load_dwordx4 v{vPF if half else vDMA}, s[{S_G}:{S_G+3}], s33 offen{os.environ.get('NT4','')} lds")
                if i<3: a(f"s_add_u32 s33, s33, {8*GS4}")
        a(f"""{l}:
          s_lshl_b32 s33, s{S_N0}, 8
          s_lshl_b32 s34, s{S_N0}, 1
          buffer_load_dwordx4 v[{X4}:{X4+3}], v{vXG}, s[{S_X}:{S_X+3}], s33 offen{os.environ.get('NT4X','')}
          buffer_load_ushort v{DN}, v{vDI}, s[{S_D}:{S_D+3}], s34 offen""")
    def weights():
        l=a.label("WD")
        a(f"s_lshl_b32 s33, s3, 10")
        for i in range(9):
            if i==8: a(f"s_cmp_ge_u32 s3, 4\ns_cbranch_scc1 {l}")
            a(f"s_mov_b32 m0, s33\ns_nop 0\nbuffer_load_dwordx4 v{vW}, s[{S_WF}:{S_WF+3}], s33 offen lds\ns_add_u32 s33, s33, 8192")
        a(f"{l}:")
    a(f"s_load_dword s{S_WS}, s[{S_WF}:{S_WF+1}], {68*1024+252}\ns_cmp_eq_u32 s5, 0\ns_cbranch_scc0 K4_WB")
    prefetch(a); weights()
    a("s_branch K4_WC\nK4_WB:")
    weights()
    BD=os.environ.get("BDELAY","1")=="1"
    if not BD: prefetch(a)
    a(f"""K4_WC:
      v_add_u32 v{vW2}, 0x10000, v{vW}
      s_mov_b32 s{S_C128}, {f2u(1/128):#x}
      s_mov_b32 s{S_EPS}, {f2u(1e-5):#x}
      s_mov_b32 s{S_L2E}, {f2u(math.log2(math.e)):#x}
      v_cmp_eq_u32 vcc, v5, v7
      v_and_b32 v10, 1, v3
      s_lshl_b32 s33, s4, 1
      v_lshlrev_b32 v11, 7, v5
      v_lshl_add_u32 v{vBP}, v3, 4, v11
      v_xor_b32 v{vBP1}, 32, v{vBP}
      v_cndmask_b32 v{vVM}, 0, -1, vcc
      v_cndmask_b32 v{vALM}, v{vBP1}, v{vBP}, vcc
      v_lshrrev_b32 v14, 2, v4
      v_and_b32 v15, 3, v4
      v_lshlrev_b32 v11, 6, v14
      v_lshl_add_u32 v{vDG}, v4, 2, v11
      v_lshlrev_b32 v12, 7, v17
      v_xor_b32 v11, v11, v12
      v_lshl_add_u32 v{vXS}, v15, 4, v11
      v_lshl_add_u32 v{vXS}, v17, 3, v{vXS}
      s_lshl_b32 s{S_CNT}, s5, 3
      s_add_u32 s{S_CNT}, s{S_CNT}, {CNT}
      v_mov_b32 v11, s{S_CNT}
      v_mov_b32 v12, 0
      v_mov_b32 v13, 0
      ds_write_b64 v11, v[12:13]""")
    a(f"""v_lshlrev_b32 v11, 12, v8
      v_lshl_add_u32 v11, v3, 7, v11
      v_lshl_add_u32 v11, v7, 3, v11
      v_add_u32 v11, s7, v11
      v_add_u32 v12, s33, v8""")
    for t in range(2):
        a(f"v_add_u32 v13, {t}, v12\nv_and_b32 v13, 7, v13\nv_lshl_add_u32 v{TB[t]}, v13, 4, v11")
    a(f"""v_lshl_add_u32 v14, v10, 2, v14
      v_lshlrev_b32 v11, 12, v14
      v_lshl_add_u32 v11, v15, 7, v11
      v_lshl_add_u32 v11, v5, 3, v11
      v_add_u32 v11, s7, v11
      v_add_u32 v12, s33, v14""")
    for t in range(2):
        a(f"v_add_u32 v13, {t}, v12\nv_and_b32 v13, 7, v13\nv_lshl_add_u32 v{TR[t]}, v13, 4, v11")
    a(f"""v_lshrrev_b32 v11, 2, v4
      v_lshlrev_b32 v11, 10, v11
      v_lshl_add_u32 v11, v15, 7, v11
      v_add_u32 v12, s33, v5
      v_lshl_add_u32 v11, v12, 4, v11
      v_lshl_add_u32 v11, v10, 3, v11
      v_add_u32 v{vXL}, s7, v11
      v_lshlrev_b32 v12, 2, v3
      v_sub_u32 v12, v4, v12
      v_mov_b32 v13, 0x3f80
      v_mov_b32 v14, 0x3f800000
      v_cmp_eq_u32 s[40:41], 0, v12
      v_cmp_eq_u32 s[42:43], 1, v12
      v_cmp_eq_u32 s[44:45], 2, v12
      v_cmp_eq_u32 vcc, 3, v12
      v_cndmask_b32 v15, 0, v13, s[40:41]
      v_cndmask_b32 v16, 0, v13, s[44:45]
      v_cndmask_b32 v15, v15, v14, s[42:43]
      v_cndmask_b32 v16, v16, v14, vcc""")
    for t in range(2):
        for q in range(4): a(f"v_mov_b32 v{SEL(t,q)}, v15\nv_mov_b32 v{SEL(t,q)+1}, v16")
        a(f"v_mov_b32 v{EPQ[t]+2}, 0\nv_mov_b32 v{EPQ[t]+3}, 0")
    a(f"""s_mov_b32 s35, 0
      s_mov_b32 s{S_MA}, 0xaaaaaaaa
      s_mov_b32 s{S_MA+1}, 0xaaaaaaaa
      s_mov_b32 s{S_MC}, 0xcccccccc
      s_mov_b32 s{S_MC+1}, 0xcccccccc
      s_cmp_eq_u32 s5, 0
      s_cbranch_scc0 K4_WE
      s_waitcnt vmcnt(0)
      K4_WE:
      s_waitcnt vmcnt({0 if BD else 6}) lgkmcnt(0)
      s_barrier""")
    if BD:
        a("s_cmp_eq_u32 s5, 0\ns_cbranch_scc1 K4_WF")
        prefetch(a)
        a("K4_WF:")
    def arrive(a,off,t0,t1):
        a(f"""v_mov_b32 v{t0}, s{S_CNT}
          v_mov_b32 v{t1}, 1
          s_mov_b64 exec, 1
          ds_add_u32 v{t0}, v{t1} offset:{off}
          s_mov_b64 exec, -1""")
    def spin(a,off,t0,t1):
        l=a.label("SP")
        a(f"""{l}:
          ds_read_b32 v{t1}, v{t0} offset:{off}
          s_waitcnt lgkmcnt(0)
          v_readfirstlane_b32 s33, v{t1}
          s_cmp_ge_u32 s33, s38
          s_cbranch_scc1 {l}_E
          s_sleep 1
          s_branch {l}
          {l}_E:""")
    def publish(a,t0,t1,vm=0):
        a(f"""s_waitcnt vmcnt({vm})
          ds_write2st64_b64 v{vXL}, v[{X4}:{X4+1}], v[{X4+2}:{X4+3}] offset1:1
          s_waitcnt lgkmcnt(0)""")
        arrive(a,0,t0,t1)
    def land():
        a(f"""v_mov_b32 v{T2}, s{S_CNT}
          v_lshlrev_b32 v{D}, 16, v{DN}
          s_add_u32 s35, s35, 1
          v_cmp_eq_f32 vcc, 0, v{D}
          s_lshl_b32 s38, s35, 2
          s_lshl_b32 s36, s{S_N0}, 8
          v_cndmask_b32 v{D}, v{D}, 1.0, vcc""")
        spin(a,0,T2,T3)
    def hook2(B,dep):
        x=Asm(); publish(x,vPF,GP[0])
        B.add("\n".join(x.l),"blk",dep+["pf2"]+R(GP[0]),R(vPF)+R(GP[0]))
    def hook(B,tok):
        x=Asm(); x.uid=1000; arrive(x,4,T2,T3)
        B.add("\n".join(x.l),"blk",tok,R(T2)+R(T3)+["pf"])
        x=Asm(); x.uid=2000; spin(x,4,T2,T3)
        x(f"""s_add_u32 s{S_N0}, s{S_N0}, 32
          s_cmp_lt_u32 s35, 3
          s_cbranch_scc1 K4_PFN
          s_lshl_b32 s{S_N0}, s2, 1
          s_add_u32 s{S_N0}, s{S_N0}, 24576
          s_cmp_ge_u32 s2, 212
          s_cbranch_scc1 K4_NOPF
          s_cmp_lg_u32 s5, 0
          s_cbranch_scc1 K4_NOPF
          K4_PFN:""")
        prefetch(x); x("K4_NOPF:")
        B.add("\n".join(x.l),"blk",R(T2)+R(T3)+["pf"],R(T3)+R(vPF)+["pf2"])
    publish(a,T2,T3)
    a("K4_LOOP:")
    land(); st(); st(); st()
    if os.environ.get("FIFO","1")=="1":
        a("""s_setprio 3
          s_cmp_eq_u32 s35, 1
          s_cbranch_scc1 K4_PS
          s_setprio 2
          s_cmp_eq_u32 s35, 2
          s_cbranch_scc1 K4_PS
          s_setprio 1
          """+("s_cmp_lg_u32 s5, 0\ns_cbranch_scc1 K4_PS\ns_setprio 0\n" if os.environ.get("LASTB","0")=="1" else "")+"K4_PS:")
    H2E=os.environ.get('H2E','0')=='1'
    emit_body(a,2,hook,None if H2E else hook2)
    if H2E: publish(a,T2,T3,8)
    st()
    if st.on:
        a("s_waitcnt lgkmcnt(0)")
        for it in (1,2):
            a(f"s_cmp_lg_u32 s35, {it}\ns_cbranch_scc1 K4_SV{it}")
            for k in range(4): a(f"s_mov_b32 s{86+8*(it-1)+2*k}, s{74+2*k}")
            a(f"K4_SV{it}:")
    a(f"""s_cmp_lt_u32 s35, 3
      s_cbranch_scc1 K4_LOOP""")
    if T4:
        a("s_memtime s[74:75]\ns_waitcnt lgkmcnt(0)"); x=Stamper(a,True); x.n=2
        for w in (4,5,6,7): x.dump(0,w,16+4*(w-4))
    if st.on:
        a("s_memrealtime s[68:69]\ns_waitcnt lgkmcnt(0)\ns_sub_u32 s82, s68, s66\ns_add_u32 s82, s82, s72\ns_mov_b32 s84, s72")
        st.n=15; st.dump(5,7,16); st.dump(5,4,32); st.n=5
    a(f"""s_cmp_ge_u32 s2, 212
      s_cbranch_scc1 K4_END
      s_cmp_lg_u32 s5, 0
      s_cbranch_scc1 K4_END""")
    a("s_setprio 2")
    land(); st()
    a("s_cmp_lg_u32 s3, 0\ns_cbranch_scc1 K4_END")
    emit_body(a,1)
    if T4:
        a("s_memtime s[74:75]\ns_waitcnt lgkmcnt(0)"); x=Stamper(a,True); x.n=2; x.dump(0,0,0)
    st(); st.n=15; st.dump(5,0)
    a("K4_END:\ns_endpgm")
    return a.text(), desc(name,NV,102 if STAMP else 64)
```
